```python
import torch

def _softmax(x, axis=-1):
    return torch.softmax(x, dim=axis)
def _gelu(x):
    return torch.nn.functional.gelu(x, approximate="tanh")
def _silu(x):
    return torch.nn.functional.silu(x)
def _sigmoid(x):
    return torch.sigmoid(x)
def _layernorm(x, axis=-1, eps=1e-5):
    m = x.mean(dim=axis, keepdim=True)
    v = x.var(dim=axis, keepdim=True, unbiased=False)
    return (x - m) / torch.sqrt(v + eps)
def _scatter_add(tgt, idx, src, axis=0):
    return tgt.clone().index_add_(axis, idx, src)
def _segment_sum(src, seg, n):
    out = torch.zeros((n,) + src.shape[1:], dtype=src.dtype)
    return out.index_add_(0, seg, src)
def _pad(x, pw):
    flat = tuple(v for pair in reversed(pw) for v in pair)
    return torch.nn.functional.pad(x, flat)

kernel_name = 'standalone__seq2seq_rnn_t_joint__speech'

def setup_inputs():

    _w = (lambda a: (lambda t: t.to(torch.bfloat16) if t.is_floating_point() else t)(torch.as_tensor(a)))
    B, T, D, K = 2, 16000, 256, 15
    U = 8
    sc = (1.0 / (K * D)) ** 0.5
    sd = (1.0 / D) ** 0.5
    return {
        "x": _w((lambda *s: torch.randn(*s, dtype=torch.bfloat16) * 0.2)(B, T, D) * 0.5),
        "w1": _w((lambda *s: torch.randn(*s, dtype=torch.bfloat16) * 3.2)(K, D, D) * sc),
        "w2": _w((lambda *s: torch.randn(*s, dtype=torch.bfloat16) * 3.2)(K, D, D) * sc),
        "g": _w((lambda *s: torch.randn(*s, dtype=torch.bfloat16) * 3.2)(B, U, D) * 0.5),
        "w_f": _w((lambda *s: torch.randn(*s, dtype=torch.bfloat16) * 3.2)(D, D) * sd),
        "w_g": _w((lambda *s: torch.randn(*s, dtype=torch.bfloat16) * 3.2)(D, D) * sd),
        "w_o": _w((lambda *s: torch.randn(*s, dtype=torch.bfloat16) * 3.2)(D, D) * sd),
    }

def reference(x, w1, w2, g, w_f, w_g, w_o):
    B, T, D = x.shape
    K = w1.shape[0]
    pad = K // 2
    xp = _pad(x, ((0,0),(pad,pad),(0,0)))
    h = torch.zeros_like(x)
    for i in range(K):
        h = h + torch.einsum("btc,cd->btd", xp[:, i:i+T, :], w1[i])
    h = _gelu(h)[:, ::2, :]
    T1 = h.shape[1]
    hp = _pad(h, ((0,0),(pad,pad),(0,0)))
    f = torch.zeros_like(h)
    for i in range(K):
        f = f + torch.einsum("btc,cd->btd", hp[:, i:i+T1, :], w2[i])
    f = _gelu(f)[:, ::2, :]
    fe = torch.einsum("btd,de->bte", f, w_f)
    ge = torch.einsum("bud,de->bue", g, w_g)
    j = torch.tanh(fe[:, :, None, :] + ge[:, None, :, :])
    return torch.einsum("btud,dv->btuv", j, w_o)
```

```python
import re

_RNG = re.compile(r'^(-|neg\()?(abs\(|\|)?([vsa])\[(\d+):(\d+)\]')
_ONE = re.compile(r'^(-|neg\()?(abs\(|\|)?([vsa])(\d+)\b')


def regs(op):
    op = op.strip()
    m = _RNG.match(op)
    if m:
        return [(m.group(3), i) for i in range(int(m.group(4)), int(m.group(5)) + 1)]
    m = _ONE.match(op)
    if m:
        return [(m.group(3), int(m.group(4)))]
    if op.startswith('vcc'):
        return [('s', 'vcc')]
    if op.startswith('m0'):
        return [('s', 'm0')]
    if op.startswith('exec'):
        return [('s', 'exec')]
    return []


TRANS = ('v_exp_f32', 'v_rcp_f32', 'v_log_f32', 'v_rsq_f32', 'v_sqrt_f32')


def parse(line):
    s = line.split(';')[0].strip()
    if not s or s.endswith(':'):
        return None
    p = s.split(None, 1)
    mn = p[0]
    ops = [] if len(p) == 1 else [x.strip() for x in re.split(r',\s*(?![^\[]*\])', p[1])]
    R = [regs(o) for o in ops]
    fl = lambda L: [x for y in L for x in y]
    if mn.startswith('buffer_load'):
        if ' lds' in s:
            return mn, [], fl(R) + [('s', 'm0')]
        return mn, R[0], fl(R[1:])
    if mn.startswith('buffer_store') or mn.startswith('ds_write') or mn.startswith('buffer_atomic'):
        return mn, [], fl(R)
    if mn.startswith('global_load'):
        return mn, R[0], fl(R[1:])
    if mn.startswith('ds_read'):
        return mn, R[0], fl(R[1:])
    if mn.startswith('s_cmp') or mn.startswith('s_cbranch') or mn in ('s_barrier', 's_waitcnt', 's_nop', 's_branch', 's_sleep', 's_setprio', 's_endpgm'):
        return mn, [], fl(R)
    if mn.startswith('v_fmac') or mn.startswith('v_writelane'):
        return mn, R[0], fl(R)
    if mn in ('v_add_co_u32',):
        return mn, R[0] + R[1], fl(R[2:])
    if mn.startswith('v_cndmask') and len(ops) == 4:
        return mn, R[0], fl(R[1:])
    return mn, R[0] if R else [], fl(R[1:])


class Stream:
    def __init__(s, name):
        s.name = name
        s.l = []
        s.vm = []
        s.lg = []
        s.nbar = 0
        s.nmfma = 0

    def e(s, *lines):
        for x in lines:
            for y in x.split('\n'):
                y = y.strip()
                if y:
                    s.l.append(y if y.endswith(':') else '    ' + y)

    def c(s, txt):
        s.l.append('    ; ' + txt)

    def vmem(s, line, tag):
        s.e(line)
        s.vm.append(tag)

    def lds(s, line, tag):
        s.e(line)
        s.lg.append(tag)

    def _need(s, q, pred):
        idx = -1
        for i, t in enumerate(q):
            if pred(t):
                idx = i
        return idx

    def wait(s, vm=None, lg=None):
        def mk(p):
            if p is None:
                return None
            if callable(p):
                return p
            P = set(p) if isinstance(p, (list, set)) else {p}
            return lambda t: t in P
        parts = []
        p = mk(vm)
        if p:
            i = s._need(s.vm, p)
            if i >= 0:
                n = min(len(s.vm) - 1 - i, 63)
                parts.append(f'vmcnt({n})')
                s.vm = s.vm[len(s.vm) - n:] if n else []
        p = mk(lg)
        if p:
            i = s._need(s.lg, p)
            if i >= 0:
                n = min(len(s.lg) - 1 - i, 15)
                parts.append(f'lgkmcnt({n})')
                s.lg = s.lg[len(s.lg) - n:] if n else []
        if parts:
            s.e('s_waitcnt ' + ' '.join(parts))

    def drain(s, vm=True, lg=True):
        parts = []
        if vm:
            parts.append('vmcnt(0)')
            s.vm = []
        if lg:
            parts.append('lgkmcnt(0)')
            s.lg = []
        s.e('s_waitcnt ' + ' '.join(parts))

    def barrier(s, name=''):
        s.e('s_barrier' + (f' ; {name}' if name else ''))
        s.nbar += 1

    def text(s):
        return '\n'.join(s.l) + '\n'


def lint(lines, name=''):
    last = {}
    st = 0
    errs = []
    storedata = {}
    for ln, line in enumerate(lines):
        p = parse(line)
        if p is None:
            continue
        mn, dst, src = p
        isv = mn.startswith('v_')
        ismf = mn.startswith('v_mfma')
        ismem = mn.startswith('buffer_') or mn.startswith('ds_') or mn.startswith('global_')
        isvm = mn.startswith('buffer_') or mn.startswith('global_')

        def chk(r, kind, need, why):
            w = last.get(r)
            if w and w[0] == 'mfma32' and kind == 'mfma':
                w, need = ('mfma', w[1]), need + 4
            if w and w[0] == kind and st - w[1] - 1 < need:
                errs.append(f'{name}:{ln}: {why} {r} dist {st - w[1] - 1} < {need}: {line.strip()}')
        if ismf:
            ops = [x.strip() for x in re.split(r',\s*(?![^\[]*\])', line.split(';')[0].strip().split(None, 1)[1])]
            d, a, b, c = [regs(o) for o in ops[:4]]
            for r in a + b:
                chk(r, 'valu', 2, 'valu->mfma')
                chk(r, 'trans', 2, 'valu->mfma')
                chk(r, 'mfma', 8, 'mfma->mfmaAB')
            for r in c:
                chk(r, 'valu', 2, 'valu->mfmaC')
                chk(r, 'trans', 2, 'valu->mfmaC')
            if not c or c != d:
                for r in d:
                    chk(r, 'mfma', 8, 'mfma waw')
        else:
            for r in src:
                if r[0] == 'v':
                    if isv or ismem:
                        chk(r, 'mfma', 8, 'mfma->read')
                    if isv and mn not in TRANS:
                        chk(r, 'trans', 1, 'trans->valu')
                    if mn.startswith('v_readfirstlane') or mn.startswith('v_readlane'):
                        chk(r, 'valu', 1, 'valu->readlane')
                        chk(r, 'trans', 1, 'valu->readlane')
                    if mn.startswith('v_permlane') or '_dpp' in mn:
                        chk(r, 'valu', 2, 'valu->permlane')
                elif r[0] == 's':
                    if isvm:
                        chk(r, 'vsgpr', 5, 'valu sgpr->vmem')
                        if r[1] == 'm0':
                            chk(r, 'salu', 1, 'm0->dma')
                    if isv:
                        chk(r, 'vsgpr', 2, 'valu sgpr->valu')
            for r in dst:
                if r[0] == 'v' and (isv or ismem):
                    chk(r, 'mfma', 8, 'mfma waw')
                if r[0] == 'v' and isv and r in storedata and st - storedata[r] - 1 < 2:
                    errs.append(f'{name}:{ln}: store data WAR {r}: {line.strip()}')
        if mn in ('buffer_store_dwordx4', 'buffer_store_dwordx3'):
            for r in src[:4]:
                storedata[r] = st
        for r in dst:
            if r[0] == 'v' or r[0] == 'a':
                kind = ('mfma32' if '32x32' in mn else 'mfma') if ismf else ('trans' if mn in TRANS else ('valu' if isv else 'mem'))
            else:
                kind = 'vsgpr' if isv else 'salu'
            last[r] = (kind, st)
        if mn == 's_nop':
            st += int(line.split()[1]) + 1
        else:
            st += 1
    return errs
```

```python
import sys, struct
from stream import Stream, lint

KN = 'standalone__seq2seq_rnn_t_joint__speech_kernel'
K = 1024
WS_H = 0
WS_F = 8 << 20
WS_W2F = 12 << 20
WS_WFF = 14 << 20
WS_WOF = WS_WFF + 128 * K
WS_EB = WS_WFF + 256 * K
WS_GB = WS_EB + 16 * K
WS_EBF = WS_GB + 16 * K
WS_HFL = 15 << 20
WS_FFL = WS_HFL + 8 * K
WS_DIAG = 16 << 20
WS_SIZE = 17 << 20
L_SLOT = [0, 60 * K, 92 * K]
L_ST = 28 * K
L_XB = 90 * K
L_X = [124 * K, 141 * K]
L_IMG = [124 * K, 107 * K, 90 * K, 141 * K]
L_EB = 61 * K
L_J = [0, 8 * K, 16 * K, 77 * K]
NJ = len(L_J)
ZT = [2, 0, 3, 1, 0, 2, 4, 3, 7, 4, 6, 5, 0, 6, 4, 7, 2]
T0 = sum(ZT[l] << (4 * l) for l in range(16))
T1 = sum(ZT[l + 1] << (4 * l) for l in range(16))


def fbits(x):
    return '0x%08x' % struct.unpack('<I', struct.pack('<f', x))[0]


GC1 = -2 * 0.7978845608028654 * 1.4426950408889634
GC2 = GC1 * 0.044715
TC = 2 * 1.4426950408889634


def vr(b, n=4):
    return f'v[{b}:{b + n - 1}]'


S_X, S_W1, S_W2, S_G, S_WF, S_WG, S_WO, S_OUT, S_DBG, S_WS = 4, 6, 8, 10, 12, 14, 16, 18, 20, 22
sWAVE, sW4, sM, sNQ, sM2, sN8, sG, sT = 's24', 's25', 's26', 's27', 's28', 's29', 's30', 's31'
SA, SW1, SWS, SB = 32, 36, 40, 44


def srd(n):
    return f's[{n}:{n + 3}]'


def mk_srd(s, n, base, nrec, add=None):
    if add is None:
        s.e(f's_mov_b32 s{n}, s{base}', f's_mov_b32 s{n + 1}, s{base + 1}')
    else:
        s.e(f's_add_u32 s{n}, s{base}, {add}', f's_addc_u32 s{n + 1}, s{base + 1}, 0')
    s.e(f's_mov_b32 s{n + 2}, {nrec}', f's_mov_b32 s{n + 3}, 0x20000')


class Opt:
    diag = False
    prio = True


def sub(sig):
    if sig < 32:
        b, r = divmod(sig, 16)
        c64, p, kh = r >> 2, (r >> 1) & 1, r & 1
        return dict(ph=1, b=b, c64=c64, p=p, kh=kh, T=8 - p, first=r == 0, last=r == 15,
                    xbuf=L_X[(sig >> 1) & 1], bank=sig & 1)
    g = sig - 32
    b, r = divmod(g, 8)
    c64, p = r >> 1, r & 1
    return dict(ph=2, b=b, c64=c64, p=p, kh=None, T=8 - p, first=r == 0, last=r == 7,
                xbuf=L_IMG[g & 3], bank=(g + 2) % 3)


V_XA1 = 1
V_XA2 = 9
V_WLO, V_WHI, V_D1, V_D2, V_W2, V_WO, V_JLO, V_JHI, V_OUT = 13, 14, 15, 16, 17, 18, 19, 20, 21
V_ACC = 24
V_Z = 56
V_Y = 88
V_WB = [120, 152, 184]
V_SP = 216
V_PK = 248
WO_BASE = [V_SP, V_WB[0], V_WB[1], V_WB[2]]


def xreg(s_):
    return V_Z + 4 * s_ if s_ < 8 else V_Y + 4 * (s_ - 8)


def gen_compute(o):
    s = Stream('C')
    e = s.e
    if o.prio:
        e('s_setprio 2')
    t = 224
    e(f'v_and_b32 v{t}, 15, v0', f'v_lshrrev_b32 v{t + 1}, 4, v0')
    l16, kq = f'v{t}', f'v{t + 1}'
    e(f'v_lshlrev_b32 v{t + 2}, 2, {l16}')
    e(f's_mov_b32 s48, {T0 & 0xffffffff}', f's_mov_b32 s49, {T0 >> 32}', f's_mov_b32 s50, {T1 & 0xffffffff}', f's_mov_b32 s51, {T1 >> 32}')
    e(f'v_lshrrev_b64 v[{t + 4}:{t + 5}], v{t + 2}, s[48:49]', f'v_lshrrev_b64 v[{t + 6}:{t + 7}], v{t + 2}, s[50:51]')
    e(f'v_and_b32 v{t + 4}, 7, v{t + 4}', f'v_and_b32 v{t + 6}, 7, v{t + 6}')
    e(f's_lshr_b32 s52, {sW4}, 1', f's_and_b32 s53, {sW4}, 1')
    e('s_lshl_b32 s54, s52, 2')
    for sh in range(2):
        z = f'v{t + 4 + 2 * sh}'
        e(f'v_add_u32 v{t + 8}, {sh}, {l16}', f'v_and_b32 v{t + 9}, 1, v{t + 8}', f'v_lshlrev_b32 v{t + 8}, 10, v{t + 8}',
          f'v_add_u32 v{t + 8}, {L_XB}, v{t + 8}')
        for ee in range(2):
            e(f'v_xor_b32 v{t + 10}, {ee}, v{t + 9}', f'v_lshl_add_u32 v{t + 10}, v{t + 10}, 7, v{t + 8}')
            for kh in range(2):
                e(f'v_or_b32 v{t + 11}, {4 * kh}, {kq}', f'v_xor_b32 v{t + 11}, v{t + 11}, {z}',
                  f'v_lshl_add_u32 v{V_XA1 + sh * 4 + ee * 2 + kh}, v{t + 11}, 4, v{t + 10}')
            e(f'v_or_b32 v{t + 11}, s54, {kq}', f'v_xor_b32 v{t + 11}, v{t + 11}, {z}',
              f'v_lshl_add_u32 v{V_XA2 + sh * 2 + ee}, v{t + 11}, 4, v{t + 10}')
    e(f'v_lshrrev_b32 v{t + 8}, 2, {l16}', f'v_and_b32 v{t + 9}, 3, {l16}')
    e(f'v_and_b32 v{t + 10}, 2, v{t + 8}', f'v_and_b32 v{t + 11}, 1, {kq}', f'v_lshl_add_u32 v{t + 10}, v{t + 11}, 2, v{t + 10}')
    e(f's_lshl_b32 s55, {sW4}, 1', f'v_lshrrev_b32 v{t + 11}, 1, v{t + 9}', f'v_add_u32 v{t + 11}, s55, v{t + 11}',
      f'v_xor_b32 v{t + 11}, v{t + 11}, v{t + 10}')
    e(f'v_lshlrev_b32 v{t + 12}, 10, {kq}', f'v_lshl_add_u32 v{t + 12}, v{t + 8}, 7, v{t + 12}', f'v_lshl_add_u32 v{t + 12}, v{t + 11}, 4, v{t + 12}',
      f'v_and_b32 v{t + 9}, 1, v{t + 9}', f'v_lshl_add_u32 v{V_WLO}, v{t + 9}, 3, v{t + 12}', f'v_add_u32 v{V_WHI}, {L_SLOT[1]}, v{V_WLO}')
    e(f's_lshl_b32 s55, {sW4}, 2', f'v_add_u32 v{t + 8}, s55, {kq}', f'v_xor_b32 v{t + 8}, v{t + 8}, {l16}',
      f'v_lshlrev_b32 v{t + 9}, 8, {l16}', f'v_lshl_add_u32 v{V_D1}, v{t + 8}, 4, v{t + 9}')
    e('s_lshl_b32 s55, s53, 2', f'v_add_u32 v{t + 8}, s55, {kq}', f'v_and_b32 v{t + 9}, 7, {l16}', f'v_xor_b32 v{t + 8}, v{t + 8}, v{t + 9}',
      f'v_lshlrev_b32 v{t + 9}, 7, {l16}', f'v_lshl_add_u32 v{t + 8}, v{t + 8}, 4, v{t + 9}', 's_mul_i32 s55, s52, 16640', f'v_add_u32 v{V_D2}, s55, v{t + 8}')
    e(f'v_lshlrev_b32 v{V_JLO}, 4, v0', f'v_add_u32 v{V_JHI}, {77 * K}, v{V_JLO}')
    e(f's_lshl_b32 s55, {sN8}, 1', 's_add_u32 s55, s55, s53', 's_lshl_b32 s55, s55, 3', 's_add_u32 s55, s55, s52', 's_lshl_b32 s55, s55, 14',
      f's_add_u32 s55, s55, {WS_W2F}', f'v_add_u32 v{V_W2}, s55, v{V_JLO}')
    e(f's_lshl_b32 s55, {sW4}, 15', f's_add_u32 s55, s55, {WS_WOF}', f'v_add_u32 v{V_WO}, s55, v{V_JLO}')
    e(f's_lshl_b32 s55, {sG}, 16', f's_lshl_b32 s56, {sW4}, 7', 's_add_u32 s55, s55, s56', f's_cmp_ge_u32 {sG}, 250', 's_cselect_b32 s55, 0x80000000, s55')
    e(f'v_lshlrev_b32 v{t + 8}, 14, {kq}', f'v_lshl_add_u32 v{t + 8}, {l16}, 3, v{t + 8}', f'v_add_u32 v{V_OUT}, s55, v{t + 8}')
    mk_srd(s, SB, S_OUT, 32768000)
    for b in range(2):
        for r in range(4):
            e(f's_mov_b32 s{56 + 4 * b + r}, {r * 4096 + b * 16384000}')

    def rd_x(sig, s_):
        d = sub(sig)
        sh, sp = divmod(s_, 8)
        ee = sp & 1
        a = V_XA1 + sh * 4 + ee * 2 + d['kh'] if d['ph'] == 1 else V_XA2 + sh * 2 + ee
        s.lds(f'ds_read_b128 {vr(xreg(s_))}, v{a} offset:{d["xbuf"] - L_XB + (sp - ee) * 128}', ('X', sig, s_))

    def rd_w(k, j, h):
        slot = L_SLOT[k % 3]
        a, off = (V_WLO, 0) if k % 3 == 0 else (V_WHI, slot - L_SLOT[1])
        r = V_WB[sub(k)['bank']] + 4 * j + 2 * h
        s.lds(f'ds_read_b64_tr_b16 {vr(r, 2)}, v{a} offset:{off + j * 4096 + h * 512}', ('W', k, j))

    def ld_w2(k, j):
        d = sub(k)
        if j % 4 == 0:
            e(f's_mov_b32 s48, {(d["c64"] * 32 + d["p"] * 8 + j) * 1024}')
        s.vmem(f'buffer_load_dwordx4 {vr(V_WB[d["bank"]] + 4 * j)}, v{V_W2}, {srd(SWS)}, s48 offen offset:{(j % 4) * 1024} sc1', ('W', k, j))

    def ld_wo(tau, ka):
        if ka % 4 == 0:
            e(f's_mov_b32 s49, {(tau * 8 + ka) * 1024}')
        s.vmem(f'buffer_load_dwordx4 {vr(WO_BASE[tau] + 4 * ka)}, v{V_WO}, {srd(SWS)}, s49 offen offset:{(ka % 4) * 1024} sc1', ('O', tau, ka))

    def dump(sig, b):
        if sub(sig)['ph'] == 1:
            s.lds(f'ds_write_b128 v{V_D1}, {vr(V_ACC + 4 * b)} offset:{L_ST + b * 4096}', ('D', sig, b))
        else:
            s.lds(f'ds_write_b128 v{V_D2}, {vr(V_ACC + 4 * b)} offset:{L_ST + b * 2080}', ('D', sig, b))

    def jreg(k, ka):
        return (V_Z if k % 2 == 0 else V_Y) + 4 * ka

    def rd_j(k, ka):
        sl = L_J[k % NJ]
        a, off = (V_JLO, sl) if sl < 60 * K else (V_JHI, sl - 77 * K)
        s.lds(f'ds_read_b128 {vr(jreg(k, ka))}, v{a} offset:{off + ka * 1024}', ('A', k, ka))

    def bar(name):
        s.barrier(name)

    bar('P0')
    for j in range(8):
        rd_w(0, j, 0)
        rd_w(0, j, 1)
        rd_x(0, j)
    s.wait(lg=lambda t_: True)
    bar('P1')
    for sig in range(48):
        d = sub(sig)
        T = d['T']
        s.c(f'--- sigma {sig} {d}')
        pos = {}
        add = lambda b, j, f: pos.setdefault((b, j), []).append(f)
        first = []
        ys = [lambda s_=s_: rd_x(sig, s_) for s_ in range(8, T + 7)]
        ws = []
        if sig + 1 < 32:
            ws = [lambda j=j, h=h: rd_w(sig + 1, j, h) for j in range(sub(sig + 1)['T']) for h in range(2)]
        i = 0
        while ys or ws:
            if ys:
                first.append(ys.pop(0))
            for _ in range(2):
                if ws:
                    first.append(ws.pop(0))
        assert len(first) <= 4 * T - 5
        step = max(1, (4 * T - 6) // max(1, len(first))) if sig >= 31 else 1
        for i, f in enumerate(first):
            add((i * step) // T, (i * step) % T, f)
        gl = []
        if 30 <= sig < 46:
            gl = [lambda j=j: ld_w2(sig + 2, j) for j in range(sub(sig + 2)['T'])]
        if sig == 44:
            gl += [lambda ka=ka: ld_wo(0, ka) for ka in range(8)]
        if sig in (46, 47):
            gl += [lambda ka=ka: ld_wo(sig - 45, ka) for ka in range(8)]
        for i, f in enumerate(gl):
            add((2 * i + 1) // T, (2 * i + 1) % T, f)
        zpos = [(4, 0), (4, 2), (4, 4), (5, 0), (5, 2), (5, 4), (6, 2), (7, 1)]
        for k_, (b, j) in enumerate(zpos):
            if sig < 47:
                add(b, j, lambda k_=k_: rd_x(sig + 1, k_))
            else:
                add(b, j, lambda k_=k_: rd_j(0, k_))
        if d['last']:
            for b in range(7):
                add(b + 1, T - 1, lambda b=b: (e('s_nop 0'), dump(sig, b)))
        if d['first'] and sig > 0:
            add(0, T - 1, lambda: dump(sig - 1, 7))
        if sig == 47:
            for j in range(T):
                add(7, j, lambda j=j: ld_wo(3, j))
        for b in range(8):
            for j in range(T):
                if d['ph'] == 1:
                    s.wait(lg=[('W', sig, j), ('X', sig, b + j)])
                else:
                    s.wait(vm=[('W', sig, j)], lg=[('X', sig, b + j)])
                acc = vr(V_ACC + 4 * b)
                cin = '0' if (d['first'] and j == 0) else acc
                e(f'v_mfma_f32_16x16x32_bf16 {acc}, {vr(V_WB[d["bank"]] + 4 * j)}, {vr(xreg(b + j))}, {cin}')
                s.nmfma += 1
                for f in pos.get((b, j), []):
                    f()
            if b == 3:
                s.wait(lg=lambda t_: True)
                bar(f'B{sig}')
    ld_wo(3, 7)
    e('s_nop 6')
    dump(47, 7)

    def epi(k, r):
        a0 = V_ACC + 16 * (k % 2)
        return [lambda: e(f'v_cvt_pk_bf16_f32 v{V_PK + 2 * r}, v{a0 + r}, v{a0 + 4 + r}'),
                lambda: e(f'v_cvt_pk_bf16_f32 v{V_PK + 2 * r + 1}, v{a0 + 8 + r}, v{a0 + 12 + r}'),
                lambda: s.vmem(f'buffer_store_dwordx2 {vr(V_PK + 2 * r, 2)}, v{V_OUT}, {srd(SB)}, s{56 + 4 * (k // 8) + r} offen offset:{(k % 8) * 512} sc1', ('S', k, r))]
    for k in range(16):
        s.c(f'--- joint step {k}')
        if k < 15:
            s.wait(lg=lambda t_: True)
            bar(f'J{k}')
        pos = {}
        if k < 15:
            for ka in range(8):
                pos.setdefault(2 * ka, []).append(lambda ka=ka: rd_j(k + 1, ka))
        if k > 0:
            fl = [f for r in range(4) for f in epi(k - 1, r)]
            for i, f in enumerate(fl):
                pos.setdefault(9 + (3 * i) // 2, []).append(f)
        for tau in range(4):
            for ka in range(8):
                s.wait(vm=[('O', tau, ka)], lg=[('A', k, ka)])
                acc = vr(V_ACC + 16 * (k % 2) + 4 * tau)
                e(f'v_mfma_f32_16x16x32_bf16 {acc}, {vr(jreg(k, ka))}, {vr(WO_BASE[tau] + 4 * ka)}, {"0" if ka == 0 else acc}')
                s.nmfma += 1
                for f in pos.get(tau * 8 + ka, []):
                    f()
    e('s_nop 7')
    for r in range(4):
        for f in epi(15, r):
            f()
    e('s_endpgm')
    return s


H_XV, H_HV = 1, 11
H_WD, H_S1, H_HS, H_S2, H_L16, H_FLAG, H_HP, H_FP, H_C2, H_EB, H_TMP, H_ONE, H_JHI, H_ZERO = 21, 22, 26, 27, 31, 32, 33, 34, 35, 36, 37, 38, 39, 40
H_STAMP = 42
H_PV = 45
H_D, H_T, H_B, H_EA, H_WF = 48, 80, 96, 112, 128
sHW1K, sGC1, sPLO, sPHI, sSLOW, sGEF, sSPIN = 's48', 's49', 's50', 's51', 's52', 's53', 's54'
sHPM = 's[56:57]'
sEX16 = 's[58:59]'
sRET = 's[60:61]'
sPREP, sPDST, sPTAU = 's62', 's63', 's64'
sFOFF = 's65'
sBU = 's66'
SPIN_LIMIT = 1 << 17


def gen_helper(o):
    s = Stream('H')
    e = s.e
    ool = Stream('Hool')
    nstamp = [0]
    cur = ['P0']

    def stamp():
        if o.diag and nstamp[0] < 192:
            i = nstamp[0]
            e('s_memtime s[70:71]')
            s.drain(vm=False)
            e(f'v_writelane_b32 v{H_STAMP + i // 64}, s70, {i % 64}')
            nstamp[0] += 1

    def bar(name, vm_keep=True):
        s.wait(vm=lambda t_: t_[0] != cur[0], lg=lambda t_: True)
        stamp()
        s.barrier(name)
        stamp()

    def vm(line, kind):
        s.vmem(line, (cur[0], kind))

    t = 224
    e(f's_lshl_b32 {sHW1K}, {sW4}, 10')
    mk_srd(s, SA, S_X, 8192000)
    mk_srd(s, SW1, S_W1, 1966080)
    e(f'v_lshrrev_b32 v{t}, 3, v0', f'v_and_b32 v{t + 1}, 7, v0')
    sp, gam = f'v{t}', f'v{t + 1}'
    e(f's_mov_b32 s68, {T0 & 0xffffffff}', f's_mov_b32 s69, {T0 >> 32}')
    e(f's_and_b32 s70, {sW4}, 1', f'v_xor_b32 v{t + 2}, s70, {sp}')
    e(f's_lshl_b32 s71, {sM}, 8', f's_lshl_b32 s72, {sM2}, 8')
    for i in range(5):
        if i < 4:
            e(f's_add_u32 s73, {sW4}, {4 * i}', 's_lshl_b32 s74, s73, 2', 's_lshr_b64 s[76:77], s[68:69], s74', 's_and_b32 s76, s76, 7',
              's_lshl_b32 s73, s73, 4', 's_sub_u32 s73, s73, 7')
            e(f'v_lshl_add_u32 v{t + 3}, v{t + 2}, 1, s73', f'v_xor_b32 v{t + 4}, s76, {gam}')
        else:
            e(f'v_lshlrev_b32 v{t + 3}, 1, {sp}', f'v_add_u32 v{t + 3}, {256 - 7}, v{t + 3}', f'v_xor_b32 v{t + 4}, {ZT[16]}, {gam}')
        e(f'v_lshlrev_b32 v{t + 4}, 4, v{t + 4}')
        e(f'v_add_u32 v{t + 5}, s71, v{t + 3}', f'v_lshl_add_u32 v{H_XV + i}, v{t + 5}, 9, v{t + 4}', f'v_add_u32 v{H_XV + 5 + i}, 512, v{H_XV + i}')
        e(f'v_add_u32 v{t + 5}, s72, v{t + 3}', f'v_lshl_add_u32 v{H_HV + i}, v{t + 5}, 7, v{t + 4}', f'v_add_u32 v{H_HV + 5 + i}, 128, v{H_HV + i}')
    e(f'v_and_b32 v{t + 3}, 2, {sp}', 's_lshl_b32 s70, s70, 2', f'v_or_b32 v{t + 3}, s70, v{t + 3}', f'v_xor_b32 v{t + 3}, v{t + 3}, {gam}',
      f's_lshl_b32 s73, {sW4}, 12', f's_lshl_b32 s74, {sNQ}, 7', 's_add_u32 s73, s73, s74',
      f'v_lshlrev_b32 v{t + 4}, 9, {sp}', f'v_lshl_add_u32 v{t + 4}, v{t + 3}, 4, v{t + 4}', f'v_add_u32 v{H_WD}, s73, v{t + 4}')
    e(f's_lshl_b32 s73, {sW4}, 4', 's_mov_b64 s[76:77], 0xffff', f's_lshl_b64 {sEX16}, s[76:77], s73')

    def dma_img(buf, av, soff, flags):
        for i in range(5):
            if i < 4:
                e(f's_add_u32 m0, {sHW1K}, {buf + 4096 * i}')
                e('s_nop 0')
            else:
                e(f's_mov_b32 m0, {buf + 16384}', f's_mov_b64 exec, {sEX16}')
            vm(f'buffer_load_dwordx4 v{av + i}, {srd(SA)}, {soff} offen{flags} lds', 'x')
        e('s_mov_b64 exec, -1')

    def dma_x(st):
        b, c64, p = st >> 3, (st >> 1) & 3, st & 1
        if st == 8:
            mk_srd(s, SA, S_X, 8192000, add=8192000)
        so = '0'
        if c64:
            e(f's_mov_b32 s68, {c64 * 128}')
            so = 's68'
        dma_img(L_X[st & 1], H_XV + 5 * p, so, '')

    def dma_h(g):
        d = sub(32 + g)
        off = WS_H + (d['b'] * 4 + d['c64']) * (1 << 20)
        if d['p'] == 0:
            mk_srd(s, SA, S_WS, 1024000, add=off)
        dma_img(d['xbuf'], H_HV + 5 * d['p'], '0', ' sc1')

    def dma_w(k):
        d = sub(k)
        for j in range(d['T']):
            e(f's_add_u32 m0, {sHW1K}, {L_SLOT[k % 3] + j * 4096}',
              f's_mov_b32 s68, {(2 * j + d["p"]) * 131072 + (64 * d["c64"] + 32 * d["kh"]) * 512}')
            vm(f'buffer_load_dwordx4 v{H_WD}, {srd(SW1)}, s68 offen lds', 'w')

    dma_x(0)
    dma_w(0)
    cur[0] = 'P0b'
    dma_w(1)
    l16, kq = f'v{t + 6}', f'v{t + 7}'
    e(f'v_and_b32 {l16}, 15, v0', f'v_lshrrev_b32 {kq}, 4, v0', f'v_lshlrev_b32 v{H_L16}, 4, v0')
    e(f'v_mov_b32 v{H_C2}, {fbits(GC2)}', f's_mov_b32 {sGC1}, {fbits(GC1)}', f's_mov_b32 {sPLO}, 0x05040100', f's_mov_b32 {sPHI}, 0x07060302')
    e(f'v_mov_b32 v{H_ONE}, 1', f'v_mov_b32 v{H_ZERO}, 0', f'v_mov_b32 v{H_ZERO + 1}, 0')
    e(f's_lshl_b32 s68, {sM}, 2', f's_add_u32 s68, s68, {sNQ}', 's_lshl_b32 s68, s68, 2', f's_add_u32 s68, s68, {sW4}', 's_lshl_b32 s68, s68, 2', f's_add_u32 s68, s68, {WS_HFL}')
    e(f's_lshl_b32 s69, {sM2}, 3', f's_add_u32 s69, s69, {sN8}', 's_lshl_b32 s69, s69, 2', f's_add_u32 s69, s69, {sW4}', 's_lshl_b32 s69, s69, 2', f's_add_u32 s69, s69, {WS_FFL}')
    e(f'v_mov_b32 v{t + 8}, s68', f'v_mov_b32 v{t + 9}, s69', 'v_cmp_gt_u32 vcc, 2, v0', f'v_and_b32 v{t + 10}, 1, v0', 's_nop 0',
      f'v_cndmask_b32 v{t + 8}, v{t + 9}, v{t + 8}, vcc', f'v_lshl_add_u32 v{H_FLAG}, v{t + 10}, 12, v{t + 8}')
    e('s_mov_b64 exec, 15')
    vm(f'buffer_store_dword v{H_ZERO}, v{H_FLAG}, {srd(SWS)}, 0 offen sc1', 'rst')
    e('s_mov_b64 exec, -1')
    e(f's_lshl_b32 s68, s2, 2', f's_add_u32 s68, s68, {sW4}', f's_mov_b32 {sPREP}, 0', f's_mov_b32 {sPDST}, 0', f's_mov_b32 {sPTAU}, 0')
    e(f'v_lshlrev_b32 v{t + 8}, 3, {l16}')
    e('s_cmp_lt_u32 s68, 480', 's_cbranch_scc1 L_prep_w2', 's_cmp_lt_u32 s68, 544', 's_cbranch_scc1 L_prep_fo', 's_cmp_ge_u32 s68, 1020', 's_cbranch_scc1 L_prep_ge', 'L_prep_done:')
    x = ool.e
    x('L_prep_w2:')
    mk_srd(ool, SB, S_W2, 1966080)
    x('s_lshr_b32 s69, s68, 5', 's_lshr_b32 s70, s68, 2', 's_and_b32 s70, s70, 7', 's_and_b32 s71, s68, 3')
    x('s_lshl_b32 s72, s69, 17', 's_lshl_b32 s73, s70, 14', 's_add_u32 s72, s72, s73', 's_lshl_b32 s73, s71, 7', 's_add_u32 s72, s72, s73')
    x(f'v_lshl_add_u32 v{H_TMP}, {kq}, 12, v{t + 8}')
    for jj in range(8):
        x(f'buffer_load_dwordx2 {vr(H_D + 2 * jj, 2)}, v{H_TMP}, {srd(SB)}, s72 offen offset:{jj * 512}')
    x('s_lshl_b32 s72, s71, 5', 's_add_u32 s72, s72, s70', 's_lshl_b32 s72, s72, 4', 's_and_b32 s73, s69, 1', 's_lshl_b32 s73, s73, 3', 's_add_u32 s72, s72, s73',
      's_lshr_b32 s73, s69, 1', 's_add_u32 s72, s72, s73', 's_lshl_b32 s72, s72, 10', f's_add_u32 {sPDST}, s72, {WS_W2F}', f's_mov_b32 {sPTAU}, 131072', f's_mov_b32 {sPREP}, 1',
      's_branch L_prep_done')
    x('L_prep_fo:')
    x('s_cmp_lt_u32 s68, 512', f's_cselect_b32 s{SB}, s{S_WF}, s{S_WO}', f's_cselect_b32 s{SB + 1}, s{S_WF + 1}, s{S_WO + 1}', f's_mov_b32 s{SB + 2}, 131072', f's_mov_b32 s{SB + 3}, 0x20000')
    x('s_sub_u32 s69, s68, 480', f's_lshl_b32 {sPDST}, s69, 10')
    x('s_and_b32 s70, s69, 7', 's_lshr_b32 s71, s69, 3')
    x('s_lshl_b32 s72, s71, 5', 's_add_u32 s72, s72, s70', 's_lshl_b32 s72, s72, 10', f's_add_u32 {sPDST}, s72, {WS_WFF}', f's_mov_b32 {sPTAU}, 8192')
    x('s_lshr_b32 s72, s70, 1', 's_lshl_b32 s72, s72, 15', 's_and_b32 s73, s70, 1', 's_lshl_b32 s73, s73, 10', 's_add_u32 s72, s72, s73',
      's_and_b32 s73, s71, 3', 's_lshl_b32 s73, s73, 7', 's_add_u32 s72, s72, s73', 's_add_u32 s73, s72, 4096')
    x(f'v_lshl_add_u32 v{H_TMP}, {kq}, 13, v{t + 8}')
    for jj in range(8):
        row = 4 * (jj & 3) + (jj >> 2)
        x(f'buffer_load_dwordx2 {vr(H_D + 2 * jj, 2)}, v{H_TMP}, {srd(SB)}, {"s72" if row < 8 else "s73"} offen offset:{(row % 8) * 512}')
    x(f's_mov_b32 {sPREP}, 1', 's_branch L_prep_done')
    x('L_prep_ge:')
    mk_srd(ool, SB, S_G, 8192)
    x(f'v_lshlrev_b32 v{H_TMP}, 9, {l16}', f'v_lshl_add_u32 v{H_TMP}, {kq}, 4, v{H_TMP}')
    for ks in range(8):
        x(f'buffer_load_dwordx4 {vr(H_D + 4 * ks)}, v{H_TMP}, {srd(SB)}, 0 offen offset:{ks * 64}')
    x(f'v_lshl_add_u32 v{H_TMP}, {kq}, 12, v{t + 8}', f's_mov_b32 {sPREP}, 2', 's_branch L_prep_done')
    c8, row8 = gam, sp
    for half in range(2):
        for hh in range(2):
            e(f'v_lshlrev_b32 v{t + 9}, 1, {c8}', f'v_or_b32 v{t + 9}, {hh}, v{t + 9}', f'v_or_b32 v{t + 10}, {8 * half}, {row8}',
              f'v_xor_b32 v{t + 9}, v{t + 9}, v{t + 10}', f'v_lshlrev_b32 v{t + 10}, 8, v{t + 10}', f'v_lshl_add_u32 v{t + 9}, v{t + 9}, 4, v{t + 10}',
              f's_lshl_b32 s68, {sW4}, 13', f'v_add_u32 v{H_S1 + 2 * half + hh}, s68, v{t + 9}')
    e(f's_lshl_b32 s68, {sM}, 14', f's_lshl_b32 s69, {sW4}, 8', 's_add_u32 s68, s68, s69',
      f'v_lshlrev_b32 v{t + 9}, 10, {row8}', f'v_lshl_add_u32 v{t + 9}, {c8}, 4, v{t + 9}', f'v_add_u32 v{H_HS}, s68, v{t + 9}')
    e(f'v_and_b32 v{t + 9}, 7, {l16}', f'v_mul_u32_u24 v{t + 9}, 2080, v{t + 9}', f'v_lshrrev_b32 v{t + 10}, 3, {l16}', f's_lshl_b32 s68, {sW4}, 2')
    for gg in range(2):
        e(f'v_add_u32 v{t + 11}, s68, v{t + 10}', f'v_add_u32 v{t + 11}, {2 * gg}, v{t + 11}', f'v_and_b32 v{t + 12}, 7, v{t + 11}',
          f'v_lshl_add_u32 v{t + 11}, v{t + 11}, 7, v{t + 9}')
        for nh in range(2):
            e(f'v_or_b32 v{t + 13}, {4 * nh}, {kq}', f'v_xor_b32 v{t + 13}, v{t + 13}, v{t + 12}', f'v_lshl_add_u32 v{H_S2 + 2 * gg + nh}, v{t + 13}, 4, v{t + 11}')
    e(f's_lshl_b32 s68, {sM2}, 1', 's_sub_u32 s68, s68, 1', f'v_add_u32 v{t + 9}, s68, {kq}', f'v_cmp_gt_u32 {sHPM}, 64, v{t + 9}' if False else f'v_cmp_gt_u32 vcc, 64, v{t + 9}',
      f'v_lshlrev_b32 v{t + 9}, 6, v{t + 9}', f'v_lshl_add_u32 v{t + 9}, {l16}, 2, v{t + 9}', f'v_add_u32 v{H_HP}, {WS_HFL}, v{t + 9}', f's_mov_b64 {sHPM}, vcc')
    e(f's_lshr_b32 s68, {sG}, 3', 's_lshl_b32 s68, s68, 7', f's_and_b32 s69, {sG}, 7', 's_lshr_b32 s69, s69, 1', 's_lshl_b32 s69, s69, 2', 's_add_u32 s68, s68, s69',
      f's_add_u32 s68, s68, {WS_FFL}', f'v_lshl_add_u32 v{H_FP}, {gam}, 4, s68')
    e(f's_lshl_b32 s68, {sW4}, 8', f's_add_u32 s68, s68, {L_EB}', f'v_lshl_add_u32 v{H_EB}, {kq}, 6, s68')
    e(f's_lshl_b32 s68, {sW4}, 11', f'v_add_u32 v{H_JHI}, s68, v{H_L16}')
    e(f's_cmp_eq_u32 {sPREP}, 2', 's_cbranch_scc1 L_ge_ld', 'L_ge_ld_done:')
    x('L_ge_ld:')
    mk_srd(ool, SB, S_WG, 131072)
    x(f's_lshl_b32 s69, {sW4}, 7')
    for ks in range(8):
        x(f's_add_u32 s68, s69, {ks * 16384}')
        for jj in range(8):
            x(f'buffer_load_dwordx2 {vr(H_WF + 16 * ks + 2 * jj, 2)}, v{H_TMP}, {srd(SB)}, s68 offen offset:{jj * 512}')
    x('s_branch L_ge_ld_done')

    def perms(st_, src):
        for tau in range(4):
            for m_ in range(4):
                st_.e(f'v_perm_b32 v{H_T + 4 * tau + m_}, v{src + 4 * m_ + 2 + (tau >> 1)}, v{src + 4 * m_ + (tau >> 1)}, {sPHI if tau & 1 else sPLO}')

    def prep_b():
        s.wait(vm=lambda t_: t_[0] in ('P0', 'P0b', 'P1'))
        e(f's_cmp_eq_u32 {sPREP}, 1', 's_cbranch_scc1 L_prep_b', 'L_prep_b_done:')
        x('L_prep_b:')
        perms(ool, H_D)
        for tau in range(4):
            x(f'buffer_store_dwordx4 {vr(H_T + 4 * tau)}, v{H_L16}, {srd(SWS)}, {sPDST} offen sc1', f's_add_u32 {sPDST}, {sPDST}, {sPTAU}')
        x('s_branch L_prep_b_done')

    def ge_part(i):
        e(f's_cmp_eq_u32 {sPREP}, 2', f's_cbranch_scc1 L_ge{i}', f'L_ge{i}_done:')
        x(f'L_ge{i}:')
        if i < 4:
            for ks in (2 * i, 2 * i + 1):
                perms(ool, H_WF + 16 * ks)
                x('s_nop 1')
                for tau in range(4):
                    acc = vr(H_B + 4 * tau)
                    x(f'v_mfma_f32_16x16x32_bf16 {acc}, {vr(H_T + 4 * tau)}, {vr(H_D + 4 * ks)}, {"0" if ks == 0 else acc}')
        else:
            x('s_nop 7', f's_mov_b32 s68, {fbits(TC)}')
            for i_ in range(16):
                x(f'v_mul_f32 v{H_B + i_}, s68, v{H_B + i_}')
            for i_ in range(16):
                x(f'v_exp_f32 v{H_EA + i_}, v{H_B + i_}')
            x(f'v_max3_f32 v{H_T}, |v{H_B}|, |v{H_B + 1}|, 0')
            for i_ in range(2, 16, 2):
                x(f'v_max3_f32 v{H_T}, |v{H_B + i_}|, |v{H_B + i_ + 1}|, v{H_T}')
            x(f'v_cmp_lt_f32 vcc, {fbits(126.0)}, v{H_T}')
            x(f'v_and_b32 v{H_T + 1}, 15, v0', f'v_lshrrev_b32 v{H_T + 2}, 4, v0', f'v_lshlrev_b32 v{H_T + 1}, 10, v{H_T + 1}',
              f'v_lshl_add_u32 v{H_T + 1}, v{H_T + 2}, 6, v{H_T + 1}', f's_lshl_b32 s68, {sW4}, 8', f's_add_u32 s68, s68, {WS_EB}', f's_add_u32 s69, s68, {WS_GB - WS_EB}')
            for tau in range(4):
                x(f'buffer_store_dwordx4 {vr(H_EA + 4 * tau)}, v{H_T + 1}, {srd(SWS)}, s68 offen offset:{tau * 16} sc1')
                x(f'buffer_store_dwordx4 {vr(H_B + 4 * tau)}, v{H_T + 1}, {srd(SWS)}, s69 offen offset:{tau * 16} sc1')
            x('s_cmp_lg_u64 vcc, 0', 's_cselect_b32 s70, 1, 0', f'v_mov_b32 v{H_T + 3}, s70', f's_lshl_b32 s68, {sW4}, 2', f's_add_u32 s68, s68, {WS_EBF}',
              's_mov_b64 exec, 1', f'buffer_store_dword v{H_T + 3}, v{H_ZERO}, {srd(SWS)}, s68 offen sc1', 's_mov_b64 exec, -1')
        x(f's_branch L_ge{i}_done')

    def arrive():
        e(f's_cmp_lg_u32 {sW4}, 0', 's_cbranch_scc1 L_arr_done')
        mk_srd(s, SB, S_DBG, 256)
        e('s_mov_b64 exec, 1', f'buffer_atomic_add v{H_ONE}, v{H_ZERO}, {srd(SB)}, 0 offen sc1', 's_mov_b64 exec, -1', 'L_arr_done:')

    npoll = [0]

    def poll_issue(kind, b):
        if kind == 'cnt':
            mk_srd(s, SB, S_DBG, 256)
            line = f'buffer_load_dword v{H_PV}, v{H_ZERO}, {srd(SB)}, 0 offen sc1'
        elif kind == 'h':
            e(f's_mov_b32 s67, {b * 4096}')
            line = f'buffer_load_dword v{H_PV}, v{H_HP}, {srd(SWS)}, s67 offen sc1'
        else:
            e(f's_mov_b32 s67, {b * 4096}')
            line = f'buffer_load_dword v{H_PV}, v{H_FP}, {srd(SWS)}, s67 offen sc1'
        vm(line, 'poll')
        return line

    def poll_check(kind, line):
        n = npoll[0]
        npoll[0] += 1
        s.wait(vm=lambda t_: t_[1] == 'poll')
        e(f's_mov_b32 {sSPIN}, 0', f'L_poll{n}:')
        e(f'v_cmp_eq_u32 vcc, {"0x100" if kind == "cnt" else 1}, v{H_PV}')
        e('s_nop 1', f's_andn2_b64 s[68:69], {sHPM if kind == "h" else "exec"}, vcc', f's_cbranch_scc1 L_spin{n}', f'L_pok{n}:')
        x(f'L_spin{n}:', f's_add_u32 {sSPIN}, {sSPIN}, 1', f's_cmp_gt_u32 {sSPIN}, {SPIN_LIMIT}', f's_cbranch_scc1 L_pok{n}', 's_sleep 2', line, 's_waitcnt vmcnt(0)', f's_branch L_poll{n}')

    def gelu8(v0_, t0):
        for i in range(8):
            e(f'v_mul_f32 v{t0 + i}, v{v0_ + i}, v{v0_ + i}')
        for i in range(8):
            e(f'v_fma_f32 v{t0 + i}, v{t0 + i}, v{H_C2}, {sGC1}')
        for i in range(8):
            e(f'v_mul_f32 v{t0 + i}, v{t0 + i}, v{v0_ + i}')
        for i in range(8):
            e(f'v_exp_f32 v{t0 + i}, v{t0 + i}')
        for i in range(8):
            e(f'v_add_f32 v{t0 + i}, 1.0, v{t0 + i}')
        for i in range(8):
            e(f'v_rcp_f32 v{t0 + i}, v{t0 + i}')
        for i in range(8):
            e(f'v_mul_f32 v{v0_ + i}, v{v0_ + i}, v{t0 + i}')

    def pack8(dst, v0_):
        for i in range(4):
            e(f'v_cvt_pk_bf16_f32 v{dst + i}, v{v0_ + 2 * i}, v{v0_ + 2 * i + 1}')

    def epi1_read(b):
        for u_ in range(4):
            bb, half = u_ >> 1, u_ & 1
            for hh in range(2):
                s.lds(f'ds_read_b128 {vr(H_D + 8 * u_ + 4 * hh)}, v{H_S1 + 2 * half + hh} offset:{L_ST + bb * 4096}', ('e', u_))
        e(f's_add_u32 s68, {sNQ}, {4 * b}', 's_lshl_b32 s68, s68, 20')
        mk_srd(s, SB, S_WS, 1 << 20, add='s68')
        e('s_mov_b32 s55, 8192')

    def epi1_unit(u_):
        bb, half = u_ >> 1, u_ & 1
        s.wait(lg=[('e', u_)])
        gelu8(H_D + 8 * u_, H_T)
        pack8(H_B + 4 * u_, H_D + 8 * u_)
        vm(f'buffer_store_dwordx4 {vr(H_B + 4 * u_)}, v{H_HS}, {srd(SB)}, {"s55" if half else "0"} offen offset:{bb * 128} sc1', 'st')

    def epi2_read(b):
        for gg in range(2):
            for kh in range(2):
                for nh in range(2):
                    s.lds(f'ds_read_b128 {vr(H_D + 16 * gg + 8 * kh + 4 * nh)}, v{H_S2 + 2 * gg + nh} offset:{L_ST + kh * 16640}', ('e', gg))
        e(f's_add_u32 s68, {sN8}, {8 * b}', 's_lshl_b32 s68, s68, 8', f's_lshl_b32 s69, {sM2}, 3', 's_add_u32 s68, s68, s69', f's_lshl_b32 s69, {sW4}, 1',
          's_add_u32 s68, s68, s69', 's_lshl_b32 s68, s68, 10', f's_add_u32 {sFOFF}, s68, {WS_F}')

    def epi2_unit(gg):
        s.wait(lg=[('e', gg)])
        v_ = H_D + 16 * gg
        for i in range(8):
            e(f'v_add_f32 v{v_ + i}, v{v_ + i}, v{v_ + 8 + i}')
        gelu8(v_, H_T)
        pack8(H_B + 4 * gg, v_)
        vm(f'buffer_store_dwordx4 {vr(H_B + 4 * gg)}, v{H_L16}, {srd(SWS)}, {sFOFF} offen offset:{gg * 1024} sc1', 'st')

    def flag_set(k):
        s.wait(vm=lambda t_: t_[1] == 'st')
        e(f's_mov_b64 exec, {1 << k}')
        vm(f'buffer_store_dword v{H_ONE}, v{H_FLAG}, {srd(SWS)}, 0 offen sc1', 'flag')
        e('s_mov_b64 exec, -1')

    def ld_wf(lo, hi):
        for i in range(lo, hi):
            if i % 4 == 0:
                e(f's_lshl_b32 s68, {sW4}, 15', f's_add_u32 s68, s68, {WS_WFF + i * 1024}')
            vm(f'buffer_load_dwordx4 {vr(H_WF + 4 * i)}, v{H_L16}, {srd(SWS)}, s68 offen offset:{(i % 4) * 1024} sc1', 'wf')

    def dma_eb():
        for i in range(4):
            e(f's_lshl_b32 s68, {sW4}, 12', f's_add_u32 m0, s68, {L_EB + i * 1024}', f's_add_u32 s68, s68, {WS_EB + i * 1024}')
            vm(f'buffer_load_dwordx4 v{H_L16}, {srd(SWS)}, s68 offen sc1 lds', 'eb')
        e(f's_lshl_b32 s68, {sW4}, 2', f's_add_u32 s68, s68, {WS_EBF}')
        vm(f'buffer_load_dword v{H_PV}, v{H_ZERO}, {srd(SWS)}, s68 offen sc1', 'ebf')

    def get_ebf():
        s.wait(vm=lambda t_: t_[1] == 'ebf')
        e(f'v_readfirstlane_b32 {sGEF}, v{H_PV}')

    def ld_f(b):
        e(f's_lshl_b32 s69, {sG}, 10')
        for ka in range(8):
            e(f's_add_u32 s68, s69, {WS_F + (b * 8 + ka) * 256 * 1024}')
            vm(f'buffer_load_dwordx4 {vr(H_D + 4 * ka)}, v{H_L16}, {srd(SWS)}, s68 offen sc1', 'f')

    def fe(b):
        s.wait(vm=lambda t_: t_[1] in ('f', 'wf'))
        for tau in range(4):
            for ka in range(8):
                acc = vr(H_EA + 4 * tau)
                e(f'v_mfma_f32_16x16x32_bf16 {acc}, {vr(H_WF + 32 * tau + 4 * ka)}, {vr(H_D + 4 * ka)}, {"0" if ka == 0 else acc}')
        e('s_nop 7', f's_mov_b32 s68, {fbits(TC)}')
        for i in range(16):
            e(f'v_mul_f32 v{H_EA + i}, s68, v{H_EA + i}')
        e(f'v_max3_f32 v{H_T}, |v{H_EA}|, |v{H_EA + 1}|, 0')
        for i in range(2, 16, 2):
            e(f'v_max3_f32 v{H_T}, |v{H_EA + i}|, |v{H_EA + i + 1}|, v{H_T}')
        e(f'v_cmp_lt_f32 vcc, {fbits(126.0)}, v{H_T}', 's_nop 1', 's_cmp_lg_u64 vcc, 0', f's_cselect_b32 {sSLOW}, 1, {sGEF}',
          f's_cmp_lg_u32 {sSLOW}, 0', f's_cbranch_scc1 L_noexp{b}')
        for i in range(16):
            e(f'v_exp_f32 v{H_EA + i}, v{H_EA + i}')
        e(f'L_noexp{b}:')

    def jstep(k):
        for i in range(4):
            s.lds(f'ds_read_b128 {vr(H_B + 4 * i)}, v{H_EB} offset:{k * 1024 + i * 16}', ('eb', i))
        e(f's_cmp_lg_u32 {sSLOW}, 0', f's_cbranch_scc1 L_js{k}')
        for hf in range(2):
            s.wait(lg=[('eb', 2 * hf + 1)])
            for i in range(8 * hf, 8 * hf + 8):
                e(f'v_fma_f32 v{H_T + i}, v{H_EA + i}, v{H_B + i}, 1.0')
            for i in range(8 * hf, 8 * hf + 8):
                e(f'v_rcp_f32 v{H_T + i}, v{H_T + i}')
        e(f'L_jb{k}:')
        x(f'L_js{k}:', f's_mov_b32 {sBU}, {WS_GB - L_EB + k * 1024}', f's_call_b64 {sRET}, L_slow', f's_branch L_jb{k}')
        for hf in range(2):
            for i in range(8 * hf, 8 * hf + 8):
                e(f'v_fma_f32 v{H_T + i}, v{H_T + i}, -2.0, 1.0')
            pack8(H_B + 4 * hf, H_T + 8 * hf)
        sl = L_J[k % NJ]
        for hf in range(2):
            if sl < 60 * K:
                s.lds(f'ds_write_b128 v{H_JHI}, {vr(H_B + 4 * hf)} offset:{sl + hf * 1024}', ('jw', k))
            else:
                if hf == 0:
                    e(f'v_add_u32 v{H_TMP}, {sl}, v{H_JHI}')
                s.lds(f'ds_write_b128 v{H_TMP}, {vr(H_B + 4 * hf)} offset:{hf * 1024}', ('jw', k))

    x('L_slow:', 's_waitcnt lgkmcnt(0)')
    for i in range(4):
        x(f'buffer_load_dwordx4 {vr(H_B + 4 * i)}, v{H_EB}, {srd(SWS)}, {sBU} offen offset:{i * 16} sc1')
    x('s_waitcnt vmcnt(0)')
    for i in range(16):
        x(f'v_add_f32 v{H_T + i}, v{H_EA + i}, v{H_B + i}')
    for i in range(16):
        x(f'v_exp_f32 v{H_T + i}, v{H_T + i}')
    for i in range(16):
        x(f'v_add_f32 v{H_T + i}, 1.0, v{H_T + i}')
    for i in range(16):
        x(f'v_rcp_f32 v{H_T + i}, v{H_T + i}')
    x('s_nop 0', f's_setpc_b64 {sRET}')

    cur[0] = 'P0b'
    s.wait(vm=lambda t_: t_[0] == 'P0')
    stamp()
    s.barrier('P0')
    stamp()
    cur[0] = 'P1'
    dma_w(2)
    bar('P1')
    P = {}
    for sig in range(48):
        cur[0] = f'B{sig}'
        s.c(f'--- interval {sig}')
        if sig == 28:
            poll_check('cnt', P['cnt'])
            P['h0'] = poll_issue('h', 0)
        if sig == 30:
            poll_check('h', P['h0'])
        if sig == 37:
            poll_check('h', P['h1'])
        if sig == 44:
            poll_check('f', P['f0'])
            ld_f(0)
        if sig in (17, 33):
            epi1_read(sig // 32)
        if sig == 41:
            epi2_read(0)
        if sig % 2 == 0 and sig // 2 + 1 < 16:
            dma_x(sig // 2 + 1)
        if sig + 3 < 32:
            dma_w(sig + 3)
        if sig == 30:
            dma_h(0)
            dma_h(1)
        if sig == 31:
            dma_h(2)
        if 32 <= sig <= 44:
            dma_h(sig - 29)
        if sig == 0:
            prep_b()
        if 1 <= sig <= 5:
            ge_part(sig - 1)
        if sig == 7:
            arrive()
        if sig in (17, 33):
            epi1_unit(0)
            epi1_unit(1)
        if sig in (18, 34):
            epi1_unit(2)
            epi1_unit(3)
        if sig in (19, 35):
            flag_set(sig // 32)
        if sig == 27:
            P['cnt'] = poll_issue('cnt', 0)
        if sig == 36:
            P['h1'] = poll_issue('h', 1)
        if sig == 38:
            dma_eb()
            ld_wf(0, 16)
        if sig == 39:
            get_ebf()
            ld_wf(16, 32)
        if sig == 41:
            epi2_unit(0)
            epi2_unit(1)
        if sig == 42:
            flag_set(2)
        if sig == 43:
            P['f0'] = poll_issue('f', 0)
        if sig == 45:
            fe(0)
        if sig == 46:
            jstep(0)
            jstep(1)
        if sig == 47:
            jstep(2)
        bar(f'B{sig}')
    for k in range(15):
        cur[0] = f'J{k}'
        s.c(f'--- joint interval {k}')
        if k == 0:
            jstep(3)
        if k == 1:
            epi2_read(1)
            epi2_unit(0)
            epi2_unit(1)
        if k == 2:
            flag_set(3)
            jstep(4)
        if k == 3:
            jstep(5)
        if k == 4:
            P['f1'] = poll_issue('f', 1)
            jstep(6)
        if k == 5:
            poll_check('f', P['f1'])
            ld_f(1)
            jstep(7)
        if k == 6:
            fe(1)
        if k >= 7:
            jstep(k + 1)
        bar(f'J{k}')
    if o.diag:
        stamp()
        e(f's_lshl_b32 s68, s2, 2', f's_add_u32 s68, s68, {sW4}', 's_lshl_b32 s68, s68, 10', f's_add_u32 s68, s68, {WS_DIAG}', f'v_lshlrev_b32 v{H_TMP}, 2, v0')
        for i in range(3):
            e(f'buffer_store_dword v{H_STAMP + i}, v{H_TMP}, {srd(SWS)}, s68 offen offset:{i * 256}')
    e('s_endpgm')
    return s, ool


def gen(o):
    c = gen_compute(o)
    h, ool = gen_helper(o)
    assert c.nbar == h.nbar, (c.nbar, h.nbar)
    p = Stream('P')
    e = p.e
    e('s_cmp_ge_u32 s2, 256', 's_cbranch_scc1 L_exit')
    e('s_load_dwordx16 s[4:19], s[0:1], 0', 's_load_dwordx4 s[20:23], s[0:1], 64')
    e('v_lshrrev_b32 v1, 6, v0', 's_and_b32 s68, s2, 7', 's_lshr_b32 s69, s2, 3', f'v_readfirstlane_b32 {sWAVE}, v1', 'v_and_b32 v0, 63, v0')
    e('s_lshl_b32 s70, s68, 3', 's_lshr_b32 s71, s69, 2', f's_add_u32 {sM}, s70, s71', f's_and_b32 {sNQ}, s69, 3')
    e('s_lshl_b32 s70, s68, 2', 's_lshr_b32 s71, s69, 3', f's_add_u32 {sM2}, s70, s71', f's_and_b32 {sN8}, s69, 7')
    e('s_lshl_b32 s70, s68, 5', f's_add_u32 {sG}, s70, s69', f's_and_b32 {sW4}, {sWAVE}, 3')
    e('s_waitcnt lgkmcnt(0)')
    mk_srd(p, SWS, S_WS, WS_SIZE)
    e(f's_cmp_ge_u32 {sWAVE}, 4', 's_cbranch_scc1 L_helper')
    e(f's_cmp_lg_u32 {sWAVE}, 0', 's_cbranch_scc1 L_nopf')
    e('s_getpc_b64 s[72:73]', 'L_pc:', 's_lshl_b32 s70, s69, 12', 'v_lshl_add_u32 v1, v0, 7, s70', 'v_cmp_gt_u32 vcc, L_exit-L_pc, v1', 'v_cmp_gt_u32 s[74:75], 32, v0',
      's_nop 1', 's_and_b64 vcc, vcc, s[74:75]', 's_and_saveexec_b64 s[74:75], vcc', 's_cbranch_execz L_pfdone', 'global_load_dword v255, v1, s[72:73]', 'L_pfdone:', 's_mov_b64 exec, s[74:75]', 'L_nopf:')
    errs = lint(p.l + c.l, 'C') + lint(p.l + h.l, 'H') + lint(ool.l, 'ool')
    for x in errs:
        print('LINT', x, file=sys.stderr)
    hdr = open('standalone__seq2seq_rnn_t_joint__speech.s.ref').read().split('\n')
    hdr = [l for l in hdr if l.startswith(';') and '@launch' not in l]
    out = '\n'.join(hdr[:11]) + '\n'
    out += '; @launch grid=(256,1,1) block=(512,1,1) lds=163840\n'
    out += f'''.amdgcn_target "amdgcn-amd-amdhsa--gfx950"
.text
.globl {KN}
.p2align 8
.type {KN},@function
{KN}:
'''
    out += p.text() + c.text() + '.p2align 6\nL_helper:\n' + h.text() + ool.text() + 'L_exit:\n    s_endpgm\n'
    out += f'''.section .rodata,"a"
.p2align 6
.amdhsa_kernel {KN}
  .amdhsa_next_free_vgpr 256
  .amdhsa_next_free_sgpr 96
  .amdhsa_accum_offset 256
  .amdhsa_group_segment_fixed_size 0
  .amdhsa_kernarg_size 80
  .amdhsa_user_sgpr_count 2
  .amdhsa_user_sgpr_kernarg_segment_ptr 1
  .amdhsa_system_sgpr_workgroup_id_x 1
.end_amdhsa_kernel
'''
    print(f'mfma={c.nmfma} barriers={c.nbar} lines C={len(c.l)} H={len(h.l)} ool={len(ool.l)} lint={len(errs)}', file=sys.stderr)
    return out


if __name__ == '__main__':
    o = Opt()
    outp = sys.argv[1]
    for a in sys.argv[2:]:
        k, v = a.split('=')
        setattr(o, k, int(v))
    open(outp, 'w').write(gen(o))
```

```python
import sys, struct
from stream import Stream, lint

KN = 'standalone__seq2seq_rnn_t_joint__speech_kernel'
K = 1024
OOB = 0x80000000
WS_H = 0
WS_F = 8 << 20
WS_W2F = 12 << 20
WS_WFF = 14 << 20
WS_WOF = WS_WFF + 128 * K
WS_EB = WS_WFF + 256 * K
WS_GB = WS_EB + 16 * K
WS_EBF = WS_GB + 16 * K
WS_HFL = 15 << 20
WS_FFL = WS_HFL + 256 * K
WS_DIAG = 16 << 20
WS_SIZE = 19 << 20
L_SLOT = [0, 60 * K, 92 * K]
L_ST = 28 * K
L_XB = 90 * K
L_X = [124 * K, 141 * K]
L_IMG = [124 * K, 107 * K, 90 * K, 141 * K]
L_EB = 61 * K
L_J = [0, 8 * K, 16 * K, 77 * K, 124 * K, 132 * K, 107 * K, 115 * K]
NJ = len(L_J)
ZT = [2, 0, 3, 1, 0, 2, 4, 3, 7, 4, 6, 5, 0, 6, 4, 7, 2]
T0 = sum(ZT[l] << (4 * l) for l in range(16))
T1 = sum(ZT[l + 1] << (4 * l) for l in range(16))
JOIN = 5


def fbits(x):
    return '0x%08x' % struct.unpack('<I', struct.pack('<f', x))[0]


GC1 = -2 * 0.7978845608028654 * 1.4426950408889634
GC2 = GC1 * 0.044715
TC = 2 * 1.4426950408889634


def vr(b, n=4):
    return f'v[{b}:{b + n - 1}]'


S_X, S_W1, S_W2, S_G, S_WF, S_WG, S_WO, S_OUT, S_DBG, S_WS = 4, 6, 8, 10, 12, 14, 16, 18, 20, 22
sWAVE, sW4, sM, sNQ, sM2, sN8, sG, sHW1K = 's24', 's25', 's26', 's27', 's28', 's29', 's30', 's31'
SA, SW1, SWS, SB, SD = 32, 36, 40, 44, 92


def srd(n):
    return f's[{n}:{n + 3}]'


def mk_srd(s, n, base, nrec, add=None):
    if add is None:
        s.e(f's_mov_b32 s{n}, s{base}', f's_mov_b32 s{n + 1}, s{base + 1}')
    else:
        s.e(f's_add_u32 s{n}, s{base}, {add}', f's_addc_u32 s{n + 1}, s{base + 1}, 0')
    s.e(f's_mov_b32 s{n + 2}, {nrec}', f's_mov_b32 s{n + 3}, 0x20000')


class Opt:
    diag = 0
    prio = 1
    cst = -1
    pf = 1
    pfd = 6
    st0 = 2
    stn = 1
    wfn = 4
    arr = 12
    cntp = 20
    h0p = 27
    h1p = 38
    f0p = 43
    f1p = 4
    qm = 6
    qd = 2.5
    qj = 28
    joff = 14
    serp = 1
    cw = (15, 16, 17, 18, 19, 20)
    slp = 6


def sub(sig):
    if sig < 32:
        b, r = divmod(sig, 16)
        c64, p, kh = r >> 2, (r >> 1) & 1, r & 1
        return dict(ph=1, b=b, c64=c64, p=p, kh=kh, T=8 - p, first=r == 0, last=r == 15,
                    xbuf=L_X[(sig >> 1) & 1], bank=sig & 1)
    g = sig - 32
    b, r = divmod(g, 8)
    c64, p = r >> 1, r & 1
    return dict(ph=2, b=b, c64=c64, p=p, kh=None, T=8 - p, first=r == 0, last=r == 7,
                xbuf=L_IMG[g & 3], bank=(g + 2) % 3)


def cwin(o, win):
    return win >= 30 or win in o.cw


def w1_off(k, j):
    d = sub(k)
    return (2 * j + d['p']) * 131072 + (64 * d['c64'] + 32 * d['kh']) * 512


H_XV, H_HV, H_WD = 1, 11, 21
E_SP, E_GAM, E_S = 240, 241, 242


def img_addr(e, dst, lreg, rowbase, shift, t):
    e(f's_lshl_b32 s74, {lreg}, 2', 's_lshr_b64 s[76:77], s[68:69], s74', 's_and_b32 s76, s76, 7',
      f's_lshl_b32 s74, {lreg}, 4', f's_add_u32 s74, s74, {rowbase}', 's_sub_u32 s74, s74, 7')
    e(f'v_lshl_add_u32 v{t}, v{E_S}, 1, s74', f'v_xor_b32 v{t + 1}, s76, v{E_GAM}', f'v_lshlrev_b32 v{t + 1}, 4, v{t + 1}',
      f'v_lshl_add_u32 v{dst}, v{t}, {shift}, v{t + 1}')


def gen_entry(o):
    p = Stream('P')
    e = p.e
    e('s_cmp_ge_u32 s2, 256', 's_cbranch_scc1 L_exit')
    e('s_load_dwordx4 s[4:7], s[0:1], 0', 's_load_dwordx8 s[8:15], s[0:1], 16', 's_load_dwordx8 s[16:23], s[0:1], 48')
    e('v_lshrrev_b32 v1, 6, v0', 's_and_b32 s70, s2, 7', 's_lshr_b32 s71, s2, 3', f'v_readfirstlane_b32 {sWAVE}, v1', 'v_and_b32 v0, 63, v0')
    if o.serp:
        e('s_bitcmp1_b32 s2, 0', 's_cselect_b32 s72, 0, 31', 's_xor_b32 s71, s71, s72')
    e('s_lshl_b32 s72, s70, 3', 's_lshr_b32 s73, s71, 2', f's_add_u32 {sM}, s72, s73', f's_and_b32 {sNQ}, s71, 3')
    e(f'v_lshrrev_b32 v{E_SP}, 3, v0', f'v_and_b32 v{E_GAM}, 7, v0', f's_and_b32 {sW4}, {sWAVE}, 3', f's_lshl_b32 {sHW1K}, {sW4}, 10')
    e(f's_mov_b32 s68, {T0 & 0xffffffff}', f's_mov_b32 s69, {T0 >> 32}', f's_and_b32 s78, {sW4}, 1', f'v_xor_b32 v{E_S}, s78, v{E_SP}')
    e(f's_lshr_b32 s79, {sWAVE}, 2', 's_xor_b32 s79, s79, 1', 's_lshl_b32 s75, s79, 3', f's_add_u32 s75, s75, {sW4}', f's_lshl_b32 s67, {sM}, 8')
    img_addr(e, H_XV, 's75', 's67', 9, 243)
    e('s_add_u32 s66, s75, 4')
    img_addr(e, H_XV + 1, 's66', 's67', 9, 243)
    e(f'v_and_b32 v243, 2, v{E_SP}', 's_lshl_b32 s78, s78, 2', 'v_or_b32 v243, s78, v243', f'v_xor_b32 v243, v243, v{E_GAM}',
      f's_lshl_b32 s73, {sW4}, 12', f's_lshl_b32 s74, {sNQ}, 7', 's_add_u32 s73, s73, s74',
      f'v_lshlrev_b32 v244, 9, v{E_SP}', 'v_lshl_add_u32 v244, v243, 4, v244', f'v_add_u32 v{H_WD}, s73, v244')
    e(f'v_lshlrev_b32 v245, 1, v{E_SP}', f'v_add_u32 v245, {256 - 7}, v245', f'v_xor_b32 v246, {ZT[16]}, v{E_GAM}', 'v_lshlrev_b32 v246, 4, v246',
      'v_add_u32 v243, s67, v245', f'v_lshl_add_u32 v{H_XV + 4}, v243, 9, v246', f's_lshl_b32 s74, {sWAVE}, 3', 's_mov_b64 s[76:77], 0xff', 's_lshl_b64 s[76:77], s[76:77], s74')
    e('s_lshl_b32 s75, s75, 10', 's_lshl_b32 s65, s79, 14', f's_add_u32 s65, s65, {sHW1K}', 's_lshl_b32 s64, s79, 20')
    e('s_waitcnt lgkmcnt(0)')
    mk_srd(p, SA, S_X, 8192000)
    mk_srd(p, SW1, S_W1, 1966080)
    for i in range(2):
        e(f's_add_u32 m0, s75, {L_X[0] + 4096 * i}', 's_nop 0')
        p.vmem(f'buffer_load_dwordx4 v{H_XV + i}, {srd(SA)}, 0 offen lds', ('P0', 'x'))
    e(f's_mov_b32 m0, {L_X[0] + 16384}', 's_mov_b64 exec, s[76:77]')
    p.vmem(f'buffer_load_dwordx4 v{H_XV + 4}, {srd(SA)}, 0 offen lds', ('P0', 'x'))
    e('s_mov_b64 exec, -1')
    for k in range(2):
        for j in range(4):
            e(f's_add_u32 m0, s65, {L_SLOT[k] + j * 4096}', f's_add_u32 s66, s64, {w1_off(k, j)}')
            p.vmem(f'buffer_load_dwordx4 v{H_WD}, {srd(SW1)}, s66 offen lds', ('P0' if k == 0 else 'P0b', 'w'))
    e('s_lshl_b32 s72, s70, 2', 's_lshr_b32 s73, s71, 3', f's_add_u32 {sM2}, s72, s73', f's_and_b32 {sN8}, s71, 7')
    e('s_lshl_b32 s72, s70, 5', f's_add_u32 {sG}, s72, s71')
    mk_srd(p, SWS, S_WS, WS_SIZE)
    e(f's_cmp_ge_u32 {sWAVE}, 4', 's_cbranch_scc1 L_helper')
    return p


def flag_addr(e, dst, t):
    e(f's_lshl_b32 s68, {sM}, 2', f's_add_u32 s68, s68, {sNQ}', 's_lshl_b32 s68, s68, 2', f's_add_u32 s68, s68, {sW4}', 's_lshl_b32 s68, s68, 7', f's_add_u32 s68, s68, {WS_HFL}')
    e(f's_lshl_b32 s69, {sM2}, 3', f's_add_u32 s69, s69, {sN8}', 's_lshl_b32 s69, s69, 2', f's_add_u32 s69, s69, {sW4}', 's_lshl_b32 s69, s69, 7', f's_add_u32 s69, s69, {WS_FFL}')
    e(f'v_mov_b32 v{t}, s68', f'v_mov_b32 v{t + 1}, s69', 'v_cmp_gt_u32 vcc, 2, v0', f'v_and_b32 v{t + 2}, 1, v0', 's_nop 0',
      f'v_cndmask_b32 v{t}, v{t + 1}, v{t}, vcc', f'v_lshl_add_u32 v{dst}, v{t + 2}, 17, v{t}')


V_XA1 = 1
V_XA2 = 9
V_WLO, V_WHI, V_D1, V_D2, V_W2, V_WO, V_JLO, V_JHI, V_OUT = 13, 14, 15, 16, 17, 18, 19, 20, 21
V_ACC = 24
V_Z = 56
V_Y = 88
C_XV = [248, 249, 250, 251, 252, 253, 254, 255, 116, 117]
C_WD = 118
V_WB = [120, 152, 184]
V_SP = 216
V_PK = 248
WO_BASE = [V_SP, V_WB[0], V_WB[1], V_WB[2]]


def xreg(s_):
    return V_Z + 4 * s_ if s_ < 8 else V_Y + 4 * (s_ - 8)


def gen_compute(o, p):
    s = Stream('C')
    s.vm = list(p.vm)
    ool = Stream('Cool')
    e, x = s.e, ool.e
    if o.prio:
        e('s_setprio 2')
    t = 224
    if o.pf:
        e('s_mul_i32 s55, s2, 7680', f's_mul_i32 s56, {sW4}, 1920', 's_add_u32 s55, s55, s56', f's_add_u32 s64, s{S_W1}, s55', f's_addc_u32 s65, s{S_W1 + 1}, 0')
        for i in range(15):
            e(f's_load_dword s66, s[64:65], {i * 64}')
    e('s_getpc_b64 s[72:73]', 'L_pc:', 's_lshl_b32 s55, s71, 12', f's_add_u32 s55, s55, {sHW1K}', f'v_lshl_add_u32 v{t}, v0, 7, s55', f'v_cmp_gt_u32 vcc, L_exit-L_pc, v{t}',
      'v_cmp_gt_u32 s[74:75], 8, v0', 's_nop 1', 's_and_b64 vcc, vcc, s[74:75]', 's_and_saveexec_b64 s[74:75], vcc', 's_cbranch_execz L_pfdone',
      f'global_load_dword v119, v{t}, s[72:73]', 'L_pfdone:', 's_mov_b64 exec, s[74:75]')
    e(f'v_and_b32 v{t}, 15, v0', f'v_lshrrev_b32 v{t + 1}, 4, v0', f'v_lshlrev_b32 v{V_JLO}, 4, v0')
    l16, kq = f'v{t}', f'v{t + 1}'
    e(f'v_mov_b32 v{C_XV[2]}, v{H_XV}', f'v_mov_b32 v{C_XV[3]}, v{H_XV + 1}', f'v_mov_b32 v{C_XV[4]}, v{H_XV + 4}', f'v_mov_b32 v{C_WD}, v{H_WD}')
    img_addr(e, C_XV[0], sW4, 's67', 9, t + 8)
    e(f's_add_u32 s73, {sW4}, 4')
    img_addr(e, C_XV[1], 's73', 's67', 9, t + 8)
    for i in range(5):
        e(f'v_add_u32 v{C_XV[5 + i]}, 512, v{C_XV[i]}')
    e(f's_lshl_b32 s73, {sW4}, 4', 's_mov_b64 s[76:77], 0xffff', 's_lshl_b64 s[62:63], s[76:77], s73')
    e(f's_sub_u32 s61, {sM2}, {sM}', 's_lshl_b32 s61, s61, 15')
    e(f'v_lshlrev_b32 v{t + 2}, 2, {l16}')
    e(f's_mov_b32 s48, {T0 & 0xffffffff}', f's_mov_b32 s49, {T0 >> 32}', f's_mov_b32 s50, {T1 & 0xffffffff}', f's_mov_b32 s51, {T1 >> 32}')
    e(f'v_lshrrev_b64 v[{t + 4}:{t + 5}], v{t + 2}, s[48:49]', f'v_lshrrev_b64 v[{t + 6}:{t + 7}], v{t + 2}, s[50:51]')
    e(f'v_and_b32 v{t + 4}, 7, v{t + 4}', f'v_and_b32 v{t + 6}, 7, v{t + 6}')
    e(f's_lshr_b32 s52, {sW4}, 1', f's_and_b32 s53, {sW4}, 1')
    e('s_lshl_b32 s54, s52, 2')
    for sh in range(2):
        z = f'v{t + 4 + 2 * sh}'
        e(f'v_add_u32 v{t + 8}, {sh}, {l16}', f'v_and_b32 v{t + 9}, 1, v{t + 8}', f'v_lshlrev_b32 v{t + 8}, 10, v{t + 8}',
          f'v_add_u32 v{t + 8}, {L_XB}, v{t + 8}')
        for ee in range(2):
            e(f'v_xor_b32 v{t + 10}, {ee}, v{t + 9}', f'v_lshl_add_u32 v{t + 10}, v{t + 10}, 7, v{t + 8}')
            for kh in range(2):
                e(f'v_or_b32 v{t + 11}, {4 * kh}, {kq}', f'v_xor_b32 v{t + 11}, v{t + 11}, {z}',
                  f'v_lshl_add_u32 v{V_XA1 + sh * 4 + ee * 2 + kh}, v{t + 11}, 4, v{t + 10}')
            e(f'v_or_b32 v{t + 11}, s54, {kq}', f'v_xor_b32 v{t + 11}, v{t + 11}, {z}',
              f'v_lshl_add_u32 v{V_XA2 + sh * 2 + ee}, v{t + 11}, 4, v{t + 10}')
    e(f'v_lshrrev_b32 v{t + 8}, 2, {l16}', f'v_and_b32 v{t + 9}, 3, {l16}')
    e(f'v_and_b32 v{t + 10}, 2, v{t + 8}', f'v_and_b32 v{t + 11}, 1, {kq}', f'v_lshl_add_u32 v{t + 10}, v{t + 11}, 2, v{t + 10}')
    e(f's_lshl_b32 s55, {sW4}, 1', f'v_lshrrev_b32 v{t + 11}, 1, v{t + 9}', f'v_add_u32 v{t + 11}, s55, v{t + 11}',
      f'v_xor_b32 v{t + 11}, v{t + 11}, v{t + 10}')
    e(f'v_lshlrev_b32 v{t + 12}, 10, {kq}', f'v_lshl_add_u32 v{t + 12}, v{t + 8}, 7, v{t + 12}', f'v_lshl_add_u32 v{t + 12}, v{t + 11}, 4, v{t + 12}',
      f'v_and_b32 v{t + 9}, 1, v{t + 9}', f'v_lshl_add_u32 v{V_WLO}, v{t + 9}, 3, v{t + 12}', f'v_add_u32 v{V_WHI}, {L_SLOT[1]}, v{V_WLO}')
    if o.pf:
        for i in range(15, 30):
            e(f's_load_dword s66, s[64:65], {i * 64}')
    e(f's_lshl_b32 s55, {sW4}, 2', f'v_add_u32 v{t + 8}, s55, {kq}', f'v_xor_b32 v{t + 8}, v{t + 8}, {l16}',
      f'v_lshlrev_b32 v{t + 9}, 8, {l16}', f'v_lshl_add_u32 v{V_D1}, v{t + 8}, 4, v{t + 9}')
    e('s_lshl_b32 s55, s53, 2', f'v_add_u32 v{t + 8}, s55, {kq}', f'v_and_b32 v{t + 9}, 7, {l16}', f'v_xor_b32 v{t + 8}, v{t + 8}, v{t + 9}',
      f'v_lshlrev_b32 v{t + 9}, 7, {l16}', f'v_lshl_add_u32 v{t + 8}, v{t + 8}, 4, v{t + 9}', 's_mul_i32 s55, s52, 16640', f'v_add_u32 v{V_D2}, s55, v{t + 8}')
    e(f'v_add_u32 v{V_JHI}, {77 * K}, v{V_JLO}')
    e(f's_lshl_b32 s55, {sN8}, 1', 's_add_u32 s55, s55, s53', 's_lshl_b32 s55, s55, 3', 's_add_u32 s55, s55, s52', 's_lshl_b32 s55, s55, 14',
      f's_add_u32 s55, s55, {WS_W2F}', f'v_add_u32 v{V_W2}, s55, v{V_JLO}')
    e(f's_lshl_b32 s55, {sW4}, 15', f's_add_u32 s55, s55, {WS_WOF}', f'v_add_u32 v{V_WO}, s55, v{V_JLO}')
    e(f's_lshl_b32 s55, {sM2}, 19', f's_lshl_b32 s56, {sW4}, 7', 's_add_u32 s55, s55, s56', f's_lshl_b32 s56, {sN8}, 12', 's_add_u32 s55, s55, s56')
    e(f'v_lshlrev_b32 v{t + 8}, 17, {kq}', f'v_lshl_add_u32 v{t + 8}, {l16}, 3, v{t + 8}', f'v_add_u32 v{V_OUT}, s55, v{t + 8}')
    for r in range(4):
        e(f's_mov_b32 s{56 + r}, {r * 32768}')

    def rd_x(sig, s_):
        d = sub(sig)
        sh, sp = divmod(s_, 8)
        ee = sp & 1
        a = V_XA1 + sh * 4 + ee * 2 + d['kh'] if d['ph'] == 1 else V_XA2 + sh * 2 + ee
        s.lds(f'ds_read_b128 {vr(xreg(s_))}, v{a} offset:{d["xbuf"] - L_XB + (sp - ee) * 128}', ('X', sig, s_))

    def rd_w(k, j, h):
        slot = L_SLOT[k % 3]
        a, off = (V_WLO, 0) if k % 3 == 0 else (V_WHI, slot - L_SLOT[1])
        r = V_WB[sub(k)['bank']] + 4 * j + 2 * h
        s.lds(f'ds_read_b64_tr_b16 {vr(r, 2)}, v{a} offset:{off + j * 4096 + h * 512}', ('W', k, j))

    def ld_w2(k, j):
        d = sub(k)
        if j % 4 == 0 or j == 2:
            e(f's_mov_b32 s48, {(d["c64"] * 32 + d["p"] * 8 + (j & 4)) * 1024}')
        s.vmem(f'buffer_load_dwordx4 {vr(V_WB[d["bank"]] + 4 * j)}, v{V_W2}, {srd(SWS)}, s48 offen offset:{(j % 4) * 1024} sc1', ('W', k, j))

    def ld_wo(tau, ka):
        if ka % 4 == 0 or ka == 2:
            e(f's_mov_b32 s49, {(tau * 8 + (ka & 4)) * 1024}')
        s.vmem(f'buffer_load_dwordx4 {vr(WO_BASE[tau] + 4 * ka)}, v{V_WO}, {srd(SWS)}, s49 offen offset:{(ka % 4) * 1024} sc1', ('O', tau, ka))

    def dump(sig, b):
        a, off = (V_D1, L_ST + b * 4096) if sub(sig)['ph'] == 1 else (V_D2, L_ST + b * 2080)
        s.lds(f'ds_write_b128 v{a}, {vr(V_ACC + 4 * b)} offset:{off}', ('D', sig, b))

    def jreg(k, ka):
        return (V_Z if k % 2 == 0 else V_Y) + 4 * ka

    def rd_j(k, ka):
        sl = L_J[k % NJ]
        a, off = (V_JLO, sl) if sl < 60 * K else (V_JHI, sl - 77 * K)
        s.lds(f'ds_read_b128 {vr(jreg(k, ka))}, v{a} offset:{off + ka * 1024}', ('A', k, ka))

    def dma_img(buf, p_, soff, flags, tag, pre):
        def item(i):
            def a():
                if i == 0 and pre:
                    pre()
                e(f's_add_u32 m0, {sHW1K}, {buf + 4096 * i}' if i < 4 else f's_mov_b32 m0, {buf + 16384}')
                if soff and i == 0:
                    e(f's_mov_b32 s52, {soff}')

            def b():
                if i == 4:
                    e('s_mov_b64 exec, s[62:63]')
                s.vmem(f'buffer_load_dwordx4 v{C_XV[5 * p_ + i]}, {srd(SA)}, {"s52" if soff else "0"} offen{flags} lds', tag)
                if i == 4:
                    e('s_mov_b64 exec, -1')
            return a, b
        return [item(i) for i in range(5)]

    def dma_x(st, win):
        b, c64, p_ = st >> 3, (st >> 1) & 3, st & 1
        pre = (lambda: mk_srd(s, SA, S_X, 8192000, add=8192000)) if b else None
        return dma_img(L_X[st & 1], p_, c64 * 128, '', ('dma', win), pre)

    def dma_h(g):
        d = sub(32 + g)
        off = WS_H + (d['b'] * 4 + d['c64']) * (1 << 20)
        pre = (lambda: mk_srd(s, SA, S_WS, 1024000, add=off)) if d['p'] == 0 else None
        return dma_img(d['xbuf'], d['p'], 0, ' sc1', ('img', g), pre)

    def dma_w(k, win):
        def item(j):
            return (lambda: e(f's_add_u32 m0, {sHW1K}, {L_SLOT[k % 3] + j * 4096}', f's_mov_b32 s51, {w1_off(k, j)}'),
                    lambda: s.vmem(f'buffer_load_dwordx4 v{C_WD}, {srd(SW1)}, s51 offen lds', ('dma', win)))
        return [item(j) for j in range(sub(k)['T'])]

    def window(win):
        dm = []
        if win % 2 == 0 and 2 <= win // 2 + 1 < 16:
            dm += dma_x(win // 2 + 1, win)
        if 3 <= win + 2 < 32:
            dm += dma_w(win + 2, win)
        imgs = {30: [0, 1], 32: [2, 3]}.get(win, [])
        if 33 <= win <= 44:
            imgs = [win - 29] if (win - 29 < 8 or win > o.h1p + 1) else ([] if win <= o.h1p else list(range(8, win - 28)))
        for g in imgs:
            dm += dma_h(g)
        return dm

    def bpos_of(sig):
        return 4 if (sub(sig)['last'] and sub(sig)['ph'] == 2) else 3

    def win_slots(win):
        dm = window(win)
        if not dm or not cwin(o, win):
            return []
        T0_, T1_ = sub(win - 1)['T'], sub(win)['T']
        lo = (bpos_of(win - 1) + 1) * T0_
        slots = [(win - 1, i) for i in range(lo, 8 * T0_)] + [(win, i) for i in range(0, (bpos_of(win) + 1) * T1_)]
        span = len(slots) - 6 if win < 31 else (3 * T0_ - 2 if len(dm) <= 5 else len(slots) - 10)
        out = []
        for n_, (a, b) in enumerate(dm):
            i = (n_ * span) // len(dm)
            out.append((slots[i], a))
            out.append((slots[i + 1], b))
        return out
    dsl = {}
    for win in range(1, 45):
        for (sg, i), f in win_slots(win):
            dsl.setdefault(sg, []).append((i, f))

    o.cnames = []
    cp = []

    def cflush():
        for i, r in cp:
            e(f'v_writelane_b32 v{(22, 23, 0)[i // 64]}, s{r}, {i % 64}')
        cp.clear()

    def cstamp(name):
        r = 96 + 2 * len(cp)
        e(f's_memtime s[{r}:{r + 1}]')
        cp.append((len(o.cnames), r))
        o.cnames.append(name)

    def bar(name):
        if o.diag:
            s.drain(vm=False)
            cflush()
            cstamp('a' + name)
        s.barrier(name)
        if o.diag:
            cstamp('r' + name)

    e('s_cmp_eq_u32 s2, 255', 's_cbranch_scc1 L_c_ge')
    x('L_c_ge:', 's_waitcnt vmcnt(0) lgkmcnt(0)', 's_branch L_c_join')
    e('s_waitcnt lgkmcnt(0)')
    s.wait(vm=lambda t_: t_[0] == 'P0')
    bar('P0')
    for j in range(8):
        rd_w(0, j, 0)
        rd_w(0, j, 1)
        rd_x(0, j)
    for sig in range(48):
        d = sub(sig)
        T = d['T']
        s.c(f'--- sigma {sig} {d}')
        pos = {}
        add = lambda b, j, f: pos.setdefault((b, j), []).append(f)
        addi = lambda i, f: add(i // T, i % T, f)
        for i, s_ in enumerate(range(8, T + 7)):
            addi(3 * i, lambda s_=s_: rd_x(sig, s_))
        nz = (lambda k_: rd_x(sig + 1, k_)) if sig < 47 else (lambda k_: rd_j(0, k_))
        if sig + 1 < 32:
            i = 4 * T
            for j in range(8):
                if j < sub(sig + 1)['T']:
                    addi(i, lambda j=j: rd_w(sig + 1, j, 0))
                    addi(i + 1, lambda j=j: rd_w(sig + 1, j, 1))
                    i += 2
                addi(max(i, j * T + 1), lambda j=j: nz(j))
                i += 1
        else:
            for k_, (b, j) in enumerate([(4, 0), (4, 2), (4, 4), (5, 0), (5, 2), (5, 4), (6, 2), (7, 1)] if not (d['last'] and d['ph'] == 2) else
                                        [(5, 0), (5, 1), (5, 2), (5, 4), (6, 0), (6, 2), (6, 4), (7, 1)]):
                add(b, j, lambda k_=k_: nz(k_))

        def bankload(k, j):
            if k < 48:
                return (lambda: ld_w2(k, j)) if j < sub(k)['T'] else None
            return lambda: ld_wo(k - 47, j)
        if sig >= 30:
            for j in range(8):
                if j >= 2 or sig == 30:
                    f = bankload(sig + 2, j)
                    if f:
                        addi((j if sig == 30 else j - 2) * (3 if sig == 30 else (5 if T == 8 else 4)) + 1, f)
            for j in range(8 if sig == 47 else 2):
                p_ = j if sig == 47 else 2 + 3 * j
                if p_ < T:
                    add(7, p_, bankload(sig + 3, j))
        if sig in (23, 25, 27, 29):
            add(2, 1, lambda: ld_wo(0, sig - 23))
            add(3, 1, lambda: ld_wo(0, sig - 22))
        for i, f in dsl.get(sig, []):
            addi(i, f)
        if sig == 29:
            ops = []
            for i in range(5):
                r_ = C_XV[i]
                ops += [f'v_and_b32 v119, 0x1ff, v{r_}', f'v_ashrrev_i32 v{r_}, 9, v{r_}', f'v_lshl_add_u32 v{r_}, v{r_}, 7, v119', f'v_add_u32 v{r_}, s61, v{r_}',
                        f'v_add_u32 v{C_XV[5 + i]}, 128, v{r_}']
            for i, op in enumerate(ops):
                addi(2 + i, lambda op=op: e(op))
        if sig == 45:
            add(1, 0, lambda: mk_srd(s, SA, S_OUT, 16384000))
            add(2, 0, lambda: mk_srd(s, SW1, S_OUT, 16384000, add=16384000))
        bpos = bpos_of(sig)
        if d['last']:
            if d['ph'] == 1:
                for b, j in ((0, 1), (1, 3)):
                    add(3, j, lambda b=b: dump(sig, b))
            else:
                add(2, 1, lambda: dump(sig, 0))
                add(3, 1, lambda: dump(sig, 1))
            for b in range(2, 7):
                add(b + 1, T - 1, lambda b=b: (e('s_nop 0'), dump(sig, b)))
        if d['first'] and sig > 0:
            add(0, T - 1, lambda: dump(sig - 1, 7))
        for b in range(8):
            if o.cst >= 0 and sig in (o.cst, o.cst + 1):
                r_ = 64 + 2 * (8 * (sig - o.cst) + b)
                e(f's_memtime s[{r_}:{r_ + 1}]')
            for j in range(T):
                if d['ph'] == 1:
                    s.wait(lg=[('W', sig, j), ('X', sig, b + j)])
                else:
                    s.wait(vm=[('W', sig, j)], lg=[('X', sig, b + j)])
                acc = vr(V_ACC + 4 * b)
                cin = '0' if (d['first'] and j == 0) else acc
                e(f'v_mfma_f32_16x16x32_bf16 {acc}, {vr(V_WB[d["bank"]] + 4 * j)}, {vr(xreg(b + j))}, {cin}')
                s.nmfma += 1
                for f in pos.get((b, j), []):
                    f()
            if b == bpos:
                if sig == 0:
                    vmp = lambda t_: t_[0] == 'P0b'
                else:
                    vmp = lambda t_: (t_[0] == 'dma' and t_[1] < sig) or t_ == ('img', sig - 31)
                s.wait(vm=vmp, lg=lambda t_: True)
                bar(f'B{sig}')
                if sig == JOIN:
                    e('L_c_join:')
    ld_wo(3, 7)
    e('s_nop 6')
    dump(47, 7)

    def epi(k, r):
        a0 = V_ACC + 16 * (k % 2)
        return [lambda: e(f'v_cvt_pk_bf16_f32 v{V_PK + 2 * r}, v{a0 + r}, v{a0 + 4 + r}'),
                lambda: e(f'v_cvt_pk_bf16_f32 v{V_PK + 2 * r + 1}, v{a0 + 8 + r}, v{a0 + 12 + r}'),
                lambda: s.vmem(f'buffer_store_dwordx2 {vr(V_PK + 2 * r, 2)}, v{V_OUT}, {srd(SW1 if k // 8 else SA)}, s{56 + r} offen offset:{(k % 8) * 512} sc1', ('S', k, r))]
    for k in range(16):
        s.c(f'--- joint step {k}')
        if k < 15:
            s.wait(lg=lambda t_: True)
            bar(f'J{k}')
        pos = {}
        if k < 15:
            for ka in range(8):
                pos.setdefault(2 * ka, []).append(lambda ka=ka: rd_j(k + 1, ka))
        if k > 0:
            fl = [f for r in range(4) for f in epi(k - 1, r)]
            for i, f in enumerate(fl):
                pos.setdefault(9 + (3 * i) // 2, []).append(f)
        for tau in range(4):
            if o.cst >= 48 and 0 <= k - (o.cst - 48) < 4:
                r_ = 64 + 2 * (4 * (k - (o.cst - 48)) + tau)
                e(f's_memtime s[{r_}:{r_ + 1}]')
            for ka in range(8):
                s.wait(vm=[('O', tau, ka)], lg=[('A', k, ka)])
                acc = vr(V_ACC + 16 * (k % 2) + 4 * tau)
                e(f'v_mfma_f32_16x16x32_bf16 {acc}, {vr(jreg(k, ka))}, {vr(WO_BASE[tau] + 4 * ka)}, {"0" if ka == 0 else acc}')
                s.nmfma += 1
                for f in pos.get(tau * 8 + ka, []):
                    f()
    e('s_nop 7')
    for r in range(4):
        for f in epi(15, r):
            f()
    if o.diag:
        e('s_memtime s[48:49]', 's_waitcnt vmcnt(0)', 's_memtime s[50:51]', 's_waitcnt lgkmcnt(0)', 'v_mov_b32 v1, 0', 's_nop 1')
        cflush()
        if o.cst >= 0:
            for i in range(16):
                e(f'v_writelane_b32 v1, s{64 + 2 * i}, {i}')
        e('v_writelane_b32 v1, s48, 16', 'v_writelane_b32 v1, s50, 17')
        e(f's_lshl_b32 s48, s2, 2', f's_add_u32 s48, s48, {sW4}', 's_lshl_b32 s48, s48, 11', f's_add_u32 s48, s48, {WS_DIAG + 768}', f'v_lshrrev_b32 v2, 2, v{V_JLO}')
        for i, r in enumerate((1, 22, 23, 0)):
            e(f'buffer_store_dword v{r}, v2, {srd(SWS)}, s48 offen offset:{i * 256}')
    e('s_endpgm')
    return s, ool


H_S1, H_HS, H_S2, H_L16, H_FLAG, H_HP, H_FP, H_C2, H_EB, H_TMP, H_ONE, H_JHI, H_ZERO, H_CP = 22, 26, 27, 31, 32, 33, 34, 35, 36, 37, 38, 39, 40, 41
H_STAMP = 42
H_PV = 45
H_JH2 = 46
H_ARR = 47
H_D, H_T, H_B, H_EA, H_WF = 48, 80, 96, 112, 128
H_EAB = [112, 2]
H_MX = 18
sGC1, sSLOW, sGEF, sSPIN = 's49', ('s52', 's79'), 's53', 's54'
sHPM = 's[56:57]'
sEX16 = 's[58:59]'
sRET = 's[60:61]'
sPM = 's[62:63]'
sFOFF = 's65'
sPD, sPT = 's64', 's48'
sBU = 's66'
SPIN_LIMIT = 1 << 15


def gen_helper(o, p):
    s = Stream('H')
    s.vm = list(p.vm)
    e = s.e
    ool = Stream('Hool')
    x = ool.e
    nstamp = [0]
    cur = ['P0']
    pend = []

    def flush_stamps():
        if pend:
            s.drain(vm=False)
            for i, r in pend:
                e(f'v_writelane_b32 v{H_STAMP + i // 64}, s{r}, {i % 64}')
            pend.clear()

    def stamp(name, real=False):
        if o.diag and nstamp[0] < 192:
            i = nstamp[0]
            o.names.append(name)
            if len(pend) >= 6:
                flush_stamps()
            r = 80 + 2 * len(pend)
            e(f's_memrealtime s[{r}:{r + 1}]' if real else f's_memtime s[{r}:{r + 1}]')
            pend.append((i, r))
            nstamp[0] += 1

    def bar(name, vmp=None, lgp=None):
        s.wait(vm=vmp or (lambda t_: t_[0] != cur[0]), lg=lgp or (lambda t_: True))
        s.barrier(name)

    def vm(line, kind):
        s.vmem(line, (cur[0], kind))

    o.names = []
    stamp('rt0', True)
    stamp('t0')

    def dma_img(buf, av, soff, flags, kind, pre, idx=range(5)):
        def one(i):
            if i == 0 and pre:
                pre()
            if i < 4:
                e(f's_add_u32 m0, {sHW1K}, {buf + 4096 * i}')
                e(f's_mov_b32 s68, {soff}' if soff else 's_nop 0')
            else:
                e(f's_mov_b32 m0, {buf + 16384}', f's_mov_b64 exec, {sEX16}')
                if soff:
                    e(f's_mov_b32 s68, {soff}')
            vm(f'buffer_load_dwordx4 v{av + i}, {srd(SA)}, {"s68" if soff else "0"} offen{flags} lds', kind)
            if i == 4:
                e('s_mov_b64 exec, -1')
        return [lambda i=i: one(i) for i in idx]

    def dma_x(st, idx=range(5)):
        b, c64, p_ = st >> 3, (st >> 1) & 3, st & 1
        pre = (lambda: mk_srd(s, SA, S_X, 8192000, add=8192000)) if st == 8 else None
        return dma_img(L_X[st & 1], H_XV + 5 * p_, c64 * 128, '', 'x', pre, idx)

    def dma_w(k):
        def one(j):
            e(f's_add_u32 m0, {sHW1K}, {L_SLOT[k % 3] + j * 4096}', f's_mov_b32 s68, {w1_off(k, j)}')
            vm(f'buffer_load_dwordx4 v{H_WD}, {srd(SW1)}, s68 offen lds', 'w')
        return [lambda j=j: one(j) for j in range(sub(k)['T'])]

    def now(fs):
        for f in fs:
            f()

    def pf_x(st, half):
        b, c64, p_ = st >> 3, (st >> 1) & 3, st & 1
        for i in (range(0, 5) if half == 0 else range(5, 9)):
            for hh in range(2):
                e(f's_load_dword s78, s[{74 + 2 * b}:{75 + 2 * b}], {i * 1024 + p_ * 512 + c64 * 128 + hh * 64}')

    t = 224
    sp, gam = f'v{E_SP}', f'v{E_GAM}'
    e(f's_lshl_b32 s73, {sW4}, 4', 's_mov_b64 s[76:77], 0xffff', f's_lshl_b64 {sEX16}, s[76:77], s73')
    cur[0] = 'P1'
    now(dma_w(2))
    e(f's_mov_b32 s68, {T0 & 0xffffffff}', f's_mov_b32 s69, {T0 >> 32}')
    for i in range(2, 4):
        e(f's_add_u32 s73, {sW4}, {4 * i}')
        img_addr(e, H_XV + i, 's73', 's67', 9, t + 3)
    for i in range(5):
        e(f'v_add_u32 v{H_XV + 5 + i}, 512, v{H_XV + i}')
    now(dma_x(1))
    stamp('x_issued')
    e(f's_lshl_b32 s68, {sNQ}, 2', f's_add_u32 s68, s68, {sW4}', 's_mul_i32 s68, s68, 18', 's_add_u32 s68, s68, s67', 's_sub_u32 s68, s68, 7',
      's_max_i32 s68, s68, 0', 's_min_i32 s68, s68, 15982', 's_lshl_b32 s68, s68, 9', f's_add_u32 s74, s{S_X}, s68', f's_addc_u32 s75, s{S_X + 1}, 0',
      's_add_u32 s76, s74, 8192000', 's_addc_u32 s77, s75, 0')
    if o.pf:
        pf_x(2, 0)
    l16, kq = f'v{t + 6}', f'v{t + 7}'
    e(f'v_and_b32 {l16}, 15, v0', f'v_lshrrev_b32 {kq}, 4, v0', f'v_lshlrev_b32 v{H_L16}, 4, v0')
    e(f'v_mov_b32 v{H_C2}, {fbits(GC2)}', f's_mov_b32 {sGC1}, {fbits(GC1)}', 's_mov_b32 s50, 0x05040100', 's_mov_b32 s51, 0x07060302')
    e(f'v_mov_b32 v{H_ONE}, 1', f'v_mov_b32 v{H_ZERO}, 0')
    flag_addr(e, H_FLAG, t + 8)
    mk_srd(s, SD, S_DBG, 256)
    cur[0] = 'P2'
    e(f's_lshl_b32 s68, s2, 2', f's_add_u32 s68, s68, {sW4}', f'v_lshlrev_b32 v{t + 8}, 3, {l16}')
    mk_srd(s, SB, S_W2, 1966080)
    e('s_cmp_lt_u32 s68, 480', 's_cbranch_scc1 L_prep_w2', 's_cmp_lt_u32 s68, 544', 's_cbranch_scc1 L_prep_fo')
    e(f's_mov_b32 {sPD}, {OOB}', f's_mov_b32 {sPT}, 0', f'v_mov_b32 v{t + 9}, {OOB}', 's_mov_b32 s70, 0', 's_mov_b32 s71, 0', 's_mov_b32 s72, 0', 's_mov_b32 s73, 0')
    e('L_prep_done:')
    x('L_prep_w2:')
    x('s_lshr_b32 s69, s68, 5', 's_lshr_b32 s70, s68, 2', 's_and_b32 s70, s70, 7', 's_and_b32 s55, s68, 3')
    x('s_lshl_b32 s72, s55, 5', 's_add_u32 s72, s72, s70', 's_lshl_b32 s72, s72, 4', 's_and_b32 s73, s69, 1', 's_lshl_b32 s73, s73, 3', 's_add_u32 s72, s72, s73',
      's_lshr_b32 s73, s69, 1', 's_add_u32 s72, s72, s73', 's_lshl_b32 s72, s72, 10', f's_add_u32 {sPD}, s72, {WS_W2F}', f's_mov_b32 {sPT}, 131072')
    x('s_lshl_b32 s72, s69, 17', 's_lshl_b32 s73, s70, 14', 's_add_u32 s72, s72, s73', 's_lshl_b32 s73, s55, 7', 's_add_u32 s70, s72, s73')
    x(f'v_lshl_add_u32 v{t + 9}, {kq}, 12, v{t + 8}', 's_mov_b32 s71, 512', 's_mov_b32 s72, 2048', 's_branch L_prep_done')
    x('L_prep_fo:')
    x('s_cmp_lt_u32 s68, 512', f's_cselect_b32 s{SB}, s{S_WF}, s{S_WO}', f's_cselect_b32 s{SB + 1}, s{S_WF + 1}, s{S_WO + 1}', f's_mov_b32 s{SB + 2}, 131072')
    x('s_sub_u32 s69, s68, 480', 's_and_b32 s70, s69, 7', 's_lshr_b32 s55, s69, 3')
    x('s_lshl_b32 s72, s55, 5', 's_add_u32 s72, s72, s70', 's_lshl_b32 s72, s72, 10', f's_add_u32 {sPD}, s72, {WS_WFF}', f's_mov_b32 {sPT}, 8192')
    x('s_lshr_b32 s72, s70, 1', 's_lshl_b32 s72, s72, 15', 's_and_b32 s73, s70, 1', 's_lshl_b32 s73, s73, 10', 's_add_u32 s72, s72, s73',
      's_and_b32 s73, s55, 3', 's_lshl_b32 s73, s73, 7', 's_add_u32 s70, s72, s73')
    x(f'v_lshl_add_u32 v{t + 9}, {kq}, 13, v{t + 8}', 's_mov_b32 s71, 2048', 's_mov_b32 s72, 512', 's_branch L_prep_done')
    for jj in range(8):
        if jj == 4:
            e('s_add_u32 s70, s70, s72')
        e('s_mov_b32 s73, s70' if jj % 4 == 0 else 's_add_u32 s73, s73, s71')
        vm(f'buffer_load_dwordx2 {vr(H_D + 2 * jj, 2)}, v{t + 9}, {srd(SB)}, s73 offen', 'pin')
    e(f'v_or_b32 v{t + 8}, {sW4}, v0', f'v_cmp_eq_u32 vcc, 0, v{t + 8}', f'v_mov_b32 v{t + 9}, {OOB}', 's_nop 0', f'v_cndmask_b32 v{H_ARR}, v{t + 9}, v{t + 8}, vcc')
    for i in range(4):
        e(f'v_mov_b32 v{H_B + i}, -1')

    def resets(st_, tr):
        def fl():
            st_.e('s_mov_b64 exec, 3')
            tr(f'buffer_store_dword v{H_ZERO}, v{H_FLAG}, {srd(SWS)}, 0 offen sc1')
            st_.e('s_mov_b64 exec, -1')

        def ft(i):
            st_.e(f's_lshl_b32 s68, {sW4}, 20', f's_lshl_b32 s69, {sG}, 10', 's_add_u32 s68, s68, s69', f's_add_u32 s68, s68, {WS_F + i * 256 * K}')
            tr(f'buffer_store_dwordx4 {vr(H_B)}, v{H_L16}, {srd(SWS)}, s68 offen sc1')
        return [fl] + [lambda i=i: ft(i) for i in range(4)]

    def arrive(st_, tr):
        tr(f'buffer_atomic_add v{H_ONE}, v{H_ARR}, {srd(SD)}, 0 offen sc1')

    def prep_b(tau):
        s.wait(vm=lambda t_: t_[1] == 'pin')
        for m_ in range(4):
            e(f'v_perm_b32 v{H_T + 4 * tau + m_}, v{H_D + 4 * m_ + 2 + (tau >> 1)}, v{H_D + 4 * m_ + (tau >> 1)}, {"s51" if tau & 1 else "s50"}')
        vm(f'buffer_store_dwordx4 {vr(H_T + 4 * tau)}, v{H_L16}, {srd(SWS)}, {sPD} offen sc1', 'pst')
        e(f's_add_u32 {sPD}, {sPD}, {sPT}')
    c8, row8 = gam, sp
    e(f's_and_b32 s70, {sW4}, 1', 's_lshl_b32 s71, s70, 3', f's_lshr_b32 s72, {sW4}, 1')
    for hh in range(2):
        e(f'v_lshlrev_b32 v{t + 9}, 1, {c8}', f'v_or_b32 v{t + 9}, {hh}, v{t + 9}', f'v_or_b32 v{t + 10}, s71, {row8}',
          f'v_xor_b32 v{t + 9}, v{t + 9}, v{t + 10}', f'v_lshlrev_b32 v{t + 10}, 8, v{t + 10}', f'v_lshl_add_u32 v{t + 9}, v{t + 9}, 4, v{t + 10}',
          's_lshl_b32 s68, s72, 12', f'v_add_u32 v{H_S1 + hh}, s68, v{t + 9}')
    e(f's_lshl_b32 s68, {sM}, 14', 's_lshl_b32 s69, s72, 7', 's_add_u32 s68, s68, s69', 's_lshl_b32 s69, s70, 13', 's_add_u32 s68, s68, s69',
      f'v_lshlrev_b32 v{t + 9}, 10, {row8}', f'v_lshl_add_u32 v{t + 9}, {c8}, 4, v{t + 9}', f'v_add_u32 v{H_HS}, s68, v{t + 9}')
    e(f's_mul_i32 s68, {sW4}, 2080', f'v_and_b32 v{t + 12}, 7, {l16}', f'v_lshl_add_u32 v{t + 11}, {l16}, 7, s68')
    for nh in range(2):
        e(f'v_or_b32 v{t + 13}, {4 * nh}, {kq}', f'v_xor_b32 v{t + 13}, v{t + 13}, v{t + 12}', f'v_lshl_add_u32 v{H_S2 + nh}, v{t + 13}, 4, v{t + 11}')
    e(f's_cmp_eq_u32 {sW4}, 0', f's_cselect_b64 {sPM}, -1, 0', f's_cselect_b32 s71, 0, {OOB}', f'v_mov_b32 v{H_CP}, s71')
    e(f's_lshl_b32 s68, {sM2}, 1', 's_sub_u32 s68, s68, 1', f'v_add_u32 v{t + 9}, s68, {kq}', f'v_cmp_gt_u32 vcc, 64, v{t + 9}',
      f'v_lshlrev_b32 v{t + 9}, 11, v{t + 9}', f'v_lshl_add_u32 v{t + 9}, {l16}, 7, v{t + 9}', f's_add_u32 s68, s71, {WS_HFL}', f'v_add_u32 v{H_HP}, s68, v{t + 9}',
      f's_and_b64 {sHPM}, vcc, {sPM}')
    e(f's_lshl_b32 s68, {sW4}, 8', f's_add_u32 s68, s68, {L_EB}', f'v_lshl_add_u32 v{H_EB}, {kq}, 6, s68')
    e(f's_lshl_b32 s68, {sW4}, 11', f'v_add_u32 v{H_JHI}, s68, v{H_L16}')
    e(f'v_add_u32 v{H_JH2}, {77 * K}, v{H_JHI}')
    e('s_cmp_eq_u32 s2, 255', 's_cbranch_scc1 L_h_ge')

    x('L_h_ge:')
    now(resets(ool, x))
    mk_srd(ool, SB, S_G, 8192)
    x(f'v_lshlrev_b32 v{H_TMP}, 9, {l16}', f'v_lshl_add_u32 v{H_TMP}, {kq}, 4, v{H_TMP}')
    for ks in range(8):
        x(f'buffer_load_dwordx4 {vr(H_D + 4 * ks)}, v{H_TMP}, {srd(SB)}, 0 offen offset:{ks * 64}')
    x(f'v_lshlrev_b32 v{H_TMP}, 3, {l16}', f'v_lshl_add_u32 v{H_TMP}, {kq}, 12, v{H_TMP}')
    mk_srd(ool, SB, S_WG, 131072)
    x(f's_lshl_b32 s69, {sW4}, 7')
    for ks in range(8):
        x(f's_add_u32 s68, s69, {ks * 16384}')
        for jj in range(8):
            x(f'buffer_load_dwordx2 {vr(H_WF + 16 * ks + 2 * jj, 2)}, v{H_TMP}, {srd(SB)}, s68 offen offset:{jj * 512}')
    x('s_waitcnt vmcnt(0)')
    for ks in range(8):
        src = H_WF + 16 * ks
        for tau in range(4):
            for m_ in range(4):
                x(f'v_perm_b32 v{H_T + 4 * tau + m_}, v{src + 4 * m_ + 2 + (tau >> 1)}, v{src + 4 * m_ + (tau >> 1)}, {"s51" if tau & 1 else "s50"}')
        x('s_nop 1')
        for tau in range(4):
            acc = vr(H_B + 4 * tau)
            x(f'v_mfma_f32_16x16x32_bf16 {acc}, {vr(H_T + 4 * tau)}, {vr(H_D + 4 * ks)}, {"0" if ks == 0 else acc}')
    x('s_nop 7', f's_mov_b32 s68, {fbits(TC)}')
    for i_ in range(16):
        x(f'v_mul_f32 v{H_B + i_}, s68, v{H_B + i_}')
    for i_ in range(16):
        x(f'v_exp_f32 v{H_EA + i_}, v{H_B + i_}')
    x(f'v_max3_f32 v{H_T}, |v{H_B}|, |v{H_B + 1}|, 0')
    for i_ in range(2, 16, 2):
        x(f'v_max3_f32 v{H_T}, |v{H_B + i_}|, |v{H_B + i_ + 1}|, v{H_T}')
    x(f'v_cmp_lt_f32 vcc, {fbits(126.0)}, v{H_T}')
    x(f'v_and_b32 v{H_T + 1}, 15, v0', f'v_lshrrev_b32 v{H_T + 2}, 4, v0', f'v_lshlrev_b32 v{H_T + 1}, 10, v{H_T + 1}',
      f'v_lshl_add_u32 v{H_T + 1}, v{H_T + 2}, 6, v{H_T + 1}', f's_lshl_b32 s68, {sW4}, 8', f's_add_u32 s68, s68, {WS_EB}', f's_add_u32 s69, s68, {WS_GB - WS_EB}')
    for tau in range(4):
        x(f'buffer_store_dwordx4 {vr(H_EA + 4 * tau)}, v{H_T + 1}, {srd(SWS)}, s68 offen offset:{tau * 16} sc1')
        x(f'buffer_store_dwordx4 {vr(H_B + 4 * tau)}, v{H_T + 1}, {srd(SWS)}, s69 offen offset:{tau * 16} sc1')
    x('s_cmp_lg_u64 vcc, 0', 's_cselect_b32 s70, 1, 0', f'v_mov_b32 v{H_T + 3}, s70', f's_lshl_b32 s68, {sW4}, 2', f's_add_u32 s68, s68, {WS_EBF}',
      's_mov_b64 exec, 1', f'buffer_store_dword v{H_T + 3}, v{H_ZERO}, {srd(SWS)}, s68 offen sc1')
    x('s_waitcnt vmcnt(0)', f'buffer_atomic_add v{H_ONE}, v{H_ZERO}, {srd(SD)}, 0 offen offset:128 sc1', 's_mov_b64 exec, -1', 's_branch L_h_join')

    npoll = [0]

    def poll_issue(kind, b):
        if kind in ('cnt', 'ge'):
            line = f'buffer_load_dword v{H_PV}, v{H_CP}, {srd(SD)}, 0 offen offset:{128 if kind == "ge" else 0} sc1'
        else:
            e(f's_mov_b32 s67, {b * 131072}')
            line = f'buffer_load_dword v{H_PV}, v{H_HP if kind == "h" else H_FP}, {srd(SWS)}, s67 offen sc1'
        vm(line, 'poll')
        return kind, line

    def poll_check(kind, line):
        n = npoll[0]
        npoll[0] += 1
        s.wait(vm=lambda t_: t_[1] == 'poll')
        e(f's_mov_b32 {sSPIN}, 0', f'L_poll{n}:')
        e({'cnt': f'v_cmp_le_u32 vcc, 0x100, v{H_PV}', 'ge': f'v_cmp_le_u32 vcc, 4, v{H_PV}'}.get(kind, f'v_cmp_eq_u32 vcc, 1, v{H_PV}'))
        e('s_nop 1', f's_andn2_b64 s[68:69], {sHPM if kind == "h" else sPM}, vcc', f's_cbranch_scc1 L_spin{n}', f'L_pok{n}:')
        stamp(f'x_pok_{kind}{n}')
        if o.diag:
            o.names.append(f's_spin_{kind}{n}')
            e(f'v_writelane_b32 v{H_STAMP + nstamp[0] // 64}, {sSPIN}, {nstamp[0] % 64}')
            nstamp[0] += 1
        x(f'L_spin{n}:', f's_add_u32 {sSPIN}, {sSPIN}, 1', f's_cmp_gt_u32 {sSPIN}, {SPIN_LIMIT}', f's_cbranch_scc1 L_pok{n}', f's_cmp_eq_u32 {sSPIN}, 1',
          f's_cbranch_scc1 L_again{n}', f's_sleep {16 if kind in ("cnt", "ge") else o.slp}', f'L_again{n}:', line, 's_waitcnt vmcnt(0)', f's_branch L_poll{n}')

    Q = []

    def q(cost, *lines):
        Q.append((cost, lambda: e(*lines)))

    def qf(f, cost=0.0):
        Q.append((cost, f))

    done = set()

    def mark(name):
        qf(lambda: done.add(name))

    def run_q(budget, dm=()):
        dm = list(dm)
        avail = min(budget, sum(c_ for c_, _ in Q))
        gap = avail / (len(dm) + 1) if dm else 0
        used, nxt = 0.0, 0.0
        while True:
            while dm and used >= nxt:
                dm.pop(0)()
                nxt += gap
            if not (Q and (used < budget or Q[0][0] == 0)):
                break
            c_, f = Q.pop(0)
            f()
            used += c_
        now(dm)
        return used

    def gelu8(v0_, t0):
        for i in range(8):
            q(.5, f'v_mul_f32 v{t0 + i}, v{v0_ + i}, v{v0_ + i}')
        for i in range(8):
            q(.5, f'v_fma_f32 v{t0 + i}, v{t0 + i}, v{H_C2}, {sGC1}')
        for i in range(8):
            q(.5, f'v_mul_f32 v{t0 + i}, v{t0 + i}, v{v0_ + i}')
        for i in range(8):
            q(1, f'v_exp_f32 v{t0 + i}, v{t0 + i}')
        for i in range(8):
            q(.5, f'v_add_f32 v{t0 + i}, 1.0, v{t0 + i}')
        for i in range(8):
            q(1, f'v_rcp_f32 v{t0 + i}, v{t0 + i}')
        for i in range(8):
            q(.5, f'v_mul_f32 v{v0_ + i}, v{v0_ + i}, v{t0 + i}')

    def pack8(dst, v0_):
        for i in range(4):
            q(.5, f'v_cvt_pk_bf16_f32 v{dst + i}, v{v0_ + 2 * i}, v{v0_ + 2 * i + 1}')

    def epi1_read(b, us):
        for u_ in us:
            for hh in range(2):
                s.lds(f'ds_read_b128 {vr(H_D + 8 * u_ + 4 * hh)}, v{H_S1 + hh} offset:{L_ST + u_ * 8192}', ('e', u_))
        if 0 in us:
            e(f's_add_u32 s68, {sNQ}, {4 * b}', 's_lshl_b32 s68, s68, 20')
            mk_srd(s, SB, S_WS, 1 << 20, add='s68')

    held = []

    def epi1_unit(u_, defer):
        qf(lambda: s.wait(lg=[('e', u_)]))
        gelu8(H_D + 8 * u_, H_T)
        pack8(H_B + 4 * u_, H_D + 8 * u_)
        st_ = lambda: vm(f'buffer_store_dwordx4 {vr(H_B + 4 * u_)}, v{H_HS}, {srd(SB)}, 0 offen offset:{u_ * 256} sc1', 'st')
        qf((lambda: held.append(st_)) if defer else st_)

    def epi2_read(b, gg):
        for kh in range(2):
            for nh in range(2):
                s.lds(f'ds_read_b128 {vr(H_D + 16 * gg + 8 * kh + 4 * nh)}, v{H_S2 + nh} offset:{L_ST + kh * 16640 + gg * 8320}', ('e', gg))
        if gg == 0:
            e(f's_add_u32 s68, {sN8}, {8 * b}', 's_lshl_b32 s68, s68, 8', f's_lshl_b32 s69, {sM2}, 3', 's_add_u32 s68, s68, s69',
              f's_add_u32 s68, s68, {sW4}', 's_lshl_b32 s68, s68, 10', f's_add_u32 {sFOFF}, s68, {WS_F}')
        else:
            e(f's_add_u32 {sFOFF}, {sFOFF}, 4096')

    def epi2_unit(gg):
        qf(lambda: s.wait(lg=[('e', gg)]))
        v_ = H_D + 16 * gg
        for i in range(8):
            q(.5, f'v_add_f32 v{v_ + i}, v{v_ + i}, v{v_ + 8 + i}')
        gelu8(v_, H_T)
        pack8(v_ + 8, v_)
        for i in range(4):
            q(.5, f'v_min_u32 v{v_ + 8 + i}, -2, v{v_ + 8 + i}')
        qf(lambda: vm(f'buffer_store_dwordx4 {vr(v_ + 8)}, v{H_L16}, {srd(SWS)}, {sFOFF} offen sc1', 'st'))

    def flag_set(k):
        stamp(f'x_preflag{k}')
        s.wait(vm=lambda t_: t_[1] == 'st')
        stamp(f'x_flag{k}')
        e(f's_mov_b64 exec, {1 << k}')
        vm(f'buffer_store_dword v{H_ONE}, v{H_FLAG}, {srd(SWS)}, 0 offen sc1', 'flag')
        e('s_mov_b64 exec, -1')
        done.add(f'flag{k}')

    def ld_wf(i):
        e(f's_lshl_b32 s68, {sW4}, 15', f's_add_u32 s68, s68, {WS_WFF + i * 1024}')
        vm(f'buffer_load_dwordx4 {vr(H_WF + 4 * i)}, v{H_L16}, {srd(SWS)}, s68 offen sc1', 'wf')

    def dma_eb():
        def one(i):
            e(f's_lshl_b32 s68, {sW4}, 12', f's_add_u32 m0, s68, {L_EB + i * 1024}', f's_add_u32 s68, s68, {WS_EB + i * 1024}')
            vm(f'buffer_load_dwordx4 v{H_L16}, {srd(SWS)}, s68 offen sc1 lds', 'eb')

        def fl():
            e(f's_lshl_b32 s68, {sW4}, 2', f's_add_u32 s68, s68, {WS_EBF}')
            vm(f'buffer_load_dword v{H_TMP}, v{H_ZERO}, {srd(SWS)}, s68 offen sc1', 'ebf')
        return [lambda i=i: one(i) for i in range(4)] + [fl]

    def get_ebf():
        s.wait(vm=lambda t_: t_[1] == 'ebf')
        e(f'v_readfirstlane_b32 {sGEF}, v{H_TMP}')

    def ld_f(b, st_=None):
        (st_ or s).e(f's_lshl_b32 s69, {sG}, 10')
        for ka in range(8):
            (st_ or s).e(f's_add_u32 s68, s69, {WS_F + (b * 8 + ka) * 256 * 1024}')
            line = f'buffer_load_dwordx4 {vr(H_D + 4 * ka)}, v{H_L16}, {srd(SWS)}, s68 offen sc1'
            if st_:
                st_.e(line)
            else:
                vm(line, 'f')

    def chk_f(b):
        s.wait(vm=lambda t_: t_[1] in ('f', 'wf'))
        e(f's_mov_b32 {sSPIN}, 0', f'L_fchk{b}:')
        e(f'v_max3_u32 v{H_MX}, v{H_D}, v{H_D + 1}, v{H_D + 2}')
        for i in range(3, 31, 2):
            e(f'v_max3_u32 v{H_MX}, v{H_D + i}, v{H_D + i + 1}, v{H_MX}')
        e(f'v_max_u32 v{H_MX}, v{H_D + 31}, v{H_MX}', f'v_cmp_eq_u32 vcc, -1, v{H_MX}', 's_nop 1', 's_cmp_lg_u64 vcc, 0', f's_cbranch_scc1 L_fspin{b}', f'L_fok{b}:')
        stamp(f'x_fok{b}')
        if o.diag:
            o.names.append(f's_spin_f{b}')
            e(f'v_writelane_b32 v{H_STAMP + nstamp[0] // 64}, {sSPIN}, {nstamp[0] % 64}')
            nstamp[0] += 1
        x(f'L_fspin{b}:', f's_add_u32 {sSPIN}, {sSPIN}, 1', f's_cmp_gt_u32 {sSPIN}, {SPIN_LIMIT}', f's_cbranch_scc1 L_fok{b}', f's_sleep {o.slp}')
        ld_f(b, ool)
        x('s_waitcnt vmcnt(0)', f's_branch L_fchk{b}')

    def fe(b):
        EA = H_EAB[b]
        qf(lambda: chk_f(b), 9)
        for tau in range(4):
            for ka in range(8):
                acc = vr(EA + 4 * tau)
                q(1, f'v_mfma_f32_16x16x32_bf16 {acc}, {vr(H_WF + 32 * tau + 4 * ka)}, {vr(H_D + 4 * ka)}, {"0" if ka == 0 else acc}')
        q(0, 's_nop 7', f's_mov_b32 s55, {fbits(TC)}')
        for i in range(16):
            q(.5, f'v_mul_f32 v{EA + i}, s55, v{EA + i}')
        q(.5, f'v_max3_f32 v{H_MX}, |v{EA}|, |v{EA + 1}|, 0')
        for i in range(2, 16, 2):
            q(.5, f'v_max3_f32 v{H_MX}, |v{EA + i}|, |v{EA + i + 1}|, v{H_MX}')
        q(16, f'v_cmp_lt_f32 vcc, {fbits(126.0)}, v{H_MX}', 's_nop 1', 's_cmp_lg_u64 vcc, 0', f's_cselect_b32 {sSLOW[b]}, 1, {sGEF}',
          f's_cmp_lg_u32 {sSLOW[b]}, 0', f's_cbranch_scc1 L_noexp{b}', *[f'v_exp_f32 v{EA + i}, v{EA + i}' for i in range(16)], f'L_noexp{b}:')

    def eb_read(k):
        for i in range(4):
            s.lds(f'ds_read_b128 {vr(H_B + 4 * i)}, v{H_EB} offset:{k * 1024 + i * 16}', ('eb', k))

    def jstep(k, nxt):
        def head():
            s.wait(lg=[('eb', k)])
            e(f's_cmp_lg_u32 {sSLOW[k // 8]}, 0', f's_cbranch_scc1 L_js{k}')
            for i in range(16):
                e(f'v_fma_f32 v{H_T + i}, v{H_EAB[k // 8] + i}, v{H_B + i}, 1.0')
            e(f'L_jb{k}:')
            if nxt:
                eb_read(k + 1)
        qf(head, 8)
        x(f'L_js{k}:', f's_mov_b32 {sBU}, {WS_GB - L_EB + k * 1024}', f's_call_b64 {sRET}, L_slow{k // 8}', f's_branch L_jb{k}')
        sl = L_J[k % NJ]
        a, off = (H_JHI, sl) if sl < 60 * K else (H_JH2, sl - 77 * K)
        for hf in range(2):
            for i in range(8 * hf, 8 * hf + 8):
                q(1, f'v_rcp_f32 v{H_T + i}, v{H_T + i}')
            for i in range(8 * hf, 8 * hf + 8):
                q(.5, f'v_fma_f32 v{H_T + i}, v{H_T + i}, -2.0, 1.0')
            pack8(H_T + 8 * hf, H_T + 8 * hf)
            qf(lambda hf=hf: s.lds(f'ds_write_b128 v{a}, {vr(H_T + 8 * hf)} offset:{off + hf * 1024}', ('jw', k)))
        mark(('j', k))

    for b in range(2):
        x(f'L_slow{b}:', 's_waitcnt lgkmcnt(0)')
        for i in range(4):
            x(f'buffer_load_dwordx4 {vr(H_B + 4 * i)}, v{H_EB}, {srd(SWS)}, {sBU} offen offset:{i * 16} sc1')
        x('s_waitcnt vmcnt(0)')
        for i in range(16):
            x(f'v_add_f32 v{H_T + i}, v{H_EAB[b] + i}, v{H_B + i}')
        for i in range(16):
            x(f'v_exp_f32 v{H_T + i}, v{H_T + i}')
        for i in range(16):
            x(f'v_add_f32 v{H_T + i}, 1.0, v{H_T + i}')
        x(f's_setpc_b64 {sRET}')

    bar('P0', lambda t_: t_[0] == 'P0', lambda t_: False)
    wf_next = [0]
    early = [lambda tau=tau: prep_b(tau) for tau in range(4)] + resets(s, lambda l_: vm(l_, 'rst'))
    last_early = [0]
    pf_next = [5]
    pend_flag = []

    def late_flag(dm, at):
        if pend_flag and pend_flag[0][1] != cur[0]:
            k_ = pend_flag.pop(0)[0]
            dm.insert(min(len(dm), at), lambda: flag_set(k_))
    polls = {o.cntp: ('cnt', 0), o.h0p: ('h', 0), 29: ('ge', 0), o.h1p: ('h', 1)}
    assert len(polls) == 4
    for sig in range(48):
        cur[0] = f'B{sig}'
        s.c(f'--- interval {sig}')
        now(held)
        held.clear()
        P = poll_issue(*polls[sig]) if sig in polls else None
        if sig == o.f0p + 1:
            assert not Q
            fe(0)
            qf(lambda: eb_read(0))
            for k in range(8):
                jstep(k, True)
        if sig >= o.st0:
            for _ in range(o.stn):
                if early:
                    early.pop(0)()
        if sig == o.arr - 1:
            assert not early and last_early[0] < sig
        if early:
            last_early[0] = sig + 1
        if sig in (16, 32):
            epi1_read(sig // 32, [0])
            epi1_unit(0, sig == 16)
        if sig in (17, 33):
            epi1_read(sig // 32, [1, 2, 3])
            for u_ in (1, 2, 3):
                epi1_unit(u_, sig == 17)
            if sig == 17:
                qf(lambda: held.append(lambda: pend_flag.append((0, cur[0]))))
            else:
                qf(lambda: pend_flag.append((1, cur[0])))
        if sig == 40:
            epi2_read(0, 0)
            epi2_unit(0)
        if sig == 41:
            qf(lambda: epi2_read(0, 1))
            epi2_unit(1)
            qf(lambda: stamp('x_fst0'))
        dm = []
        if not cwin(o, sig):
            if sig % 2 == 0 and 2 <= sig // 2 + 1 < 16:
                dm += dma_x(sig // 2 + 1)
            if 3 <= sig + 2 < 32:
                dm += dma_w(sig + 2)
        for _ in range(o.wfn if sig != 31 else 12):
            if sig > o.cntp and sig % 2 == 1 and wf_next[0] < 32:
                dm.append(lambda i=wf_next[0]: ld_wf(i))
                wf_next[0] += 1
        if sig == 36:
            dm += dma_eb()
        if sig == 39:
            get_ebf()
        T_ = 4 * sub(sig)['T'] + (4 * sub(sig - 1)['T'] if sig else 0)
        nd = len(dm)
        late_flag(dm, 0)
        run_q(T_ - o.qm - nd * o.qd, dm)
        if sig == o.f0p:
            assert not Q
            ld_f(0)
        if sig == o.arr:
            assert sig > JOIN + 1
            arrive(s, lambda l_: vm(l_, 'arr'))
        if o.pf and pf_next[0] < 32 and pf_next[0] <= sig + o.pfd and sig not in (15, 16):
            s.wait(lg=lambda t_: True)
            pf_x(pf_next[0] // 2, pf_next[0] % 2)
            pf_next[0] += 1
            if sig == 0:
                pf_x(pf_next[0] // 2, pf_next[0] % 2)
                pf_next[0] += 1
        if P:
            if P[0] == 'h':
                assert f'flag{polls[sig][1]}' in done
            poll_check(*P)
        lgp = lambda t_: t_[0] == 'e' or (t_[0] == 'jw' and t_[1] <= 0 and sig == 47)
        if sig == 47:
            assert ('j', 0) in done
        vmp = {0: lambda t_: t_[0] == 'P0b', o.arr - 1: lambda t_: t_[0] != cur[0], 39: lambda t_: t_[1] == 'eb'}.get(sig, lambda t_: t_[0] != cur[0] and t_[1] in ('x', 'w'))
        bar(f'B{sig}', vmp, lgp)
        if sig == JOIN:
            e('L_h_join:')
    assert wf_next[0] == 32
    for k in range(15):
        cur[0] = f'J{k}'
        s.c(f'--- joint interval {k}')
        if k <= 1:
            rest = Q[:]
            Q.clear()
            cut = next((i for i, it in enumerate(rest) if it[1].__name__ == 'head'), len(rest))
            print(f'j steps done before HJ{k}:', sorted(d_[1] for d_ in done if d_[0] == 'j'), file=sys.stderr)
            Q.extend(rest[:cut])
            qf(lambda k=k: epi2_read(1, k))
            epi2_unit(k)
            if k == 1:
                qf(lambda: (stamp('x_fst1'), done.add('fst1')))
            Q.extend(rest[cut:])
        if k == o.f1p + 1:
            rest = Q[:]
            Q.clear()
            fe(1)
            Q.extend(rest)
            for k_ in range(8, 16):
                jstep(k_, k_ < 15)
        if k < 7:
            run_q(o.qj if k else 21 - o.qm)
        while ('j', k + 1) not in done:
            run_q(1)
        if k >= 7:
            run_q(o.joff)
        if k == o.f1p:
            assert 'fst1' in done
            ld_f(1)
        bar(f'J{k}', lambda t_: False, lambda t_: t_[0] == 'e' or (t_[0] == 'jw' and t_[1] <= k + 1))
    assert not Q
    if o.diag:
        flush_stamps()
        stamp('end')
        stamp('rt1', True)
        flush_stamps()
        e(f's_lshl_b32 s68, s2, 2', f's_add_u32 s68, s68, {sW4}', 's_lshl_b32 s68, s68, 11', f's_add_u32 s68, s68, {WS_DIAG}', f'v_lshlrev_b32 v{H_TMP}, 2, v0')
        for i in range(3):
            e(f'buffer_store_dword v{H_STAMP + i}, v{H_TMP}, {srd(SWS)}, s68 offen offset:{i * 256}')
    e('s_endpgm')
    return s, ool


def gen(o):
    p = gen_entry(o)
    c, cool = gen_compute(o, p)
    h, ool = gen_helper(o, p)
    assert c.nbar == h.nbar, (c.nbar, h.nbar)
    errs = lint(p.l + c.l, 'C') + lint(p.l + h.l, 'H') + lint(ool.l, 'ool') + lint(cool.l, 'cool')
    for x in errs:
        print('LINT', x, file=sys.stderr)
    hdr = open('standalone__seq2seq_rnn_t_joint__speech.s.ref').read().split('\n')
    hdr = [l for l in hdr if l.startswith(';') and '@launch' not in l]
    out = '\n'.join(hdr[:11]) + '\n'
    out += '; @launch grid=(256,1,1) block=(512,1,1) lds=163840\n'
    out += f'''.amdgcn_target "amdgcn-amd-amdhsa--gfx950"
.text
.globl {KN}
.p2align 8
.type {KN},@function
{KN}:
'''
    out += p.text() + c.text() + cool.text() + '.p2align 6\nL_helper:\n' + h.text() + ool.text() + 'L_exit:\n    s_endpgm\n'
    out += f'''.section .rodata,"a"
.p2align 6
.amdhsa_kernel {KN}
  .amdhsa_next_free_vgpr 256
  .amdhsa_next_free_sgpr {102 if o.diag else 96}
  .amdhsa_accum_offset 256
  .amdhsa_group_segment_fixed_size 0
  .amdhsa_kernarg_size 80
  .amdhsa_user_sgpr_count 2
  .amdhsa_user_sgpr_kernarg_segment_ptr 1
  .amdhsa_system_sgpr_workgroup_id_x 1
.end_amdhsa_kernel
'''
    print(f'mfma={c.nmfma} barriers={c.nbar} lines C={len(c.l)} H={len(h.l)} ool={len(ool.l)} lint={len(errs)}', file=sys.stderr)
    return out


if __name__ == '__main__':
    o = Opt()
    outp = sys.argv[1]
    for a in sys.argv[2:]:
        k, v = a.split('=')
        assert hasattr(o, k), k
        setattr(o, k, tuple(int(y) for y in v.split(',') if y) if k == 'cw' else float(v) if '.' in v else int(v))
    txt = gen(o)
    if o.diag:
        txt += '; STAMPS ' + ' '.join(o.names) + '\n; CSTAMPS ' + ' '.join(o.cnames) + '\n'
    open(outp, 'w').write(txt)
```

```python
import sys, struct
from stream import Stream, lint

KN = 'standalone__seq2seq_rnn_t_joint__speech_kernel'
K = 1024
OOB = 0x80000000
WS_H = 0
WS_F = 8 << 20
WS_W2F = 12 << 20
WS_WFF = 14 << 20
WS_WOF = WS_WFF + 128 * K
WS_EB = WS_WFF + 256 * K
WS_GB = WS_EB + 16 * K
WS_EBF = WS_GB + 16 * K
WS_HFL = 15 << 20
WS_FFL = WS_HFL + 256 * K
WS_DIAG = 16 << 20
WS_SIZE = 19 << 20
L_SLOT = [0, 60 * K, 92 * K]
L_ST = 28 * K
L_XB = 90 * K
L_X = [124 * K, 141 * K]
L_IMG = [124 * K, 107 * K, 90 * K, 141 * K]
L_EB = 61 * K
L_J = [0, 8 * K, 16 * K, 77 * K, 124 * K, 132 * K, 107 * K, 115 * K]
NJ = len(L_J)
ZT = [2, 0, 3, 1, 0, 2, 4, 3, 7, 4, 6, 5, 0, 6, 4, 7, 2]
T0 = sum(ZT[l] << (4 * l) for l in range(16))
T1 = sum(ZT[l + 1] << (4 * l) for l in range(16))
JOIN = 5


def fbits(x):
    return '0x%08x' % struct.unpack('<I', struct.pack('<f', x))[0]


GC1 = -2 * 0.7978845608028654 * 1.4426950408889634
GC2 = GC1 * 0.044715
TC = 2 * 1.4426950408889634


def vr(b, n=4):
    return f'v[{b}:{b + n - 1}]'


S_X, S_W1, S_W2, S_G, S_WF, S_WG, S_WO, S_OUT, S_DBG, S_WS = 4, 6, 8, 10, 12, 14, 16, 18, 20, 22
sWAVE, sW4, sM, sNQ, sM2, sN8, sG, sHW1K = 's24', 's25', 's26', 's27', 's28', 's29', 's30', 's31'
SA, SW1, SWS, SB, SD = 32, 36, 40, 44, 92


def srd(n):
    return f's[{n}:{n + 3}]'


def mk_srd(s, n, base, nrec, add=None):
    if add is None:
        s.e(f's_mov_b32 s{n}, s{base}', f's_mov_b32 s{n + 1}, s{base + 1}')
    else:
        s.e(f's_add_u32 s{n}, s{base}, {add}', f's_addc_u32 s{n + 1}, s{base + 1}, 0')
    s.e(f's_mov_b32 s{n + 2}, {nrec}', f's_mov_b32 s{n + 3}, 0x20000')


class Opt:
    diag = 0
    prio = 1
    cst = -1
    pf = 1
    pfx = 1
    pf0 = 2
    pfd = 6
    st0 = 2
    stn = 1
    wfn = 5
    arr = 12
    cntp = 22
    h0p = 27
    h1p = 38
    f0p = 43
    f1p = 4
    qm = 6
    qd = 2.5
    qj = 40
    qj0 = 28
    span = 0
    f0h = 0
    joff = 14
    serp = 1
    warm = 1
    busy = set([1, 17, 18, 19, 20, 33, 34, 35, 36, 41, 42] + list(range(45, 70)))
    cw = (16,)
    slp = 6


def sub(sig):
    if sig < 32:
        b, r = divmod(sig, 16)
        c64, p, kh = r >> 2, (r >> 1) & 1, r & 1
        return dict(ph=1, b=b, c64=c64, p=p, kh=kh, T=8 - p, first=r == 0, last=r == 15,
                    xbuf=L_X[(sig >> 1) & 1], bank=sig & 1)
    g = sig - 32
    b, r = divmod(g, 8)
    c64, p = r >> 1, r & 1
    return dict(ph=2, b=b, c64=c64, p=p, kh=None, T=8 - p, first=r == 0, last=r == 7,
                xbuf=L_IMG[g & 3], bank=(g + 2) % 3)


def cwin(o, win):
    return win >= 30 or win in o.cw


def w1_off(k, j):
    d = sub(k)
    return (2 * j + d['p']) * 131072 + (64 * d['c64'] + 32 * d['kh']) * 512


H_XV, H_HV, H_WD = 1, 11, 21
E_SP, E_GAM, E_S = 240, 241, 242


def img_addr(e, dst, lreg, rowbase, shift, t):
    e(f's_lshl_b32 s74, {lreg}, 2', 's_lshr_b64 s[76:77], s[68:69], s74', 's_and_b32 s76, s76, 7',
      f's_lshl_b32 s74, {lreg}, 4', f's_add_u32 s74, s74, {rowbase}', 's_sub_u32 s74, s74, 7')
    e(f'v_lshl_add_u32 v{t}, v{E_S}, 1, s74', f'v_xor_b32 v{t + 1}, s76, v{E_GAM}', f'v_lshlrev_b32 v{t + 1}, 4, v{t + 1}',
      f'v_lshl_add_u32 v{dst}, v{t}, {shift}, v{t + 1}')


def gen_entry(o):
    p = Stream('P')
    e = p.e
    e('s_cmp_ge_u32 s2, 256', 's_cbranch_scc1 L_exit')
    if o.span:
        e('s_memrealtime s[94:95]')
    e('s_load_dwordx4 s[4:7], s[0:1], 0', 's_load_dwordx8 s[8:15], s[0:1], 16', 's_load_dwordx8 s[16:23], s[0:1], 48')
    e('v_lshrrev_b32 v1, 6, v0', 's_and_b32 s70, s2, 7', 's_lshr_b32 s71, s2, 3', f'v_readfirstlane_b32 {sWAVE}, v1', 'v_and_b32 v0, 63, v0')
    if o.serp:
        e('s_bitcmp1_b32 s2, 0', 's_cselect_b32 s72, 0, 31', 's_xor_b32 s71, s71, s72')
    e('s_lshl_b32 s72, s70, 3', 's_lshr_b32 s73, s71, 2', f's_add_u32 {sM}, s72, s73', f's_and_b32 {sNQ}, s71, 3')
    e(f'v_lshrrev_b32 v{E_SP}, 3, v0', f'v_and_b32 v{E_GAM}, 7, v0', f's_and_b32 {sW4}, {sWAVE}, 3', f's_lshl_b32 {sHW1K}, {sW4}, 10')
    e(f's_mov_b32 s68, {T0 & 0xffffffff}', f's_mov_b32 s69, {T0 >> 32}', f's_and_b32 s78, {sW4}, 1', f'v_xor_b32 v{E_S}, s78, v{E_SP}')
    e(f's_lshr_b32 s79, {sWAVE}, 2', 's_xor_b32 s79, s79, 1', 's_lshl_b32 s75, s79, 3', f's_add_u32 s75, s75, {sW4}', f's_lshl_b32 s67, {sM}, 8')
    img_addr(e, H_XV, 's75', 's67', 9, 243)
    e('s_add_u32 s66, s75, 4')
    img_addr(e, H_XV + 1, 's66', 's67', 9, 243)
    e(f'v_and_b32 v243, 2, v{E_SP}', 's_lshl_b32 s78, s78, 2', 'v_or_b32 v243, s78, v243', f'v_xor_b32 v243, v243, v{E_GAM}',
      f's_lshl_b32 s73, {sW4}, 12', f's_lshl_b32 s74, {sNQ}, 7', 's_add_u32 s73, s73, s74',
      f'v_lshlrev_b32 v244, 9, v{E_SP}', 'v_lshl_add_u32 v244, v243, 4, v244', f'v_add_u32 v{H_WD}, s73, v244')
    e(f'v_lshlrev_b32 v245, 1, v{E_SP}', f'v_add_u32 v245, {256 - 7}, v245', f'v_xor_b32 v246, {ZT[16]}, v{E_GAM}', 'v_lshlrev_b32 v246, 4, v246',
      'v_add_u32 v243, s67, v245', f'v_lshl_add_u32 v{H_XV + 4}, v243, 9, v246', f's_lshl_b32 s74, {sWAVE}, 3', 's_mov_b64 s[76:77], 0xff', 's_lshl_b64 s[76:77], s[76:77], s74')
    e('s_lshl_b32 s75, s75, 10', 's_lshl_b32 s65, s79, 14', f's_add_u32 s65, s65, {sHW1K}', 's_lshl_b32 s64, s79, 20')
    e('s_waitcnt lgkmcnt(0)')
    e('s_getpc_b64 s[80:81]', 'L_pc:', 's_lshl_b32 s72, s71, 3', f's_add_u32 s72, s72, {sWAVE}', 's_mul_i32 s72, s72, 320', 's_min_u32 s72, s72, L_exit-L_pc-320',
      's_add_u32 s80, s80, s72', 's_addc_u32 s81, s81, 0')
    for i in range(5):
        e(f's_load_dword s82, s[80:81], {i * 64}')
    mk_srd(p, SA, S_X, 8192000)
    mk_srd(p, SW1, S_W1, 1966080)
    for i in range(2):
        e(f's_add_u32 m0, s75, {L_X[0] + 4096 * i}', 's_nop 0')
        p.vmem(f'buffer_load_dwordx4 v{H_XV + i}, {srd(SA)}, 0 offen lds', ('P0', 'x'))
    e(f's_mov_b32 m0, {L_X[0] + 16384}', 's_mov_b64 exec, s[76:77]')
    p.vmem(f'buffer_load_dwordx4 v{H_XV + 4}, {srd(SA)}, 0 offen lds', ('P0', 'x'))
    e('s_mov_b64 exec, -1')
    for k in range(2):
        for j in range(4):
            e(f's_add_u32 m0, s65, {L_SLOT[k] + j * 4096}', f's_add_u32 s66, s64, {w1_off(k, j)}')
            p.vmem(f'buffer_load_dwordx4 v{H_WD}, {srd(SW1)}, s66 offen lds', ('P0' if k == 0 else 'P0b', 'w'))
    e('s_lshl_b32 s72, s70, 2', 's_lshr_b32 s73, s71, 3', f's_add_u32 {sM2}, s72, s73', f's_and_b32 {sN8}, s71, 7')
    e('s_lshl_b32 s72, s70, 5', f's_add_u32 {sG}, s72, s71')
    mk_srd(p, SWS, S_WS, WS_SIZE)
    e(f's_cmp_lt_u32 {sWAVE}, 4', 's_cbranch_scc1 L_compute')
    return p


def flag_addr(e, dst, t):
    e(f's_lshl_b32 s68, {sM}, 2', f's_add_u32 s68, s68, {sNQ}', 's_lshl_b32 s68, s68, 5', f's_add_u32 s68, s68, {sW4}', 's_lshl_b32 s68, s68, 2', f's_add_u32 s68, s68, {WS_HFL}')
    e(f's_lshl_b32 s69, {sM2}, 3', f's_add_u32 s69, s69, {sN8}', 's_lshl_b32 s69, s69, 2', f's_add_u32 s69, s69, {sW4}', 's_lshl_b32 s69, s69, 7', f's_add_u32 s69, s69, {WS_FFL}')
    e(f'v_mov_b32 v{t}, s68', f'v_mov_b32 v{t + 1}, s69', 'v_cmp_gt_u32 vcc, 2, v0', f'v_and_b32 v{t + 2}, 1, v0', 's_nop 0',
      f'v_cndmask_b32 v{t}, v{t + 1}, v{t}, vcc', f'v_lshl_add_u32 v{dst}, v{t + 2}, 17, v{t}')


V_XA1 = 1
V_XA2 = 9
V_WLO, V_WHI, V_D1, V_D2, V_W2, V_WO, V_JLO, V_JHI, V_OUT = 13, 14, 15, 16, 17, 18, 19, 20, 21
V_ACC = 24
V_Z = 56
V_Y = 88
C_XV = [248, 249, 250, 251, 252, 253, 254, 255, 116, 117]
C_WD = 118
V_WB = [120, 152, 184]
V_SP = 216
V_PK = 248
WO_BASE = [V_SP, V_WB[0], V_WB[1], V_WB[2]]


def xreg(s_):
    return V_Z + 4 * s_ if s_ < 8 else V_Y + 4 * (s_ - 8)


def gen_compute(o, p):
    s = Stream('C')
    s.vm = list(p.vm)
    ool = Stream('Cool')
    e, x = s.e, ool.e
    if o.prio:
        e('s_setprio 2')
    t = 224
    if o.pf:
        e('s_mul_i32 s55, s2, 7680', f's_mul_i32 s56, {sW4}, 1920', 's_add_u32 s55, s55, s56', f's_add_u32 s64, s{S_W1}, s55', f's_addc_u32 s65, s{S_W1 + 1}, 0')
        for i in range(15):
            e(f's_load_dword s66, s[64:65], {i * 64}')
    e(f'v_and_b32 v{t}, 15, v0', f'v_lshrrev_b32 v{t + 1}, 4, v0', f'v_lshlrev_b32 v{V_JLO}, 4, v0')
    l16, kq = f'v{t}', f'v{t + 1}'
    e(f'v_mov_b32 v{C_XV[2]}, v{H_XV}', f'v_mov_b32 v{C_XV[3]}, v{H_XV + 1}', f'v_mov_b32 v{C_XV[4]}, v{H_XV + 4}', f'v_mov_b32 v{C_WD}, v{H_WD}')
    img_addr(e, C_XV[0], sW4, 's67', 9, t + 8)
    e(f's_add_u32 s73, {sW4}, 4')
    img_addr(e, C_XV[1], 's73', 's67', 9, t + 8)
    for i in range(5):
        e(f'v_add_u32 v{C_XV[5 + i]}, 512, v{C_XV[i]}')
    e(f's_lshl_b32 s73, {sW4}, 4', 's_mov_b64 s[76:77], 0xffff', 's_lshl_b64 s[62:63], s[76:77], s73')
    e(f's_sub_u32 s61, {sM2}, {sM}', 's_lshl_b32 s61, s61, 15')
    e(f'v_lshlrev_b32 v{t + 2}, 2, {l16}')
    e(f's_mov_b32 s48, {T0 & 0xffffffff}', f's_mov_b32 s49, {T0 >> 32}', f's_mov_b32 s50, {T1 & 0xffffffff}', f's_mov_b32 s51, {T1 >> 32}')
    e(f'v_lshrrev_b64 v[{t + 4}:{t + 5}], v{t + 2}, s[48:49]', f'v_lshrrev_b64 v[{t + 6}:{t + 7}], v{t + 2}, s[50:51]')
    e(f'v_and_b32 v{t + 4}, 7, v{t + 4}', f'v_and_b32 v{t + 6}, 7, v{t + 6}')
    e(f's_lshr_b32 s52, {sW4}, 1', f's_and_b32 s53, {sW4}, 1')
    e('s_lshl_b32 s54, s52, 2')
    for sh in range(2):
        z = f'v{t + 4 + 2 * sh}'
        e(f'v_add_u32 v{t + 8}, {sh}, {l16}', f'v_and_b32 v{t + 9}, 1, v{t + 8}', f'v_lshlrev_b32 v{t + 8}, 10, v{t + 8}',
          f'v_add_u32 v{t + 8}, {L_XB}, v{t + 8}')
        for ee in range(2):
            e(f'v_xor_b32 v{t + 10}, {ee}, v{t + 9}', f'v_lshl_add_u32 v{t + 10}, v{t + 10}, 7, v{t + 8}')
            for kh in range(2):
                e(f'v_or_b32 v{t + 11}, {4 * kh}, {kq}', f'v_xor_b32 v{t + 11}, v{t + 11}, {z}',
                  f'v_lshl_add_u32 v{V_XA1 + sh * 4 + ee * 2 + kh}, v{t + 11}, 4, v{t + 10}')
            e(f'v_or_b32 v{t + 11}, s54, {kq}', f'v_xor_b32 v{t + 11}, v{t + 11}, {z}',
              f'v_lshl_add_u32 v{V_XA2 + sh * 2 + ee}, v{t + 11}, 4, v{t + 10}')
    e(f'v_lshrrev_b32 v{t + 8}, 2, {l16}', f'v_and_b32 v{t + 9}, 3, {l16}')
    e(f'v_and_b32 v{t + 10}, 2, v{t + 8}', f'v_and_b32 v{t + 11}, 1, {kq}', f'v_lshl_add_u32 v{t + 10}, v{t + 11}, 2, v{t + 10}')
    e(f's_lshl_b32 s55, {sW4}, 1', f'v_lshrrev_b32 v{t + 11}, 1, v{t + 9}', f'v_add_u32 v{t + 11}, s55, v{t + 11}',
      f'v_xor_b32 v{t + 11}, v{t + 11}, v{t + 10}')
    e(f'v_lshlrev_b32 v{t + 12}, 10, {kq}', f'v_lshl_add_u32 v{t + 12}, v{t + 8}, 7, v{t + 12}', f'v_lshl_add_u32 v{t + 12}, v{t + 11}, 4, v{t + 12}',
      f'v_and_b32 v{t + 9}, 1, v{t + 9}', f'v_lshl_add_u32 v{V_WLO}, v{t + 9}, 3, v{t + 12}', f'v_add_u32 v{V_WHI}, {L_SLOT[1]}, v{V_WLO}')
    if o.pf:
        for i in range(15, 30):
            e(f's_load_dword s66, s[64:65], {i * 64}')
    e(f's_lshl_b32 s55, {sW4}, 2', f'v_add_u32 v{t + 8}, s55, {kq}', f'v_xor_b32 v{t + 8}, v{t + 8}, {l16}',
      f'v_lshlrev_b32 v{t + 9}, 8, {l16}', f'v_lshl_add_u32 v{V_D1}, v{t + 8}, 4, v{t + 9}')
    e('s_lshl_b32 s55, s53, 2', f'v_add_u32 v{t + 8}, s55, {kq}', f'v_and_b32 v{t + 9}, 7, {l16}', f'v_xor_b32 v{t + 8}, v{t + 8}, v{t + 9}',
      f'v_lshlrev_b32 v{t + 9}, 7, {l16}', f'v_lshl_add_u32 v{t + 8}, v{t + 8}, 4, v{t + 9}', 's_mul_i32 s55, s52, 16640', f'v_add_u32 v{V_D2}, s55, v{t + 8}')
    e(f'v_add_u32 v{V_JHI}, {77 * K}, v{V_JLO}')
    e(f's_lshl_b32 s55, {sN8}, 1', 's_add_u32 s55, s55, s53', 's_lshl_b32 s55, s55, 3', 's_add_u32 s55, s55, s52', 's_lshl_b32 s55, s55, 14',
      f's_add_u32 s55, s55, {WS_W2F}', f'v_add_u32 v{V_W2}, s55, v{V_JLO}')
    e(f's_lshl_b32 s55, {sW4}, 15', f's_add_u32 s55, s55, {WS_WOF}', f'v_add_u32 v{V_WO}, s55, v{V_JLO}')
    e(f's_lshl_b32 s55, {sM2}, 19', f's_lshl_b32 s56, {sW4}, 7', 's_add_u32 s55, s55, s56', f's_lshl_b32 s56, {sN8}, 12', 's_add_u32 s55, s55, s56')
    e(f'v_lshlrev_b32 v{t + 8}, 17, {kq}', f'v_lshl_add_u32 v{t + 8}, {l16}, 3, v{t + 8}', f'v_add_u32 v{V_OUT}, s55, v{t + 8}')
    for r in range(4):
        e(f's_mov_b32 s{56 + r}, {r * 32768}')

    def rd_x(sig, s_):
        d = sub(sig)
        sh, sp = divmod(s_, 8)
        ee = sp & 1
        a = V_XA1 + sh * 4 + ee * 2 + d['kh'] if d['ph'] == 1 else V_XA2 + sh * 2 + ee
        s.lds(f'ds_read_b128 {vr(xreg(s_))}, v{a} offset:{d["xbuf"] - L_XB + (sp - ee) * 128}', ('X', sig, s_))

    def rd_w(k, j, h):
        slot = L_SLOT[k % 3]
        a, off = (V_WLO, 0) if k % 3 == 0 else (V_WHI, slot - L_SLOT[1])
        r = V_WB[sub(k)['bank']] + 4 * j + 2 * h
        s.lds(f'ds_read_b64_tr_b16 {vr(r, 2)}, v{a} offset:{off + j * 4096 + h * 512}', ('W', k, j))

    def ld_w2(k, j):
        d = sub(k)
        if j % 4 == 0 or j == 2:
            e(f's_mov_b32 s48, {(d["c64"] * 32 + d["p"] * 8 + (j & 4)) * 1024}')
        s.vmem(f'buffer_load_dwordx4 {vr(V_WB[d["bank"]] + 4 * j)}, v{V_W2}, {srd(SWS)}, s48 offen offset:{(j % 4) * 1024} sc1', ('W', k, j))

    def ld_wo(tau, ka):
        if ka % 4 == 0 or ka == 2 or tau == 0:
            e(f's_mov_b32 s49, {(tau * 8 + (ka & 4)) * 1024}')
        s.vmem(f'buffer_load_dwordx4 {vr(WO_BASE[tau] + 4 * ka)}, v{V_WO}, {srd(SWS)}, s49 offen offset:{(ka % 4) * 1024} sc1', ('O', tau, ka))

    def dump(sig, b):
        a, off = (V_D1, L_ST + b * 4096) if sub(sig)['ph'] == 1 else (V_D2, L_ST + b * 2080)
        s.lds(f'ds_write_b128 v{a}, {vr(V_ACC + 4 * b)} offset:{off}', ('D', sig, b))

    def jreg(k, ka):
        return (V_Z if k % 2 == 0 else V_Y) + 4 * ka

    def rd_j(k, ka):
        sl = L_J[k % NJ]
        a, off = (V_JLO, sl) if sl < 60 * K else (V_JHI, sl - 77 * K)
        s.lds(f'ds_read_b128 {vr(jreg(k, ka))}, v{a} offset:{off + ka * 1024}', ('A', k, ka))

    def dma_img(buf, p_, soff, flags, tag, pre):
        def item(i):
            def a():
                if i == 0 and pre:
                    pre()
                e(f's_add_u32 m0, {sHW1K}, {buf + 4096 * i}' if i < 4 else f's_mov_b32 m0, {buf + 16384}')
                if soff and i == 0:
                    e(f's_mov_b32 s52, {soff}')

            def b():
                if i == 4:
                    e('s_mov_b64 exec, s[62:63]')
                s.vmem(f'buffer_load_dwordx4 v{C_XV[5 * p_ + i]}, {srd(SA)}, {"s52" if soff else "0"} offen{flags} lds', tag)
                if i == 4:
                    e('s_mov_b64 exec, -1')
            return a, b
        return [item(i) for i in range(5)]

    def dma_x(st, win):
        b, c64, p_ = st >> 3, (st >> 1) & 3, st & 1
        pre = (lambda: mk_srd(s, SA, S_X, 8192000, add=8192000)) if b else None
        return dma_img(L_X[st & 1], p_, c64 * 128, '', ('dma', win), pre)

    def dma_h(g):
        d = sub(32 + g)
        off = WS_H + (d['b'] * 4 + d['c64']) * (1 << 20)
        pre = (lambda: mk_srd(s, SA, S_WS, 1024000, add=off)) if d['p'] == 0 else None
        return dma_img(d['xbuf'], d['p'], 0, ' sc1', ('img', g), pre)

    def dma_w(k, win):
        def item(j):
            return (lambda: e(f's_add_u32 m0, {sHW1K}, {L_SLOT[k % 3] + j * 4096}', f's_mov_b32 s51, {w1_off(k, j)}'),
                    lambda: s.vmem(f'buffer_load_dwordx4 v{C_WD}, {srd(SW1)}, s51 offen lds', ('dma', win)))
        return [item(j) for j in range(sub(k)['T'])]

    def window(win):
        dm = []
        if win % 2 == 0 and 2 <= win // 2 + 1 < 16:
            dm += dma_x(win // 2 + 1, win)
        if 3 <= win + 2 < 32:
            dm += dma_w(win + 2, win)
        imgs = []
        if 30 <= win <= 45:
            imgs = [win - 30] if (win - 30 < 8 or win > o.h1p + 1) else ([] if win <= o.h1p else list(range(8, win - 29)))
        for g in imgs:
            dm += dma_h(g)
        return dm

    def bpos_of(sig):
        return 4 if (sub(sig)['last'] and sub(sig)['ph'] == 2) else 3

    def win_slots(win):
        dm = window(win)
        if not dm or not cwin(o, win):
            return []
        T0_, T1_ = sub(win - 1)['T'], sub(win)['T']
        lo = (bpos_of(win - 1) + 1) * T0_
        slots = [(win - 1, i) for i in range(lo, 8 * T0_)] + [(win, i) for i in range(0, (bpos_of(win) + 1) * T1_)]
        span = len(slots) - 6 if win < 31 else (3 * T0_ - 2 if len(dm) <= 5 else len(slots) - 10)
        out = []
        for n_, (a, b) in enumerate(dm):
            i = (n_ * span) // len(dm)
            out.append((slots[i], a))
            out.append((slots[i + 1], b))
        return out
    dsl = {}
    for win in range(1, 46):
        for (sg, i), f in win_slots(win):
            dsl.setdefault(sg, []).append((i, f))

    o.cnames = []
    cp = []

    def cflush():
        for i, r in cp:
            e(f'v_writelane_b32 v{(22, 23, 0)[i // 64]}, s{r}, {i % 64}')
        cp.clear()

    def cstamp(name):
        r = 96 + 2 * len(cp)
        e(f's_memtime s[{r}:{r + 1}]')
        cp.append((len(o.cnames), r))
        o.cnames.append(name)

    def bar(name):
        if o.diag:
            s.drain(vm=False)
            cflush()
            cstamp('a' + name)
        s.barrier(name)
        if o.diag:
            cstamp('r' + name)

    e('s_cmp_eq_u32 s2, 255', 's_cbranch_scc1 L_c_ge')
    x('L_c_ge:', 's_waitcnt vmcnt(0) lgkmcnt(0)', 's_branch L_c_join')
    e('s_waitcnt lgkmcnt(0)')
    s.wait(vm=lambda t_: t_[0] == 'P0')
    bar('P0')
    for j in range(8):
        rd_w(0, j, 0)
        rd_w(0, j, 1)
        rd_x(0, j)
    for sig in range(48):
        d = sub(sig)
        T = d['T']
        s.c(f'--- sigma {sig} {d}')
        pos = {}
        add = lambda b, j, f: pos.setdefault((b, j), []).append(f)
        addi = lambda i, f: add(i // T, i % T, f)
        for i, s_ in enumerate(range(8, T + 7)):
            addi(3 * i, lambda s_=s_: rd_x(sig, s_))
        nz = (lambda k_: rd_x(sig + 1, k_)) if sig < 47 else (lambda k_: rd_j(0, k_))
        if sig + 1 < 32:
            i = 4 * T
            for j in range(8):
                if j < sub(sig + 1)['T']:
                    addi(i, lambda j=j: rd_w(sig + 1, j, 0))
                    addi(i + 1, lambda j=j: rd_w(sig + 1, j, 1))
                    i += 2
                addi(max(i, j * T + 1), lambda j=j: nz(j))
                i += 1
        else:
            for k_, (b, j) in enumerate([(4, 0), (4, 2), (4, 4), (5, 0), (5, 2), (5, 4), (6, 2), (7, 1)] if not (d['last'] and d['ph'] == 2) else
                                        [(5, 0), (5, 1), (5, 2), (5, 4), (6, 0), (6, 2), (6, 4), (7, 1)]):
                add(b, j, lambda k_=k_: nz(k_))

        def bankload(k, j):
            if k < 48:
                return (lambda: ld_w2(k, j)) if j < sub(k)['T'] else None
            return lambda: ld_wo(k - 47, j)
        if sig in (28, 29):
            for j in range(4):
                addi(6 * j + 3, bankload(32, 4 * (sig - 28) + j))
        if sig >= 31:
            for j in range(2, 8):
                f = bankload(sig + 2, j)
                if f:
                    addi((j - 2) * (5 if T == 8 else 4) + 1, f)
        if sig >= 30:
            for j in range(2):
                add(7, 2 + 3 * j, bankload(sig + 3, j))
        if sig in (23, 25, 27):
            for i_, ka in enumerate(range(3 * (sig - 23) // 2, min(8, 3 * (sig - 23) // 2 + 3))):
                add(1 + i_, 1, lambda ka=ka: ld_wo(0, ka))
        for i, f in dsl.get(sig, []):
            addi(i, f)
        if sig == 29:
            ops = []
            for i in range(5):
                r_ = C_XV[i]
                ops += [f'v_and_b32 v119, 0x1ff, v{r_}', f'v_ashrrev_i32 v{r_}, 9, v{r_}', f'v_lshl_add_u32 v{r_}, v{r_}, 7, v119', f'v_add_u32 v{r_}, s61, v{r_}',
                        f'v_add_u32 v{C_XV[5 + i]}, 128, v{r_}']
            for i, op in enumerate(ops):
                addi(2 + i, lambda op=op: e(op))
        if sig == 46:
            add(1, 0, lambda: mk_srd(s, SA, S_OUT, 16384000))
            add(2, 0, lambda: mk_srd(s, SW1, S_OUT, 16384000, add=16384000))
        bpos = bpos_of(sig)
        if d['last']:
            if d['ph'] == 1:
                for b, j in ((0, 1), (1, 3)):
                    add(3, j, lambda b=b: dump(sig, b))
            else:
                add(2, 1, lambda: dump(sig, 0))
                add(3, 1, lambda: dump(sig, 1))
            for b in range(2, 7):
                add(b + 1, T - 1, lambda b=b: (e('s_nop 0'), dump(sig, b)))
        if d['first'] and sig > 0:
            add(0, T - 1, lambda: dump(sig - 1, 7))
        for b in range(8):
            if o.cst >= 0 and sig in (o.cst, o.cst + 1):
                r_ = 64 + 2 * (8 * (sig - o.cst) + b)
                e(f's_memtime s[{r_}:{r_ + 1}]')
            for j in range(T):
                if d['ph'] == 1:
                    s.wait(lg=[('W', sig, j), ('X', sig, b + j)])
                else:
                    s.wait(vm=[('W', sig, j)], lg=[('X', sig, b + j)])
                acc = vr(V_ACC + 4 * b)
                cin = '0' if (d['first'] and j == 0) else acc
                e(f'v_mfma_f32_16x16x32_bf16 {acc}, {vr(V_WB[d["bank"]] + 4 * j)}, {vr(xreg(b + j))}, {cin}')
                s.nmfma += 1
                for f in pos.get((b, j), []):
                    f()
            if b == bpos:
                if sig == 0:
                    vmp = lambda t_: t_[0] == 'P0b'
                else:
                    vmp = lambda t_: (t_[0] == 'dma' and t_[1] < sig) or t_ == ('img', sig - 31)
                s.wait(vm=vmp, lg=lambda t_: True)
                bar(f'B{sig}')
                if sig == JOIN:
                    e('L_c_join:')
    e('s_nop 7')
    dump(47, 7)

    def epi(k, r):
        a0 = V_ACC + 16 * (k % 2)
        return [lambda: e(f'v_cvt_pk_bf16_f32 v{V_PK + 2 * r}, v{a0 + r}, v{a0 + 4 + r}'),
                lambda: e(f'v_cvt_pk_bf16_f32 v{V_PK + 2 * r + 1}, v{a0 + 8 + r}, v{a0 + 12 + r}'),
                lambda: s.vmem(f'buffer_store_dwordx2 {vr(V_PK + 2 * r, 2)}, v{V_OUT}, {srd(SW1 if k // 8 else SA)}, s{56 + r} offen offset:{(k % 8) * 512} sc1', ('S', k, r))]
    for k in range(16):
        s.c(f'--- joint step {k}')
        if k < 15:
            s.wait(lg=lambda t_: True)
            bar(f'J{k}')
        pos = {}
        if k < 15:
            for ka in range(8):
                pos.setdefault(2 * ka, []).append(lambda ka=ka: rd_j(k + 1, ka))
        if k == 0:
            for ka in range(2, 8):
                pos.setdefault(2 * ka - 3, []).append(lambda ka=ka: ld_wo(3, ka))
        if k > 0:
            fl = [f for r in range(4) for f in epi(k - 1, r)]
            for i, f in enumerate(fl):
                pos.setdefault(9 + (3 * i) // 2, []).append(f)
        for tau in range(4):
            if o.cst >= 48 and 0 <= k - (o.cst - 48) < 4:
                r_ = 64 + 2 * (4 * (k - (o.cst - 48)) + tau)
                e(f's_memtime s[{r_}:{r_ + 1}]')
            for ka in range(8):
                s.wait(vm=[('O', tau, ka)], lg=[('A', k, ka)])
                acc = vr(V_ACC + 16 * (k % 2) + 4 * tau)
                e(f'v_mfma_f32_16x16x32_bf16 {acc}, {vr(jreg(k, ka))}, {vr(WO_BASE[tau] + 4 * ka)}, {"0" if ka == 0 else acc}')
                s.nmfma += 1
                for f in pos.get(tau * 8 + ka, []):
                    f()
    e('s_nop 7')
    for r in range(4):
        for f in epi(15, r):
            f()
    if o.span:
        e('s_waitcnt vmcnt(0)', 's_memrealtime s[48:49]', 's_waitcnt lgkmcnt(0)', 'v_mov_b32 v2, s94', 'v_mov_b32 v3, s48', f's_lshl_b32 s48, s2, 2', f's_add_u32 s48, s48, {sW4}',
          's_lshl_b32 s48, s48, 3', f's_add_u32 s48, s48, {WS_DIAG}', 'v_mov_b32 v1, 0', 's_mov_b64 exec, 1', f'buffer_store_dwordx2 v[2:3], v1, {srd(SWS)}, s48 offen')
    if o.span == 2:
        mk_srd(s, SB, S_DBG, 256)
        e('s_not_b32 s50, s94', 'v_mov_b32 v2, s50', 's_sub_u32 s51, s48, s94', 's_nop 0')
        e(f'buffer_atomic_umax v2, v1, {srd(SB)}, 0 offen offset:8 sc1', f'buffer_atomic_umax v3, v1, {srd(SB)}, 0 offen offset:12 sc1',
          'v_sub_u32 v4, v3, v2', 'v_not_b32 v2, v2', 'v_sub_u32 v4, v3, v2', f'buffer_atomic_umax v4, v1, {srd(SB)}, 0 offen offset:16 sc1', f'buffer_atomic_umax v2, v1, {srd(SB)}, 0 offen offset:20 sc1')
    if o.diag:
        e('s_memtime s[48:49]', 's_waitcnt vmcnt(0)', 's_memtime s[50:51]', 's_waitcnt lgkmcnt(0)', 'v_mov_b32 v1, 0', 's_nop 1')
        cflush()
        if o.cst >= 0:
            for i in range(16):
                e(f'v_writelane_b32 v1, s{64 + 2 * i}, {i}')
        e('v_writelane_b32 v1, s48, 16', 'v_writelane_b32 v1, s50, 17')
        e(f's_lshl_b32 s48, s2, 2', f's_add_u32 s48, s48, {sW4}', 's_lshl_b32 s48, s48, 11', f's_add_u32 s48, s48, {WS_DIAG + 768}', f'v_lshrrev_b32 v2, 2, v{V_JLO}')
        for i, r in enumerate((1, 22, 23, 0)):
            e(f'buffer_store_dword v{r}, v2, {srd(SWS)}, s48 offen offset:{i * 256}')
    e('s_endpgm')
    return s, ool


H_S1, H_HS, H_S2, H_L16, H_FLAG, H_HP, H_FP, H_C2, H_EB, H_TMP, H_ONE, H_JHI, H_ZERO, H_CP = 22, 26, 27, 31, 32, 33, 34, 35, 36, 37, 38, 39, 40, 41
H_STAMP = 42
H_PV = 45
H_JH2 = 46
H_ARR = 47
H_D, H_T, H_B, H_EA, H_WF = 48, 80, 96, 112, 128
H_EAB = [112, 2]
H_MX = 18
sGC1, sSLOW, sGEF, sSPIN = 's49', ('s52', 's79'), 's53', 's54'
sHPM = 's[56:57]'
sEX16 = 's[58:59]'
sRET = 's[60:61]'
sPM = 's[62:63]'
sFOFF = 's65'
sPD, sPT = 's64', 's48'
sBU = 's66'
SPIN_LIMIT = 1 << 15


def gen_helper(o, p):
    s = Stream('H')
    s.vm = list(p.vm)
    e = s.e
    ool = Stream('Hool')
    x = ool.e
    nstamp = [0]
    cur = ['P0']
    pend = []

    def flush_stamps():
        if pend:
            s.drain(vm=False)
            for i, r in pend:
                e(f'v_writelane_b32 v{H_STAMP + i // 64}, s{r}, {i % 64}')
            pend.clear()

    def stamp(name, real=False):
        if o.diag and nstamp[0] < 192:
            i = nstamp[0]
            o.names.append(name)
            if len(pend) >= 4:
                flush_stamps()
            r = 84 + 2 * len(pend)
            e(f's_memrealtime s[{r}:{r + 1}]' if real else f's_memtime s[{r}:{r + 1}]')
            pend.append((i, r))
            nstamp[0] += 1

    def bar(name, vmp=None, lgp=None):
        s.wait(vm=vmp or (lambda t_: t_[0] != cur[0]), lg=lgp or (lambda t_: True))
        s.barrier(name)

    def vm(line, kind):
        s.vmem(line, (cur[0], kind))

    o.names = []
    stamp('rt0', True)
    stamp('t0')

    def dma_img(buf, av, soff, flags, kind, pre, idx=range(5)):
        def one(i):
            if i == 0 and pre:
                pre()
            if i < 4:
                e(f's_add_u32 m0, {sHW1K}, {buf + 4096 * i}')
                e(f's_mov_b32 s68, {soff}' if soff else 's_nop 0')
            else:
                e(f's_mov_b32 m0, {buf + 16384}', f's_mov_b64 exec, {sEX16}')
                if soff:
                    e(f's_mov_b32 s68, {soff}')
            vm(f'buffer_load_dwordx4 v{av + i}, {srd(SA)}, {"s68" if soff else "0"} offen{flags} lds', kind)
            if i == 4:
                e('s_mov_b64 exec, -1')
        return [lambda i=i: one(i) for i in idx]

    def dma_x(st, idx=range(5)):
        b, c64, p_ = st >> 3, (st >> 1) & 3, st & 1
        pre = (lambda: mk_srd(s, SA, S_X, 8192000, add=8192000)) if st == 8 else None
        return dma_img(L_X[st & 1], H_XV + 5 * p_, c64 * 128, '', 'x', pre, idx)

    def dma_w(k):
        def one(j):
            e(f's_add_u32 m0, {sHW1K}, {L_SLOT[k % 3] + j * 4096}', f's_mov_b32 s68, {w1_off(k, j)}')
            vm(f'buffer_load_dwordx4 v{H_WD}, {srd(SW1)}, s68 offen lds', 'w')
        return [lambda j=j: one(j) for j in range(sub(k)['T'])]

    def now(fs):
        for f in fs:
            f()

    def pf_x(st, half):
        b, c64, p_ = st >> 3, (st >> 1) & 3, st & 1
        for i in (range(0, 5) if half == 0 else range(5, 9)):
            for hh in range(2):
                e(f's_load_dword s78, s[{74 + 2 * b}:{75 + 2 * b}], {i * 1024 + p_ * 512 + c64 * 128 + hh * 64}')

    t = 224
    sp, gam = f'v{E_SP}', f'v{E_GAM}'
    e(f's_lshl_b32 s73, {sW4}, 4', 's_mov_b64 s[76:77], 0xffff', f's_lshl_b64 {sEX16}, s[76:77], s73')
    cur[0] = 'P1'
    now(dma_w(2))
    e(f's_mov_b32 s68, {T0 & 0xffffffff}', f's_mov_b32 s69, {T0 >> 32}')
    for i in range(2, 4):
        e(f's_add_u32 s73, {sW4}, {4 * i}')
        img_addr(e, H_XV + i, 's73', 's67', 9, t + 3)
    for i in range(5):
        e(f'v_add_u32 v{H_XV + 5 + i}, 512, v{H_XV + i}')
    now(dma_x(1))
    stamp('x_issued')
    e(f's_lshl_b32 s68, {sNQ}, 2', f's_add_u32 s68, s68, {sW4}', 's_mul_i32 s68, s68, 18', 's_add_u32 s68, s68, s67', 's_sub_u32 s68, s68, 7',
      's_max_i32 s68, s68, 0', 's_min_i32 s68, s68, 15982', 's_lshl_b32 s68, s68, 9', f's_add_u32 s74, s{S_X}, s68', f's_addc_u32 s75, s{S_X + 1}, 0',
      's_add_u32 s76, s74, 8192000', 's_addc_u32 s77, s75, 0')
    if o.pfx and o.pf0 == 1:
        pf_x(2, 0)
    l16, kq = f'v{t + 6}', f'v{t + 7}'
    e(f'v_and_b32 {l16}, 15, v0', f'v_lshrrev_b32 {kq}, 4, v0', f'v_lshlrev_b32 v{H_L16}, 4, v0')
    e(f'v_mov_b32 v{H_C2}, {fbits(GC2)}', f's_mov_b32 {sGC1}, {fbits(GC1)}', 's_mov_b32 s50, 0x05040100', 's_mov_b32 s51, 0x07060302')
    e(f'v_mov_b32 v{H_ONE}, 1', f'v_mov_b32 v{H_ZERO}, 0')
    flag_addr(e, H_FLAG, t + 8)
    mk_srd(s, SD, S_DBG, 256)
    cur[0] = 'P2'
    e(f's_lshl_b32 s68, s2, 2', f's_add_u32 s68, s68, {sW4}', f'v_lshlrev_b32 v{t + 8}, 3, {l16}')
    mk_srd(s, SB, S_W2, 1966080)
    e('s_cmp_lt_u32 s68, 480', 's_cbranch_scc1 L_prep_w2', 's_cmp_lt_u32 s68, 544', 's_cbranch_scc1 L_prep_fo')
    e(f's_mov_b32 {sPD}, {OOB}', f's_mov_b32 {sPT}, 0', f'v_mov_b32 v{t + 9}, {OOB}', 's_mov_b32 s70, 0', 's_mov_b32 s71, 0', 's_mov_b32 s72, 0', 's_mov_b32 s73, 0')
    e('L_prep_done:')
    x('L_prep_w2:')
    x('s_lshr_b32 s69, s68, 5', 's_lshr_b32 s70, s68, 2', 's_and_b32 s70, s70, 7', 's_and_b32 s55, s68, 3')
    x('s_lshl_b32 s72, s55, 5', 's_add_u32 s72, s72, s70', 's_lshl_b32 s72, s72, 4', 's_and_b32 s73, s69, 1', 's_lshl_b32 s73, s73, 3', 's_add_u32 s72, s72, s73',
      's_lshr_b32 s73, s69, 1', 's_add_u32 s72, s72, s73', 's_lshl_b32 s72, s72, 10', f's_add_u32 {sPD}, s72, {WS_W2F}', f's_mov_b32 {sPT}, 131072')
    x('s_lshl_b32 s72, s69, 17', 's_lshl_b32 s73, s70, 14', 's_add_u32 s72, s72, s73', 's_lshl_b32 s73, s55, 7', 's_add_u32 s70, s72, s73')
    x(f'v_lshl_add_u32 v{t + 9}, {kq}, 12, v{t + 8}', 's_mov_b32 s71, 512', 's_mov_b32 s72, 2048', 's_branch L_prep_done')
    x('L_prep_fo:')
    x('s_cmp_lt_u32 s68, 512', f's_cselect_b32 s{SB}, s{S_WF}, s{S_WO}', f's_cselect_b32 s{SB + 1}, s{S_WF + 1}, s{S_WO + 1}', f's_mov_b32 s{SB + 2}, 131072')
    x('s_sub_u32 s69, s68, 480', 's_and_b32 s70, s69, 7', 's_lshr_b32 s55, s69, 3')
    x('s_lshl_b32 s72, s55, 5', 's_add_u32 s72, s72, s70', 's_lshl_b32 s72, s72, 10', f's_add_u32 {sPD}, s72, {WS_WFF}', f's_mov_b32 {sPT}, 8192')
    x('s_lshr_b32 s72, s70, 1', 's_lshl_b32 s72, s72, 15', 's_and_b32 s73, s70, 1', 's_lshl_b32 s73, s73, 10', 's_add_u32 s72, s72, s73',
      's_and_b32 s73, s55, 3', 's_lshl_b32 s73, s73, 7', 's_add_u32 s70, s72, s73')
    x(f'v_lshl_add_u32 v{t + 9}, {kq}, 13, v{t + 8}', 's_mov_b32 s71, 2048', 's_mov_b32 s72, 512', 's_branch L_prep_done')
    for jj in range(8):
        if jj == 4:
            e('s_add_u32 s70, s70, s72')
        e('s_mov_b32 s73, s70' if jj % 4 == 0 else 's_add_u32 s73, s73, s71')
        vm(f'buffer_load_dwordx2 {vr(H_D + 2 * jj, 2)}, v{t + 9}, {srd(SB)}, s73 offen', 'pin')
    e(f'v_or_b32 v{t + 8}, {sW4}, v0', f'v_cmp_eq_u32 vcc, 0, v{t + 8}', f'v_mov_b32 v{t + 9}, {OOB}', 's_nop 0', f'v_cndmask_b32 v{H_ARR}, v{t + 9}, v{t + 8}, vcc')
    for i in range(4):
        e(f'v_mov_b32 v{H_B + i}, -1')

    def resets(st_, tr):
        def fl():
            st_.e('s_mov_b64 exec, 3')
            tr(f'buffer_store_dword v{H_ZERO}, v{H_FLAG}, {srd(SWS)}, 0 offen sc1')
            st_.e('s_mov_b64 exec, -1')

        def ft(i):
            st_.e(f's_lshl_b32 s68, {sW4}, 20', f's_lshl_b32 s69, {sG}, 10', 's_add_u32 s68, s68, s69', f's_add_u32 s68, s68, {WS_F + i * 256 * K}')
            tr(f'buffer_store_dwordx4 {vr(H_B)}, v{H_L16}, {srd(SWS)}, s68 offen sc1')
        return [fl] + [lambda i=i: ft(i) for i in range(4)]

    def arrive(st_, tr):
        tr(f'buffer_atomic_add v{H_ONE}, v{H_ARR}, {srd(SD)}, 0 offen sc1')

    def prep_b(tau):
        s.wait(vm=lambda t_: t_[1] == 'pin')
        for m_ in range(4):
            e(f'v_perm_b32 v{H_T + 4 * tau + m_}, v{H_D + 4 * m_ + 2 + (tau >> 1)}, v{H_D + 4 * m_ + (tau >> 1)}, {"s51" if tau & 1 else "s50"}')
        vm(f'buffer_store_dwordx4 {vr(H_T + 4 * tau)}, v{H_L16}, {srd(SWS)}, {sPD} offen sc1', 'pst')
        e(f's_add_u32 {sPD}, {sPD}, {sPT}')
    c8, row8 = gam, sp
    e(f's_and_b32 s70, {sW4}, 1', 's_lshl_b32 s71, s70, 3', f's_lshr_b32 s72, {sW4}, 1')
    for hh in range(2):
        e(f'v_lshlrev_b32 v{t + 9}, 1, {c8}', f'v_or_b32 v{t + 9}, {hh}, v{t + 9}', f'v_or_b32 v{t + 10}, s71, {row8}',
          f'v_xor_b32 v{t + 9}, v{t + 9}, v{t + 10}', f'v_lshlrev_b32 v{t + 10}, 8, v{t + 10}', f'v_lshl_add_u32 v{t + 9}, v{t + 9}, 4, v{t + 10}',
          's_lshl_b32 s68, s72, 12', f'v_add_u32 v{H_S1 + hh}, s68, v{t + 9}')
    e(f's_lshl_b32 s68, {sM}, 14', 's_lshl_b32 s69, s72, 7', 's_add_u32 s68, s68, s69', 's_lshl_b32 s69, s70, 13', 's_add_u32 s68, s68, s69',
      f'v_lshlrev_b32 v{t + 9}, 10, {row8}', f'v_lshl_add_u32 v{t + 9}, {c8}, 4, v{t + 9}', f'v_add_u32 v{H_HS}, s68, v{t + 9}')
    e(f's_mul_i32 s68, {sW4}, 2080', f'v_and_b32 v{t + 12}, 7, {l16}', f'v_lshl_add_u32 v{t + 11}, {l16}, 7, s68')
    for nh in range(2):
        e(f'v_or_b32 v{t + 13}, {4 * nh}, {kq}', f'v_xor_b32 v{t + 13}, v{t + 13}, v{t + 12}', f'v_lshl_add_u32 v{H_S2 + nh}, v{t + 13}, 4, v{t + 11}')
    e(f's_cmp_eq_u32 {sW4}, 0', f's_cselect_b64 {sPM}, -1, 0', f's_cselect_b32 s71, 0, {OOB}', f'v_mov_b32 v{H_CP}, s71')
    e(f's_lshl_b32 s68, {sM2}, 1', 's_sub_u32 s68, s68, 1', f'v_add_u32 v{t + 9}, s68, {kq}', f'v_cmp_gt_u32 vcc, 64, v{t + 9}',
      f'v_lshlrev_b32 v{t + 9}, 9, v{t + 9}', f'v_lshrrev_b32 v{t + 10}, 2, {l16}', f'v_lshl_add_u32 v{t + 9}, v{t + 10}, 7, v{t + 9}', f'v_and_b32 v{t + 10}, 3, {l16}',
      f'v_lshl_add_u32 v{t + 9}, v{t + 10}, 2, v{t + 9}', f's_add_u32 s68, s71, {WS_HFL}', f'v_add_u32 v{H_HP}, s68, v{t + 9}',
      f's_and_b64 {sHPM}, vcc, {sPM}')
    e(f's_lshl_b32 s68, {sW4}, 8', f's_add_u32 s68, s68, {L_EB}', f'v_lshl_add_u32 v{H_EB}, {kq}, 6, s68')
    e(f's_lshl_b32 s68, {sW4}, 11', f'v_add_u32 v{H_JHI}, s68, v{H_L16}')
    e(f'v_add_u32 v{H_JH2}, {77 * K}, v{H_JHI}')
    e('s_cmp_eq_u32 s2, 255', 's_cbranch_scc1 L_h_ge')

    x('L_h_ge:')
    now(resets(ool, x))
    mk_srd(ool, SB, S_G, 8192)
    x(f'v_lshlrev_b32 v{H_TMP}, 9, {l16}', f'v_lshl_add_u32 v{H_TMP}, {kq}, 4, v{H_TMP}')
    for ks in range(8):
        x(f'buffer_load_dwordx4 {vr(H_D + 4 * ks)}, v{H_TMP}, {srd(SB)}, 0 offen offset:{ks * 64}')
    x(f'v_lshlrev_b32 v{H_TMP}, 3, {l16}', f'v_lshl_add_u32 v{H_TMP}, {kq}, 12, v{H_TMP}')
    mk_srd(ool, SB, S_WG, 131072)
    x(f's_lshl_b32 s69, {sW4}, 7')
    for ks in range(8):
        x(f's_add_u32 s68, s69, {ks * 16384}')
        for jj in range(8):
            x(f'buffer_load_dwordx2 {vr(H_WF + 16 * ks + 2 * jj, 2)}, v{H_TMP}, {srd(SB)}, s68 offen offset:{jj * 512}')
    x('s_waitcnt vmcnt(0)')
    for ks in range(8):
        src = H_WF + 16 * ks
        for tau in range(4):
            for m_ in range(4):
                x(f'v_perm_b32 v{H_T + 4 * tau + m_}, v{src + 4 * m_ + 2 + (tau >> 1)}, v{src + 4 * m_ + (tau >> 1)}, {"s51" if tau & 1 else "s50"}')
        x('s_nop 1')
        for tau in range(4):
            acc = vr(H_B + 4 * tau)
            x(f'v_mfma_f32_16x16x32_bf16 {acc}, {vr(H_T + 4 * tau)}, {vr(H_D + 4 * ks)}, {"0" if ks == 0 else acc}')
    x('s_nop 7', f's_mov_b32 s68, {fbits(TC)}')
    for i_ in range(16):
        x(f'v_mul_f32 v{H_B + i_}, s68, v{H_B + i_}')
    for i_ in range(16):
        x(f'v_exp_f32 v{H_EA + i_}, v{H_B + i_}')
    x(f'v_max3_f32 v{H_T}, |v{H_B}|, |v{H_B + 1}|, 0')
    for i_ in range(2, 16, 2):
        x(f'v_max3_f32 v{H_T}, |v{H_B + i_}|, |v{H_B + i_ + 1}|, v{H_T}')
    x(f'v_cmp_lt_f32 vcc, {fbits(126.0)}, v{H_T}')
    x(f'v_and_b32 v{H_T + 1}, 15, v0', f'v_lshrrev_b32 v{H_T + 2}, 4, v0', f'v_lshlrev_b32 v{H_T + 1}, 10, v{H_T + 1}',
      f'v_lshl_add_u32 v{H_T + 1}, v{H_T + 2}, 6, v{H_T + 1}', f's_lshl_b32 s68, {sW4}, 8', f's_add_u32 s68, s68, {WS_EB}', f's_add_u32 s69, s68, {WS_GB - WS_EB}')
    for tau in range(4):
        x(f'buffer_store_dwordx4 {vr(H_EA + 4 * tau)}, v{H_T + 1}, {srd(SWS)}, s68 offen offset:{tau * 16} sc1')
        x(f'buffer_store_dwordx4 {vr(H_B + 4 * tau)}, v{H_T + 1}, {srd(SWS)}, s69 offen offset:{tau * 16} sc1')
    x('s_cmp_lg_u64 vcc, 0', 's_cselect_b32 s70, 1, 0', f'v_mov_b32 v{H_T + 3}, s70', f's_lshl_b32 s68, {sW4}, 2', f's_add_u32 s68, s68, {WS_EBF}',
      's_mov_b64 exec, 1', f'buffer_store_dword v{H_T + 3}, v{H_ZERO}, {srd(SWS)}, s68 offen sc1')
    x('s_waitcnt vmcnt(0)', f'buffer_atomic_add v{H_ONE}, v{H_ZERO}, {srd(SD)}, 0 offen offset:128 sc1', 's_mov_b64 exec, -1')
    for i in range(4):
        x(f'v_mov_b32 v{H_B + i}, -1')
    x('s_branch L_h_join')

    npoll = [0]

    def poll_issue(kind, b):
        if kind in ('cnt', 'ge'):
            line = f'buffer_load_dword v{H_PV}, v{H_CP}, {srd(SD)}, 0 offen offset:{128 if kind == "ge" else 0} sc1'
        else:
            e(f's_mov_b32 s67, {b * 131072}')
            line = f'buffer_load_dword v{H_PV}, v{H_HP if kind == "h" else H_FP}, {srd(SWS)}, s67 offen sc1'
        vm(line, 'poll')
        return kind, line

    def poll_check(kind, line):
        n = npoll[0]
        npoll[0] += 1
        s.wait(vm=lambda t_: t_[1] == 'poll')
        e(f's_mov_b32 {sSPIN}, 0', f'L_poll{n}:')
        e({'cnt': f'v_cmp_le_u32 vcc, 0x100, v{H_PV}', 'ge': f'v_cmp_le_u32 vcc, 4, v{H_PV}'}.get(kind, f'v_cmp_eq_u32 vcc, 1, v{H_PV}'))
        e('s_nop 1', f's_andn2_b64 s[68:69], {sHPM if kind == "h" else sPM}, vcc', f's_cbranch_scc1 L_spin{n}', f'L_pok{n}:')
        stamp(f'x_pok_{kind}{n}')
        if o.diag:
            o.names.append(f's_spin_{kind}{n}')
            e(f'v_writelane_b32 v{H_STAMP + nstamp[0] // 64}, {sSPIN}, {nstamp[0] % 64}')
            nstamp[0] += 1
        x(f'L_spin{n}:', f's_add_u32 {sSPIN}, {sSPIN}, 1', f's_cmp_gt_u32 {sSPIN}, {SPIN_LIMIT}', f's_cbranch_scc1 L_pok{n}', f's_cmp_eq_u32 {sSPIN}, 1',
          f's_cbranch_scc1 L_again{n}', f's_sleep {16 if kind in ("cnt", "ge") else o.slp}', f'L_again{n}:', line, 's_waitcnt vmcnt(0)', f's_branch L_poll{n}')

    Q = []

    def q(cost, *lines):
        Q.append((cost, lambda: e(*lines)))

    def qf(f, cost=0.0):
        Q.append((cost, f))

    done = set()

    def mark(name):
        qf(lambda: done.add(name))

    def run_q(budget, dm=()):
        dm = list(dm)
        avail = min(budget, sum(c_ for c_, _ in Q))
        gap = avail / (len(dm) + 1) if dm else 0
        used, nxt = 0.0, 0.0
        while True:
            while dm and used >= nxt:
                dm.pop(0)()
                nxt += gap
            if not (Q and (used < budget or Q[0][0] == 0)):
                break
            c_, f = Q.pop(0)
            f()
            used += c_
        now(dm)
        return used

    def gelu8(v0_, t0):
        for i in range(8):
            q(.5, f'v_mul_f32 v{t0 + i}, v{v0_ + i}, v{v0_ + i}')
        for i in range(8):
            q(.5, f'v_fma_f32 v{t0 + i}, v{t0 + i}, v{H_C2}, {sGC1}')
        for i in range(8):
            q(.5, f'v_mul_f32 v{t0 + i}, v{t0 + i}, v{v0_ + i}')
        for i in range(8):
            q(1, f'v_exp_f32 v{t0 + i}, v{t0 + i}')
        for i in range(8):
            q(.5, f'v_add_f32 v{t0 + i}, 1.0, v{t0 + i}')
        for i in range(8):
            q(1, f'v_rcp_f32 v{t0 + i}, v{t0 + i}')
        for i in range(8):
            q(.5, f'v_mul_f32 v{v0_ + i}, v{v0_ + i}, v{t0 + i}')

    def pack8(dst, v0_):
        for i in range(4):
            q(.5, f'v_cvt_pk_bf16_f32 v{dst + i}, v{v0_ + 2 * i}, v{v0_ + 2 * i + 1}')

    def epi1_read(b, us):
        for u_ in us:
            for hh in range(2):
                s.lds(f'ds_read_b128 {vr(H_D + 8 * u_ + 4 * hh)}, v{H_S1 + hh} offset:{L_ST + u_ * 8192}', ('e', u_))
        if 0 in us:
            e(f's_add_u32 s68, {sNQ}, {4 * b}', 's_lshl_b32 s68, s68, 20')
            mk_srd(s, SB, S_WS, 1 << 20, add='s68')

    held = []

    def epi1_unit(u_, defer):
        qf(lambda: s.wait(lg=[('e', u_)]))
        gelu8(H_D + 8 * u_, H_T)
        pack8(H_B + 4 * u_, H_D + 8 * u_)
        st_ = lambda: vm(f'buffer_store_dwordx4 {vr(H_B + 4 * u_)}, v{H_HS}, {srd(SB)}, 0 offen offset:{u_ * 256} sc1', 'st')
        qf((lambda: held.append(st_)) if defer else st_)

    def epi2_read(b, gg):
        for kh in range(2):
            for nh in range(2):
                s.lds(f'ds_read_b128 {vr(H_D + 16 * gg + 8 * kh + 4 * nh)}, v{H_S2 + nh} offset:{L_ST + kh * 16640 + gg * 8320}', ('e', gg))
        if gg == 0:
            e(f's_add_u32 s68, {sN8}, {8 * b}', 's_lshl_b32 s68, s68, 8', f's_lshl_b32 s69, {sM2}, 3', 's_add_u32 s68, s68, s69',
              f's_add_u32 s68, s68, {sW4}', 's_lshl_b32 s68, s68, 10', f's_add_u32 {sFOFF}, s68, {WS_F}')
        else:
            e(f's_add_u32 {sFOFF}, {sFOFF}, 4096')

    def epi2_unit(gg):
        qf(lambda: s.wait(lg=[('e', gg)]))
        v_ = H_D + 16 * gg
        for i in range(8):
            q(.5, f'v_add_f32 v{v_ + i}, v{v_ + i}, v{v_ + 8 + i}')
        gelu8(v_, H_EAB[1])
        pack8(v_ + 8, v_)
        for i in range(4):
            q(.5, f'v_min_u32 v{v_ + 8 + i}, -2, v{v_ + 8 + i}')
        qf(lambda: vm(f'buffer_store_dwordx4 {vr(v_ + 8)}, v{H_L16}, {srd(SWS)}, {sFOFF} offen sc1', 'st'))

    def flag_set(k):
        stamp(f'x_preflag{k}')
        s.wait(vm=lambda t_: t_[1] == 'st')
        stamp(f'x_flag{k}')
        e(f's_mov_b64 exec, {1 << k}')
        vm(f'buffer_store_dword v{H_ONE}, v{H_FLAG}, {srd(SWS)}, 0 offen sc1', 'flag')
        e('s_mov_b64 exec, -1')
        done.add(f'flag{k}')

    def ld_wf(i):
        e(f's_lshl_b32 s68, {sW4}, 15', f's_add_u32 s68, s68, {WS_WFF + i * 1024}')
        vm(f'buffer_load_dwordx4 {vr(H_WF + 4 * i)}, v{H_L16}, {srd(SWS)}, s68 offen sc1', 'wf')

    def dma_eb():
        def one(i):
            e(f's_lshl_b32 s68, {sW4}, 12', f's_add_u32 m0, s68, {L_EB + i * 1024}', f's_add_u32 s68, s68, {WS_EB + i * 1024}')
            vm(f'buffer_load_dwordx4 v{H_L16}, {srd(SWS)}, s68 offen sc1 lds', 'eb')

        def fl():
            e(f's_lshl_b32 s68, {sW4}, 2', f's_add_u32 s68, s68, {WS_EBF}')
            vm(f'buffer_load_dword v{H_TMP}, v{H_ZERO}, {srd(SWS)}, s68 offen sc1', 'ebf')
        return [lambda i=i: one(i) for i in range(4)] + [fl]

    def get_ebf():
        s.wait(vm=lambda t_: t_[1] == 'ebf')
        e(f'v_readfirstlane_b32 {sGEF}, v{H_TMP}')

    def ld_f(b, st_=None):
        (st_ or s).e(f's_lshl_b32 s69, {sG}, 10')
        for ka in range(8):
            (st_ or s).e(f's_add_u32 s68, s69, {WS_F + (b * 8 + ka) * 256 * 1024}')
            line = f'buffer_load_dwordx4 {vr(H_D + 4 * ka)}, v{H_L16}, {srd(SWS)}, s68 offen sc1'
            if st_:
                st_.e(line)
            else:
                vm(line, 'f')

    def chk_f(b):
        s.wait(vm=lambda t_: t_[1] in ('f', 'wf'))
        e(f's_mov_b32 {sSPIN}, 0', f'L_fchk{b}:')
        e(f'v_max3_u32 v{H_MX}, v{H_D}, v{H_D + 1}, v{H_D + 2}')
        for i in range(3, 31, 2):
            e(f'v_max3_u32 v{H_MX}, v{H_D + i}, v{H_D + i + 1}, v{H_MX}')
        e(f'v_max_u32 v{H_MX}, v{H_D + 31}, v{H_MX}', f'v_cmp_eq_u32 vcc, -1, v{H_MX}', 's_nop 1', 's_cmp_lg_u64 vcc, 0', f's_cbranch_scc1 L_fspin{b}', f'L_fok{b}:')
        stamp(f'x_fok{b}')
        if o.diag:
            o.names.append(f's_spin_f{b}')
            e(f'v_writelane_b32 v{H_STAMP + nstamp[0] // 64}, {sSPIN}, {nstamp[0] % 64}')
            nstamp[0] += 1
        x(f'L_fspin{b}:', f's_add_u32 {sSPIN}, {sSPIN}, 1', f's_cmp_gt_u32 {sSPIN}, {SPIN_LIMIT}', f's_cbranch_scc1 L_fok{b}', f's_sleep {o.slp}')
        ld_f(b, ool)
        x('s_waitcnt vmcnt(0)', f's_branch L_fchk{b}')

    def fe(b):
        EA = H_EAB[b]
        qf(lambda: chk_f(b), 9)
        for tau in range(4):
            for ka in range(8):
                acc = vr(EA + 4 * tau)
                q(1, f'v_mfma_f32_16x16x32_bf16 {acc}, {vr(H_WF + 32 * tau + 4 * ka)}, {vr(H_D + 4 * ka)}, {"0" if ka == 0 else acc}')
        q(0, 's_nop 7', f's_mov_b32 s55, {fbits(TC)}')
        for i in range(16):
            q(.5, f'v_mul_f32 v{EA + i}, s55, v{EA + i}')
        q(.5, f'v_max3_f32 v{H_MX}, |v{EA}|, |v{EA + 1}|, 0')
        for i in range(2, 16, 2):
            q(.5, f'v_max3_f32 v{H_MX}, |v{EA + i}|, |v{EA + i + 1}|, v{H_MX}')
        q(16, f'v_cmp_lt_f32 vcc, {fbits(126.0)}, v{H_MX}', 's_nop 1', 's_cmp_lg_u64 vcc, 0', f's_cselect_b32 {sSLOW[b]}, 1, {sGEF}',
          f's_cmp_lg_u32 {sSLOW[b]}, 0', f's_cbranch_scc1 L_noexp{b}', *[f'v_exp_f32 v{EA + i}, v{EA + i}' for i in range(16)], f'L_noexp{b}:')

    def eb_read(k):
        for i in range(4):
            s.lds(f'ds_read_b128 {vr(H_B + 4 * i)}, v{H_EB} offset:{k * 1024 + i * 16}', ('eb', k))

    def jstep(k, nxt):
        def head():
            s.wait(lg=[('eb', k)])
            e(f's_cmp_lg_u32 {sSLOW[k // 8]}, 0', f's_cbranch_scc1 L_js{k}')
            for i in range(16):
                e(f'v_fma_f32 v{H_T + i}, v{H_EAB[k // 8] + i}, v{H_B + i}, 1.0')
            e(f'L_jb{k}:')
            if nxt:
                eb_read(k + 1)
        qf(head, 8)
        x(f'L_js{k}:', f's_mov_b32 {sBU}, {WS_GB - L_EB + k * 1024}', f's_call_b64 {sRET}, L_slow{k // 8}', f's_branch L_jb{k}')
        sl = L_J[k % NJ]
        a, off = (H_JHI, sl) if sl < 60 * K else (H_JH2, sl - 77 * K)
        for hf in range(2):
            for i in range(8 * hf, 8 * hf + 8):
                q(1, f'v_rcp_f32 v{H_T + i}, v{H_T + i}')
            for i in range(8 * hf, 8 * hf + 8):
                q(.5, f'v_fma_f32 v{H_T + i}, v{H_T + i}, -2.0, 1.0')
            pack8(H_T + 8 * hf, H_T + 8 * hf)
            qf(lambda hf=hf: s.lds(f'ds_write_b128 v{a}, {vr(H_T + 8 * hf)} offset:{off + hf * 1024}', ('jw', k)))
        mark(('j', k))

    for b in range(2):
        x(f'L_slow{b}:', 's_waitcnt lgkmcnt(0)')
        for i in range(4):
            x(f'buffer_load_dwordx4 {vr(H_B + 4 * i)}, v{H_EB}, {srd(SWS)}, {sBU} offen offset:{i * 16} sc1')
        x('s_waitcnt vmcnt(0)')
        for i in range(16):
            x(f'v_add_f32 v{H_T + i}, v{H_EAB[b] + i}, v{H_B + i}')
        for i in range(16):
            x(f'v_exp_f32 v{H_T + i}, v{H_T + i}')
        for i in range(16):
            x(f'v_add_f32 v{H_T + i}, 1.0, v{H_T + i}')
        x(f's_setpc_b64 {sRET}')

    e('s_branch L_hmain', ';SPLIT', 'L_hmain:', ';HOP')
    bar('P0', lambda t_: t_[0] == 'P0', lambda t_: False)
    wf_next = [0]
    early = [lambda tau=tau: prep_b(tau) for tau in range(4)] + resets(s, lambda l_: vm(l_, 'rst'))
    last_early = [0]
    pf_next = [(6, 5, 4)[o.pf0]]
    pend_flag = []

    def late_flag(dm, at):
        if pend_flag and pend_flag[0][1] != cur[0]:
            k_ = pend_flag.pop(0)[0]
            dm.insert(min(len(dm), at), lambda: flag_set(k_))
    polls = {o.cntp: ('cnt', 0), o.h0p: ('h', 0), 29: ('ge', 0), o.h1p: ('h', 1)}
    assert len(polls) == 4
    for sig in range(48):
        cur[0] = f'B{sig}'
        s.c(f'--- interval {sig}')
        now(held)
        held.clear()
        P = poll_issue(*polls[sig]) if sig in polls else None
        if sig == o.f0p + 1:
            assert not Q
            if o.f0h:
                ld_f(0)
                q(45, 's_nop 0')
            fe(0)
            qf(lambda: eb_read(0))
            for k in range(8):
                jstep(k, True)
        if sig >= o.st0:
            for _ in range(o.stn):
                if early:
                    early.pop(0)()
        if sig == o.arr - 1:
            assert not early and last_early[0] < sig
        if early:
            last_early[0] = sig + 1
        if sig in (16, 32):
            epi1_read(sig // 32, [0])
            epi1_unit(0, sig == 16)
        if sig in (17, 33):
            epi1_read(sig // 32, [1, 2, 3])
            for u_ in (1, 2, 3):
                epi1_unit(u_, sig == 17)
            if sig == 17:
                qf(lambda: held.append(lambda: pend_flag.append((0, cur[0]))))
            else:
                qf(lambda: pend_flag.append((1, cur[0])))
        if sig == 40:
            epi2_read(0, 0)
            epi2_unit(0)
        if sig == 41:
            qf(lambda: epi2_read(0, 1))
            epi2_unit(1)
            qf(lambda: stamp('x_fst0'))
        dm = []
        if not cwin(o, sig):
            if sig % 2 == 0 and 2 <= sig // 2 + 1 < 16:
                dm += dma_x(sig // 2 + 1)
            if 3 <= sig + 2 < 32:
                dm += dma_w(sig + 2)
        for _ in range(o.wfn if sig < 30 else 6):
            if sig > o.cntp and (sig % 2 == 1 or sig == 30) and wf_next[0] < 32:
                dm.append(lambda i=wf_next[0]: ld_wf(i))
                wf_next[0] += 1
        if 36 <= sig <= 38:
            dm += dma_eb()[2 * (sig - 36):2 * (sig - 36) + 2]
        if sig == 40:
            get_ebf()
        T_ = 4 * sub(sig)['T'] + (4 * sub(sig - 1)['T'] if sig else 0)
        nd = len(dm)
        late_flag(dm, 0)
        run_q(T_ - o.qm - nd * o.qd, dm)
        if sig == o.f0p and not o.f0h:
            assert not Q
            ld_f(0)
        if sig == o.arr:
            assert sig > JOIN + 1
            arrive(s, lambda l_: vm(l_, 'arr'))
        e(';HOP')
        if o.pfx and pf_next[0] < 32 and pf_next[0] <= sig + o.pfd and sig not in (15, 16):
            s.wait(lg=lambda t_: True)
            pf_x(pf_next[0] // 2, pf_next[0] % 2)
            pf_next[0] += 1
            if sig == 0 and o.pf0 == 1:
                pf_x(pf_next[0] // 2, pf_next[0] % 2)
                pf_next[0] += 1
        if P:
            if P[0] == 'h':
                assert f'flag{polls[sig][1]}' in done
            poll_check(*P)
        lgp = lambda t_: t_[0] == 'e' or (t_[0] == 'jw' and t_[1] <= 0 and sig == 47)
        if sig == 47:
            assert ('j', 0) in done
        vmp = {0: lambda t_: t_[0] == 'P0b', o.arr - 1: lambda t_: t_[0] != cur[0], 40: lambda t_: t_[1] == 'eb'}.get(sig, lambda t_: t_[0] != cur[0] and t_[1] in ('x', 'w'))
        bar(f'B{sig}', vmp, lgp)
        if sig == JOIN:
            e('L_h_join:')
    assert wf_next[0] == 32
    for k in range(15):
        cur[0] = f'J{k}'
        s.c(f'--- joint interval {k}')
        if k <= 1:
            print(f'j steps done before HJ{k}:', sorted(d_[1] for d_ in done if d_[0] == 'j'), file=sys.stderr)
            cut = 0 if k == 0 else next((i + 1 for i, it in enumerate(Q) if it[1].__name__ == 'u0end'), 0)
            rest = Q[cut:]
            del Q[cut:]
            qf(lambda k=k: epi2_read(1, k))
            epi2_unit(k)
            if k == 0:
                def u0end():
                    pass
                qf(u0end)
            else:
                qf(lambda: (stamp('x_fst1'), done.add('fst1')))
            Q.extend(rest)
        if k == o.f1p + 1:
            rest = Q[:]
            Q.clear()
            fe(1)
            Q.extend(rest)
            for k_ in range(8, 16):
                jstep(k_, k_ < 15)
        if k < 7:
            run_q(o.qj if k else o.qj0)
        while ('j', k + 1) not in done:
            run_q(1)
        if k >= 7:
            run_q(o.joff)
        if k == o.f1p:
            assert 'fst1' in done
            ld_f(1)
        bar(f'J{k}', lambda t_: False, lambda t_: t_[0] == 'e' or (t_[0] == 'jw' and t_[1] <= k + 1))
    assert not Q
    if o.diag:
        flush_stamps()
        stamp('end')
        stamp('rt1', True)
        flush_stamps()
        e(f's_lshl_b32 s68, s2, 2', f's_add_u32 s68, s68, {sW4}', 's_lshl_b32 s68, s68, 11', f's_add_u32 s68, s68, {WS_DIAG}', f'v_lshlrev_b32 v{H_TMP}, 2, v0')
        for i in range(3):
            e(f'buffer_store_dword v{H_STAMP + i}, v{H_TMP}, {srd(SWS)}, s68 offen offset:{i * 256}')
    e('s_endpgm')
    return s, ool


def sizes_of(lines):
    import subprocess, re, os
    body = [l for l in lines]
    labels = set(re.findall(r'\bL[\w]+', '\n'.join(l.split(';')[0] for l in body)))
    defined = set(l.strip()[:-1] for l in body if l.strip().endswith(':'))
    txt = '.amdgcn_target "amdgcn-amd-amdhsa--gfx950"\n.text\n' + '\n'.join(body) + '\n' + ''.join(f'{l}:\n' for l in labels - defined) + 's_endpgm\n'
    open('_sz.s', 'w').write(txt)
    subprocess.run(['clang', '-x', 'assembler', '-target', 'amdgcn-amd-amdhsa', '-mcpu=gfx950', '-c', '_sz.s', '-o', '_sz.o'], check=True)
    d = subprocess.run(['llvm-objdump', '-d', '--mcpu=gfx950', '_sz.o'], capture_output=True, text=True).stdout
    ad = [int(m, 16) for m in re.findall(r'// ([0-9A-F]{12}):', d)]
    out, k = [], 0
    for l in body:
        t = l.split(';')[0].strip()
        if not t or t.endswith(':'):
            out.append(0)
        else:
            out.append(ad[k + 1] - ad[k])
            k += 1
    assert k == len(ad) - 1
    return out


def warm_pages(o, cl, cool, hl):
    isbar = lambda l: l.strip().startswith('s_barrier')
    base = cl + cool + hl
    sz = sizes_of(base)
    nc, h0 = len(cl), len(cl) + len(cool)
    hops = {}
    for it in range(8):
        out, pc, page, nb, sites = [], 0, 1, 0, []
        for i, l in enumerate(base):
            if i == h0:
                nb = 0
            if i >= h0 and l.strip() == ';HOP':
                for pg in hops.get(nb, []):
                    out += ['    s_mov_b64 exec, 0', f'    s_branch L_pg{pg}', f'L_pb{pg}:', '    s_mov_b64 exec, -1']
                    pc += 12
            if sz[i] and pc >= page * 4096:
                if i < nc or (i >= h0 and nb in o.busy):
                    out += [f'L_pg{page}:', f'    s_cbranch_execz L_pb{page}']
                    sites.append((page, nb, i >= h0))
                    pc += 4
                page += 1
            out.append(l)
            pc += sz[i]
            if isbar(l):
                nb += 1
        new = {}
        busy = o.busy
        for pg, b, own in sites:
            k = max(b - (3 if own else 2), 0)
            while k > 0 and (k in busy or (k < 31 and k % 2) or len(new.get(k, [])) >= (1 if k < 31 else 2)):
                k -= 1
            new.setdefault(k, []).append(pg)
        if new == hops:
            print('pages', sites, 'hops', hops, file=sys.stderr)
            return out
        hops = new
    raise RuntimeError('no fixpoint')


def gen(o):
    p = gen_entry(o)
    c, cool = gen_compute(o, p)
    h, ool = gen_helper(o, p)
    assert c.nbar == h.nbar, (c.nbar, h.nbar)
    errs = lint(p.l + c.l, 'C') + lint(p.l + h.l, 'H') + lint(ool.l, 'ool') + lint(cool.l, 'cool')
    for x in errs:
        print('LINT', x, file=sys.stderr)
    hdr = open('standalone__seq2seq_rnn_t_joint__speech.s.ref').read().split('\n')
    hdr = [l for l in hdr if l.startswith(';') and '@launch' not in l]
    out = '\n'.join(hdr[:11]) + '\n'
    out += '; @launch grid=(256,1,1) block=(512,1,1) lds=163840\n'
    out += f'''.amdgcn_target "amdgcn-amd-amdhsa--gfx950"
.text
.globl {KN}
.p2align 8
.type {KN},@function
{KN}:
'''
    cut = next(i for i, l in enumerate(h.l) if l.strip() == ';SPLIT')
    h1, h2 = h.l[:cut], h.l[cut + 1:]
    body = warm_pages(o, c.l, cool.l, h2) if o.warm else c.l + cool.l + h2
    out += p.text() + '\n'.join(h1) + '\n.p2align 12\nL_compute:\n' + '\n'.join(body) + '\n' + ool.text() + 'L_exit:\n    s_endpgm\n'
    out += f'''.section .rodata,"a"
.p2align 6
.amdhsa_kernel {KN}
  .amdhsa_next_free_vgpr 256
  .amdhsa_next_free_sgpr {102 if o.diag else 96}
  .amdhsa_accum_offset 256
  .amdhsa_group_segment_fixed_size 0
  .amdhsa_kernarg_size 80
  .amdhsa_user_sgpr_count 2
  .amdhsa_user_sgpr_kernarg_segment_ptr 1
  .amdhsa_system_sgpr_workgroup_id_x 1
.end_amdhsa_kernel
'''
    print(f'mfma={c.nmfma} barriers={c.nbar} lines C={len(c.l)} H={len(h.l)} ool={len(ool.l)} lint={len(errs)}', file=sys.stderr)
    return out


if __name__ == '__main__':
    o = Opt()
    outp = sys.argv[1]
    for a in sys.argv[2:]:
        k, v = a.split('=')
        assert hasattr(o, k), k
        setattr(o, k, tuple(int(y) for y in v.split(',') if y) if k == 'cw' else float(v) if '.' in v else int(v))
    txt = gen(o)
    if o.diag:
        txt += '; STAMPS ' + ' '.join(o.names) + '\n; CSTAMPS ' + ' '.join(o.cnames) + '\n'
    open(outp, 'w').write(txt)
```

```python
import re

_RNG = re.compile(r'^(-|neg\()?(abs\(|\|)?([vsa])\[(\d+):(\d+)\]')
_ONE = re.compile(r'^(-|neg\()?(abs\(|\|)?([vsa])(\d+)\b')


def regs(op):
    op = op.strip()
    m = _RNG.match(op)
    if m:
        return [(m.group(3), i) for i in range(int(m.group(4)), int(m.group(5)) + 1)]
    m = _ONE.match(op)
    if m:
        return [(m.group(3), int(m.group(4)))]
    if op.startswith('vcc'):
        return [('s', 'vcc')]
    if op.startswith('m0'):
        return [('s', 'm0')]
    if op.startswith('exec'):
        return [('s', 'exec')]
    return []


TRANS = ('v_exp_f32', 'v_rcp_f32', 'v_log_f32', 'v_rsq_f32', 'v_sqrt_f32')


def parse(line):
    s = line.split(';')[0].strip()
    if not s or s.endswith(':'):
        return None
    p = s.split(None, 1)
    mn = p[0]
    ops = [] if len(p) == 1 else [x.strip() for x in re.split(r',\s*(?![^\[]*\])', p[1])]
    R = [regs(o) for o in ops]
    fl = lambda L: [x for y in L for x in y]
    if mn.startswith('buffer_load'):
        if ' lds' in s:
            return mn, [], fl(R) + [('s', 'm0')]
        return mn, R[0], fl(R[1:])
    if mn.startswith('buffer_store') or mn.startswith('ds_write') or mn.startswith('buffer_atomic'):
        return mn, [], fl(R)
    if mn.startswith('global_load'):
        return mn, R[0], fl(R[1:])
    if mn.startswith('ds_read'):
        return mn, R[0], fl(R[1:])
    if mn.startswith('s_cmp') or mn.startswith('s_cbranch') or mn in ('s_barrier', 's_waitcnt', 's_nop', 's_branch', 's_sleep', 's_setprio', 's_endpgm'):
        return mn, [], fl(R)
    if mn.startswith('v_fmac') or mn.startswith('v_writelane'):
        return mn, R[0], fl(R)
    if mn in ('v_add_co_u32',):
        return mn, R[0] + R[1], fl(R[2:])
    if mn.startswith('v_cndmask') and len(ops) == 4:
        return mn, R[0], fl(R[1:])
    return mn, R[0] if R else [], fl(R[1:])


class Stream:
    def __init__(s, name):
        s.name = name
        s.l = []
        s.vm = []
        s.lg = []
        s.nbar = 0
        s.nmfma = 0
        s.age = {}
        s.ev = []
        s.open = {}
        s.ext = None

    def e(s, *lines):
        for x in lines:
            for y in x.split('\n'):
                y = y.strip()
                if y:
                    s.l.append(y if y.endswith(':') else '    ' + y)

    def c(s, txt):
        s.l.append('    ; ' + txt)

    def _ev(s, tag, mem, line):
        tag = tuple(list(tag))
        s.age[id(tag)] = (s.nmfma, tag)
        if mem:
            ev = dict(st=s.name, kind=mem[0], lo=mem[1], hi=mem[1] + mem[2], issue=s.nbar, done=None, line=line, tag=tag)
            s.ev.append(ev)
            s.open[id(tag)] = ev
        return tag

    def _retire(s, tags):
        for t_ in tags:
            ev = s.open.pop(id(t_), None)
            if ev:
                ev['done'] = s.nbar

    def vmem(s, line, tag, mem=None):
        s.e(line)
        s.vm.append(s._ev(tag, mem, line))

    def lds(s, line, tag, mem=None):
        s.e(line)
        s.lg.append(s._ev(tag, mem, line))

    def _need(s, q, pred):
        idx = -1
        for i, t in enumerate(q):
            if pred(t):
                idx = i
        return idx

    def wait(s, vm=None, lg=None):
        def mk(p):
            if p is None:
                return None
            if callable(p):
                return p
            P = set(p) if isinstance(p, (list, set)) else {p}
            return lambda t: t in P
        parts = []
        p = mk(vm)
        if p:
            i = s._need(s.vm, p)
            if i >= 0 and s.ext:
                while i + 1 < len(s.vm) and s.nmfma - s.age.get(id(s.vm[i + 1]), (s.nmfma,))[0] >= s.ext[0] and s.ext[2](s.vm[i + 1]):
                    i += 1
            if i >= 0:
                n = min(len(s.vm) - 1 - i, 63)
                parts.append(f'vmcnt({n})')
                s._retire(s.vm[:len(s.vm) - n])
                s.vm = s.vm[len(s.vm) - n:] if n else []
        p = mk(lg)
        if p:
            i = s._need(s.lg, p)
            if i >= 0 and s.ext:
                while i + 1 < len(s.lg) and s.nmfma - s.age.get(id(s.lg[i + 1]), (s.nmfma,))[0] >= s.ext[1]:
                    i += 1
            if i >= 0:
                n = min(len(s.lg) - 1 - i, 15)
                parts.append(f'lgkmcnt({n})')
                s._retire(s.lg[:len(s.lg) - n])
                s.lg = s.lg[len(s.lg) - n:] if n else []
        if parts:
            s.e('s_waitcnt ' + ' '.join(parts))

    def drain(s, vm=True, lg=True):
        parts = []
        if vm:
            parts.append('vmcnt(0)')
            s._retire(s.vm)
            s.vm = []
        if lg:
            parts.append('lgkmcnt(0)')
            s._retire(s.lg)
            s.lg = []
        s.e('s_waitcnt ' + ' '.join(parts))

    def barrier(s, name=''):
        s.e('s_barrier' + (f' ; {name}' if name else ''))
        s.nbar += 1

    def text(s):
        return '\n'.join(s.l) + '\n'


def lint(lines, name=''):
    last = {}
    st = 0
    errs = []
    storedata = {}
    for ln, line in enumerate(lines):
        p = parse(line)
        if p is None:
            continue
        mn, dst, src = p
        isv = mn.startswith('v_')
        ismf = mn.startswith('v_mfma')
        ismem = mn.startswith('buffer_') or mn.startswith('ds_') or mn.startswith('global_')
        isvm = mn.startswith('buffer_') or mn.startswith('global_')

        def chk(r, kind, need, why):
            w = last.get(r)
            if w and w[0] == 'mfma32' and kind == 'mfma':
                w, need = ('mfma', w[1]), need + 4
            if w and w[0] == kind and st - w[1] - 1 < need:
                errs.append(f'{name}:{ln}: {why} {r} dist {st - w[1] - 1} < {need}: {line.strip()}')
        if ismf:
            ops = [x.strip() for x in re.split(r',\s*(?![^\[]*\])', line.split(';')[0].strip().split(None, 1)[1])]
            d, a, b, c = [regs(o) for o in ops[:4]]
            for r in a + b:
                chk(r, 'valu', 2, 'valu->mfma')
                chk(r, 'trans', 2, 'valu->mfma')
                chk(r, 'mfma', 8, 'mfma->mfmaAB')
            for r in c:
                chk(r, 'valu', 2, 'valu->mfmaC')
                chk(r, 'trans', 2, 'valu->mfmaC')
            if not c or c != d:
                for r in d:
                    chk(r, 'mfma', 8, 'mfma waw')
        else:
            for r in src:
                if r[0] == 'v':
                    if isv or ismem:
                        chk(r, 'mfma', 8, 'mfma->read')
                    if isv and mn not in TRANS:
                        chk(r, 'trans', 1, 'trans->valu')
                    if mn.startswith('v_readfirstlane') or mn.startswith('v_readlane'):
                        chk(r, 'valu', 1, 'valu->readlane')
                        chk(r, 'trans', 1, 'valu->readlane')
                    if mn.startswith('v_permlane') or '_dpp' in mn:
                        chk(r, 'valu', 2, 'valu->permlane')
                elif r[0] == 's':
                    if isvm:
                        chk(r, 'vsgpr', 5, 'valu sgpr->vmem')
                        if r[1] == 'm0':
                            chk(r, 'salu', 1, 'm0->dma')
                    if isv:
                        chk(r, 'vsgpr', 2, 'valu sgpr->valu')
            for r in dst:
                if r[0] == 'v' and (isv or ismem):
                    chk(r, 'mfma', 8, 'mfma waw')
                if r[0] == 'v' and isv and r in storedata and st - storedata[r] - 1 < 2:
                    errs.append(f'{name}:{ln}: store data WAR {r}: {line.strip()}')
        if mn in ('buffer_store_dwordx4', 'buffer_store_dwordx3'):
            for r in src[:4]:
                storedata[r] = st
        for r in dst:
            if r[0] == 'v' or r[0] == 'a':
                kind = ('mfma32' if '32x32' in mn else 'mfma') if ismf else ('trans' if mn in TRANS else ('valu' if isv else 'mem'))
            else:
                kind = 'vsgpr' if isv else 'salu'
            last[r] = (kind, st)
        if mn == 's_nop':
            st += int(line.split()[1]) + 1
        else:
            st += 1
    return errs


def lds_races(streams):
    ev = [e for s in streams for e in s.ev]
    BIG = 10 ** 6
    errs = []
    W = [e for e in ev if e['kind'] == 'w']
    for a in W:
        for b in ev:
            if a is b or b['hi'] <= a['lo'] or a['hi'] <= b['lo']:
                continue
            if b['kind'] == 'w' and a['lo'] == b['lo'] and a['tag'][-1] == b['tag'][-1] and a['st'] == b['st'] and (a['tag'][0] == 'jw' or a['tag'][-1] == 'eb'):
                continue
            da = BIG if a['done'] is None else a['done']
            db = BIG if b['done'] is None else b['done']
            if b['issue'] > da or a['issue'] > db:
                continue
            errs.append(f"{a['st']} {a['tag']} [{a['lo']},{a['hi']}) {a['issue']}..{a['done']}  vs  {b['st']} {b['kind']} {b['tag']} [{b['lo']},{b['hi']}) {b['issue']}..{b['done']}")
    return errs


def lint_async(lines, name=''):
    vm, lg, errs = [], [], []
    for ln, line in enumerate(lines):
        p = parse(line)
        if p is None:
            continue
        mn, dst, src = p
        if mn == 's_waitcnt':
            m = re.search(r'vmcnt\((\d+)\)', line)
            if m:
                n = int(m.group(1))
                vm = vm[len(vm) - n:] if n < len(vm) and n else ([] if n == 0 else vm)
            m = re.search(r'lgkmcnt\((\d+)\)', line)
            if m:
                n = int(m.group(1))
                lg = lg[len(lg) - n:] if n < len(lg) and n else ([] if n == 0 else lg)
            continue
        owed = {r for q in (vm, lg) for d in q for r in d}
        for r in set(src) | set(dst):
            if r in owed:
                errs.append(f'{name}:{ln}: {r} is owed by a load: {line.strip()}')
        if mn.startswith('buffer_') or mn.startswith('global_'):
            vm.append([r for r in dst if r[0] == 'v'])
        elif mn.startswith('ds_'):
            lg.append([r for r in dst if r[0] == 'v'])
    return errs
```

```python
import sys, struct
from stream import Stream, lint, lds_races, lint_async

KN = 'standalone__seq2seq_rnn_t_joint__speech_kernel'
K = 1024
OOB = 0x80000000
WS_H = 0
WS_F = 8 << 20
WS_W2F = 12 << 20
WS_WFF = 14 << 20
WS_WOF = WS_WFF + 128 * K
WS_EB = WS_WFF + 256 * K
WS_GB = WS_EB + 16 * K
WS_EBF = WS_GB + 16 * K
WS_W1F = 18 << 20
WS_HFL = 15 << 20
WS_FFL = WS_HFL + 256 * K
WS_DIAG = 16 << 20
WS_SIZE = 19 << 20
L_SLOT = [0, 60 * K, 92 * K]
L_ST = 28 * K
L_XB = 90 * K
L_X = [124 * K, 141 * K]
L_X2 = 43 * K
L_IMG = [124 * K, 107 * K, 90 * K, 141 * K]
L_EB = 61 * K
L_J = [0, 8 * K, 16 * K, 77 * K, 124 * K, 132 * K, 107 * K, 115 * K]
NJ = len(L_J)
ZT = [2, 0, 3, 1, 0, 2, 4, 3, 7, 4, 6, 5, 0, 6, 4, 7, 2]
T0 = sum(ZT[l] << (4 * l) for l in range(16))
T1 = sum(ZT[l + 1] << (4 * l) for l in range(16))
JOIN = 15


def fbits(x):
    return '0x%08x' % struct.unpack('<I', struct.pack('<f', x))[0]


GC1 = -2 * 0.7978845608028654 * 1.4426950408889634
GC2 = GC1 * 0.044715
TC = 2 * 1.4426950408889634


def vr(b, n=4):
    return f'v[{b}:{b + n - 1}]'


S_X, S_W1, S_W2, S_G, S_WF, S_WG, S_WO, S_OUT, S_DBG, S_WS = 4, 6, 8, 10, 12, 14, 16, 18, 20, 22
sWAVE, sW4, sM, sNQ, sM2, sN8, sG, sHW1K = 's24', 's25', 's26', 's27', 's28', 's29', 's30', 's31'
SA, SW1, SWS, SB, SD = 32, 36, 40, 44, 92


def srd(n):
    return f's[{n}:{n + 3}]'


def mk_srd(s, n, base, nrec, add=None):
    if add is None:
        s.e(f's_mov_b32 s{n}, s{base}', f's_mov_b32 s{n + 1}, s{base + 1}')
    else:
        s.e(f's_add_u32 s{n}, s{base}, {add}', f's_addc_u32 s{n + 1}, s{base + 1}, 0')
    s.e(f's_mov_b32 s{n + 2}, {nrec}', f's_mov_b32 s{n + 3}, 0x20000')


DOC = """;
; One persistent workgroup per CU (256 workgroups, 8 waves): waves 0-3 run the MFMA stream, waves 4-7 ("helpers") stage
; operands, run the activations and handle the hand-offs.  The code is generated (fully unrolled, barrier-delimited intervals).
;          ds_read; rows are interleaved (t = 8*l + block) so one x fragment serves up to 8 taps; the first half of the
;          weight sets is shared by both batches, then batch 0 finishes, then batch 1 (this hides the hand-off latency).
;   conv2  128 rows x 32 channels per batch, K split over wave pairs; w2 comes re-laid-out (fragment order) from d_ws.
;   joint  16 rows x 8 u per batch: helpers compute fe = f @ w_f, j = tanh(fe + ge) = 1 - 2 / (1 + 2^(c*fe) * 2^(c*ge)),
;          c = 2*log2(e) (direct 2^(c*fe + c*ge) whenever either factor could leave the normal range), MFMA waves j @ w_o.
; Hand-offs through d_ws: write-through (sc1) stores; h tiles are announced by flags (reset in this launch, validity counted
; in d_debug), f tiles carry their own readiness (reset to all ones in this launch).  Every wait is bounded.
"""


class Opt:
    diag = 0
    prio = 0
    cst = -1
    pf = 2
    pfx = 1
    pf0 = 3
    pfn = 10
    fr0 = 9
    pfd = 7
    pa = 0
    fplain = 1
    tw1 = (0, 2, 5, 9)
    xf = ' nt sc1'
    hf = ' sc1'
    hs = ' sc1'
    w2f = ' sc1'
    w2g = ' sc1'
    wf = ' sc1'
    of = ' nt sc1'
    of2 = ''
    ofk = 16
    join = 15
    tc = 3
    pfs = 1
    wf14 = 0
    st0 = 2
    stn = 1
    wfn = 6
    arrn = 4
    M = 8
    redir = 1
    lazy = 1
    defer = 0
    skip = 0
    idle = 0
    idle_at = (10,)
    xb = -1
    ext = 10
    extv = 56
    pack = 1
    tf = 0
    tw = 0
    to = 37
    th = 0
    tskip = (17, 31, 32)
    otouch = 0
    bl = 1
    jprio = 3
    jb = (0, 3, 5, 7, 8, 9, 10, 11, 12, 13, 14)
    f1a = 5
    f1b = 7
    joff0 = 8
    arrm = 0
    arr = 8
    cntp = 16
    gep = 35
    h0p = 30
    h1p = 38
    f0p = 43
    f1p = 3
    qm = 3
    qd = 2.0
    qj = 40
    qj0 = 48
    span = 0
    probe = 0
    f0w = 40
    f1c = 22
    joff = 18
    serp = 1
    warm = 1
    busy = set([1, 17, 19, 20, 21, 33, 34, 35, 36, 41, 42] + list(range(45, 70)))
    cw = (24, 25, 26, 27)
    slp = 6


class Plan:
    def __init__(p, M):
        p.M = M
        p.order = [(b, r) for r in range(M) for b in range(2)] + [(0, r) for r in range(M, 16)] + [(1, r) for r in range(M, 16)]
        p.WL = list(range(M)) + 2 * list(range(M, 16))
        p.wn = [sg // 2 if sg < 2 * M else sg - M for sg in range(32)]
        p.wfirst = [p.wn.index(n) for n in range(len(p.WL))]
        p.wslot = [L_SLOT[(n + M) % 3] for n in range(len(p.WL))]
        p.IL = []
        for b, r in p.order:
            if (b, r >> 1) not in p.IL:
                p.IL.append((b, r >> 1))
        p.img = [p.IL.index((b, r >> 1)) for b, r in p.order]
        p.ifirst = [p.img.index(i) for i in range(16)]
        ilast = [31 - p.img[::-1].index(i) for i in range(16)]
        p.ibuf = [L_X[i & 1] for i in range(16)] if M == 0 else [(L_X[1], L_X[0], L_X2)[i % 3] for i in range(M + 1)] + [L_X[(i - M) & 1] for i in range(M + 1, 16)]
        assert M in (0, 8) and p.ibuf[14:] == L_X
        p.eA = p.order.index((0, 15))
        p.win = {}
        p.npi = 3 if M else 2
        for i in range(p.npi, 16):
            prev = max(k for k in range(i) if p.ibuf[k] == p.ibuf[i])
            w = ilast[prev] + 1 if i <= M else p.ifirst[i] - 2
            assert ilast[prev] + 1 <= w <= p.ifirst[i] - 2 or (i <= M and w <= p.ifirst[i] - 1), (i, w)
            p.win.setdefault(w, []).append(('x', i))
        for w, it in ([(0, ('w', 1)), (1, ('x', 2)), (1, ('w', 2))] if M else [(0, ('w', 2)), (0, ('x', 1))]):
            p.win.setdefault(w, []).append(it)
        for n in range(3, len(p.WL)):
            w = p.wfirst[n - 3] + 1 + (1 if M and n == 3 else 0)
            assert w <= p.wfirst[n] - 2
            p.win.setdefault(w, []).append(('w', n))

    def wset(p, n):
        r = p.WL[n]
        return dict(c64=r >> 2, p=(r >> 1) & 1, kh=r & 1, T=8 - ((r >> 1) & 1))


PL = None


def sub(sig):
    if sig < 32:
        b, r = PL.order[sig]
        c64, p, kh = r >> 2, (r >> 1) & 1, r & 1
        return dict(ph=1, b=b, c64=c64, p=p, kh=kh, T=8 - p, first=r == 0, last=r == 15,
                    xbuf=PL.ibuf[PL.img[sig]], bank=PL.wn[sig] & 1, wk=PL.wn[sig], acc=216 if (PL.M and b == 0) else 24)
    g = sig - 32
    b, r = divmod(g, 8)
    c64, p = r >> 1, r & 1
    return dict(ph=2, b=b, c64=c64, p=p, kh=None, T=8 - p, first=r == 0, last=r == 7,
                xbuf=L_IMG[g & 3], bank=(g + 2) % 3, wk=sig, acc=24)


def cwin(o, win):
    return win >= 30 or win in o.cw


def w1_off(n, j):
    d = PL.wset(n)
    return (2 * j + d['p']) * 131072 + (64 * d['c64'] + 32 * d['kh']) * 512


def x_base(s_, b):
    if b:
        s_.e(f's_add_u32 s{SA}, s{S_X}, 8192000', f's_addc_u32 s{SA + 1}, s{S_X + 1}, 0')
    else:
        s_.e(f's_mov_b32 s{SA}, s{S_X}', f's_mov_b32 s{SA + 1}, s{S_X + 1}')


H_XV, H_HV, H_WD = 1, 11, 21
E_SP, E_GAM, E_S = 240, 241, 242


def img_addr(e, dst, lreg, rowbase, shift, t):
    e(f's_lshl_b32 s74, {lreg}, 2', 's_lshr_b64 s[76:77], s[68:69], s74', 's_and_b32 s76, s76, 7',
      f's_lshl_b32 s74, {lreg}, 4', f's_add_u32 s74, s74, {rowbase}', 's_sub_u32 s74, s74, 7')
    e(f'v_lshl_add_u32 v{t}, v{E_S}, 1, s74', f'v_xor_b32 v{t + 1}, s76, v{E_GAM}', f'v_lshlrev_b32 v{t + 1}, 4, v{t + 1}',
      f'v_lshl_add_u32 v{dst}, v{t}, {shift}, v{t + 1}')


def gen_entry(o):
    p = Stream('P')
    e = p.e
    e('s_cmp_ge_u32 s2, 256', 's_cbranch_scc1 L_exit')
    if o.span:
        e('s_memrealtime s[94:95]')
    e('s_load_dwordx4 s[4:7], s[0:1], 0', 's_load_dwordx8 s[8:15], s[0:1], 16', 's_load_dwordx8 s[16:23], s[0:1], 48')
    e('v_lshrrev_b32 v1, 6, v0', 's_and_b32 s70, s2, 7', 's_lshr_b32 s71, s2, 3', f'v_readfirstlane_b32 {sWAVE}, v1', 'v_and_b32 v0, 63, v0')
    if o.serp:
        e('s_bitcmp1_b32 s2, 0', 's_cselect_b32 s72, 0, 31', 's_xor_b32 s71, s71, s72')
    e('s_lshl_b32 s72, s70, 3', 's_lshr_b32 s73, s71, 2', f's_add_u32 {sM}, s72, s73', f's_and_b32 {sNQ}, s71, 3')
    e(f'v_lshrrev_b32 v{E_SP}, 3, v0', f'v_and_b32 v{E_GAM}, 7, v0', f's_and_b32 {sW4}, {sWAVE}, 3', f's_lshl_b32 {sHW1K}, {sW4}, 10')
    e(f's_mov_b32 s68, {T0 & 0xffffffff}', f's_mov_b32 s69, {T0 >> 32}', f's_and_b32 s78, {sW4}, 1', f'v_xor_b32 v{E_S}, s78, v{E_SP}')
    e(f's_lshr_b32 s79, {sWAVE}, 2', 's_xor_b32 s79, s79, 1', 's_lshl_b32 s75, s79, 3', f's_add_u32 s75, s75, {sW4}', f's_lshl_b32 s67, {sM}, 8')
    img_addr(e, H_XV, 's75', 's67', 9, 243)
    e('s_add_u32 s66, s75, 4')
    img_addr(e, H_XV + 1, 's66', 's67', 9, 243)
    e(f'v_and_b32 v243, 2, v{E_SP}', 's_lshl_b32 s78, s78, 2', 'v_or_b32 v243, s78, v243', f'v_xor_b32 v243, v243, v{E_GAM}',
      f's_lshl_b32 s73, {sW4}, 12', f's_lshl_b32 s74, {sNQ}, 7', 's_add_u32 s73, s73, s74',
      f'v_lshlrev_b32 v244, 9, v{E_SP}', 'v_lshl_add_u32 v244, v243, 4, v244', f'v_add_u32 v{H_WD}, s73, v244')
    e(f'v_lshlrev_b32 v245, 1, v{E_SP}', f'v_add_u32 v245, {256 - 7}, v245', f'v_xor_b32 v246, {ZT[16]}, v{E_GAM}', 'v_lshlrev_b32 v246, 4, v246',
      'v_add_u32 v243, s67, v245', f'v_lshl_add_u32 v{H_XV + 4}, v243, 9, v246', f's_lshl_b32 s74, {sWAVE}, 3', 's_mov_b64 s[76:77], 0xff', 's_lshl_b64 s[76:77], s[76:77], s74')
    e('s_lshl_b32 s75, s75, 10', 's_lshl_b32 s65, s79, 14', f's_add_u32 s65, s65, {sHW1K}', 's_lshl_b32 s64, s79, 20')
    e('s_waitcnt lgkmcnt(0)')
    mk_srd(p, SA, S_X, 8192000)
    mk_srd(p, SW1, S_W1, 1966080)
    def img(buf, tag):
        for i in range(2):
            e(f's_add_u32 m0, s75, {buf + 4096 * i}', 's_nop 0')
            p.vmem(f'buffer_load_dwordx4 v{H_XV + i}, {srd(SA)}, 0 offen lds', tag, ('w', buf, 17408) if i == 0 else None)
        e(f's_mov_b32 m0, {buf + 16384}', 's_mov_b64 exec, s[76:77]')
        p.vmem(f'buffer_load_dwordx4 v{H_XV + 4}, {srd(SA)}, 0 offen lds', tag)
        e('s_mov_b64 exec, -1')

    def wset(n, tag):
        for j in range(4):
            e(f's_add_u32 m0, s65, {PL.wslot[n] + j * 4096}', f's_add_u32 s66, s64, {w1_off(n, j)}')
            p.vmem(f'buffer_load_dwordx4 v{H_WD}, {srd(SW1)}, s66 offen lds', tag, ('w', PL.wslot[n], 32768) if j == 3 else None)
    img(PL.ibuf[0], ('P0', ('dl', -1)))
    wset(0, ('P0', ('dl', -1)))
    if PL.M:
        x_base(p, 1)
        img(PL.ibuf[1], ('P0b', ('dl', 0)))
    else:
        wset(1, ('P0b', ('dl', 0)))
    e('s_lshl_b32 s72, s70, 2', 's_lshr_b32 s73, s71, 3', f's_add_u32 {sM2}, s72, s73', f's_and_b32 {sN8}, s71, 7')
    e('s_lshl_b32 s72, s70, 5', f's_add_u32 {sG}, s72, s71')
    mk_srd(p, SWS, S_WS, WS_SIZE)
    e('s_getpc_b64 s[80:81]', 'L_pc:', 's_lshl_b32 s72, s71, 3', f's_add_u32 s72, s72, {sWAVE}', 's_lshl_b32 s72, s72, 6',
      's_add_u32 s80, s80, s72', 's_addc_u32 s81, s81, 0')
    for i in range(o.tc):
        e(f's_load_dword s82, s[80:81], {i * 16384}')
    if o.pf == 2:
        e(f's_and_b32 s72, {sM}, 7', 's_lshl_b32 s72, s72, 18', f's_lshl_b32 s73, {sWAVE}, 11', 's_add_u32 s72, s72, s73', f's_lshl_b32 s73, {sNQ}, 7', 's_add_u32 s72, s72, s73',
          f's_add_u32 s62, s{S_W1}, s72', f's_addc_u32 s63, s{S_W1 + 1}, 0')
        for i in range(15 - o.tc):
            e(f's_load_dword s82, s[62:63], {(i >> 3) * 16384 + ((i >> 1) & 3) * 512 + (i & 1) * 64}')
    if o.pf:
        e('s_lshl_b32 s72, s2, 3', f's_add_u32 s72, s72, {sWAVE}', 's_lshr_b32 s73, s72, 7', 's_min_u32 s73, s73, 14', 's_lshl_b32 s73, s73, 17', 's_and_b32 s72, s72, 127',
          's_lshl_b32 s72, s72, 8', 's_add_u32 s72, s72, s73', f's_add_u32 s64, s{S_W1}, s72', f's_addc_u32 s65, s{S_W1 + 1}, 0')
    if o.pf == 1:
        for c_ in range(3):
            for i in range(4):
                e(f's_load_dword s82, s[64:65], {c_ * 32768 + i * 64}')
    e(f's_cmp_lt_u32 {sWAVE}, 4', 's_cbranch_scc1 L_compute')
    return p


def flag_addr(e, dst, t):
    e(f's_lshl_b32 s68, {sM}, 2', f's_add_u32 s68, s68, {sNQ}', 's_lshl_b32 s68, s68, 5', f's_add_u32 s68, s68, {sW4}', 's_lshl_b32 s68, s68, 2', f's_add_u32 s68, s68, {WS_HFL}')
    e(f's_lshl_b32 s69, {sM2}, 3', f's_add_u32 s69, s69, {sN8}', 's_lshl_b32 s69, s69, 2', f's_add_u32 s69, s69, {sW4}', 's_lshl_b32 s69, s69, 7', f's_add_u32 s69, s69, {WS_FFL}')
    e(f'v_mov_b32 v{t}, s68', f'v_mov_b32 v{t + 1}, s69', 'v_cmp_gt_u32 vcc, 2, v0', f'v_and_b32 v{t + 2}, 1, v0', 's_nop 0',
      f'v_cndmask_b32 v{t}, v{t + 1}, v{t}, vcc', f'v_lshl_add_u32 v{dst}, v{t + 2}, 17, v{t}')


V_D2, V_WO, V_JLO, V_JHI, V_OUT = 1, 2, 3, 4, 5
V_XA2 = 8
V_XA1 = 12
V_WLO, V_WHI, V_D1, V_W2 = 20, 21, 22, 23
V_ACC = 24
V_Z = 56
V_Y = 88
C_XV = [248, 249, 250, 251, 252, 253, 254, 255, 116, 117]
C_WD = 118
V_WB = [120, 152, 184]
V_SP = 216
V_PK = V_WB[2] + 16


def wo_reg(tau, ka):
    if tau < 3:
        return (V_SP, V_WB[0], V_WB[1])[tau] + 4 * ka
    return (12, 16, 20, 248, 252, V_WB[2], V_WB[2] + 4, V_WB[2] + 8)[ka]


def xreg(s_):
    return V_Z + 4 * s_ if s_ < 8 else V_Y + 4 * (s_ - 8)


def gen_compute(o, p):
    s = Stream('C')
    s.vm = list(p.vm)
    s.ev = [dict(e_) for e_ in p.ev]
    s.open = {id(e_['tag']): e_ for e_ in s.ev}
    ool = Stream('Cool')
    if o.ext:
        s.ext = (o.extv, o.ext, lambda t_: t_[0] in ('W', 'O'))
    e, x = s.e, ool.e
    if o.prio:
        e('s_setprio 2')
    t = 224
    e(f'v_and_b32 v{t}, 15, v0', f'v_lshrrev_b32 v{t + 1}, 4, v0', f'v_lshlrev_b32 v{V_JLO}, 4, v0')
    l16, kq = f'v{t}', f'v{t + 1}'
    e(f'v_mov_b32 v{C_XV[2]}, v{H_XV}', f'v_mov_b32 v{C_XV[3]}, v{H_XV + 1}', f'v_mov_b32 v{C_XV[4]}, v{H_XV + 4}', f'v_mov_b32 v{C_WD}, v{H_WD}')
    img_addr(e, C_XV[0], sW4, 's67', 9, t + 8)
    e(f's_add_u32 s73, {sW4}, 4')
    img_addr(e, C_XV[1], 's73', 's67', 9, t + 8)
    for i in range(5):
        e(f'v_add_u32 v{C_XV[5 + i]}, 512, v{C_XV[i]}')
    e(f's_lshl_b32 s73, {sW4}, 4', 's_mov_b64 s[76:77], 0xffff', 's_lshl_b64 s[62:63], s[76:77], s73')
    e(f's_sub_u32 s61, {sM2}, {sM}', 's_lshl_b32 s61, s61, 15')
    mk_srd(s, SB, S_DBG, 256)
    e(f'v_or_b32 v{t + 8}, {sW4}, v0', f'v_cmp_eq_u32 vcc, 0, v{t + 8}', f'v_mov_b32 v{t + 9}, {OOB}', f'v_mov_b32 v{V_SP + 1}, 1', f'v_cndmask_b32 v{V_SP}, v{t + 9}, v{t + 8}, vcc')
    e(f'v_lshlrev_b32 v{t + 2}, 2, {l16}')
    e(f's_mov_b32 s48, {T0 & 0xffffffff}', f's_mov_b32 s49, {T0 >> 32}', f's_mov_b32 s50, {T1 & 0xffffffff}', f's_mov_b32 s51, {T1 >> 32}')
    e(f'v_lshrrev_b64 v[{t + 4}:{t + 5}], v{t + 2}, s[48:49]', f'v_lshrrev_b64 v[{t + 6}:{t + 7}], v{t + 2}, s[50:51]')
    e(f'v_and_b32 v{t + 4}, 7, v{t + 4}', f'v_and_b32 v{t + 6}, 7, v{t + 6}')
    e(f's_lshr_b32 s52, {sW4}, 1', f's_and_b32 s53, {sW4}, 1')
    e('s_lshl_b32 s54, s52, 2')
    for sh in range(2):
        z = f'v{t + 4 + 2 * sh}'
        e(f'v_add_u32 v{t + 8}, {sh}, {l16}', f'v_and_b32 v{t + 9}, 1, v{t + 8}', f'v_lshlrev_b32 v{t + 8}, 10, v{t + 8}',
          f'v_add_u32 v{t + 8}, {L_XB}, v{t + 8}')
        for ee in range(2):
            e(f'v_xor_b32 v{t + 10}, {ee}, v{t + 9}', f'v_lshl_add_u32 v{t + 10}, v{t + 10}, 7, v{t + 8}')
            for kh in range(2):
                e(f'v_or_b32 v{t + 11}, {4 * kh}, {kq}', f'v_xor_b32 v{t + 11}, v{t + 11}, {z}',
                  f'v_lshl_add_u32 v{V_XA1 + sh * 4 + ee * 2 + kh}, v{t + 11}, 4, v{t + 10}')
            e(f'v_or_b32 v{t + 11}, s54, {kq}', f'v_xor_b32 v{t + 11}, v{t + 11}, {z}',
              f'v_lshl_add_u32 v{V_XA2 + sh * 2 + ee}, v{t + 11}, 4, v{t + 10}')
    e(f'v_lshrrev_b32 v{t + 8}, 2, {l16}', f'v_and_b32 v{t + 9}, 3, {l16}')
    e(f'v_and_b32 v{t + 10}, 2, v{t + 8}', f'v_and_b32 v{t + 11}, 1, {kq}', f'v_lshl_add_u32 v{t + 10}, v{t + 11}, 2, v{t + 10}')
    e(f's_lshl_b32 s55, {sW4}, 1', f'v_lshrrev_b32 v{t + 11}, 1, v{t + 9}', f'v_add_u32 v{t + 11}, s55, v{t + 11}',
      f'v_xor_b32 v{t + 11}, v{t + 11}, v{t + 10}')
    e(f'v_lshlrev_b32 v{t + 12}, 10, {kq}', f'v_lshl_add_u32 v{t + 12}, v{t + 8}, 7, v{t + 12}', f'v_lshl_add_u32 v{t + 12}, v{t + 11}, 4, v{t + 12}',
      f'v_and_b32 v{t + 9}, 1, v{t + 9}', f'v_lshl_add_u32 v{V_WLO}, v{t + 9}, 3, v{t + 12}', f'v_add_u32 v{V_WHI}, {L_SLOT[1]}, v{V_WLO}')
    if PL.M:
        for i in range(8):
            e(f'v_subrev_u32 v{V_WB[2] + i}, {L_XB - L_X2}, v{V_XA1 + i}')
    e(f's_lshl_b32 s55, {sW4}, 2', f'v_add_u32 v{t + 8}, s55, {kq}', f'v_xor_b32 v{t + 8}, v{t + 8}, {l16}',
      f'v_lshlrev_b32 v{t + 9}, 8, {l16}', f'v_lshl_add_u32 v{V_D1}, v{t + 8}, 4, v{t + 9}')
    e('s_lshl_b32 s55, s53, 2', f'v_add_u32 v{t + 8}, s55, {kq}', f'v_and_b32 v{t + 9}, 7, {l16}', f'v_xor_b32 v{t + 8}, v{t + 8}, v{t + 9}',
      f'v_lshlrev_b32 v{t + 9}, 7, {l16}', f'v_lshl_add_u32 v{t + 8}, v{t + 8}, 4, v{t + 9}', 's_mul_i32 s55, s52, 16640', f'v_add_u32 v{V_D2}, s55, v{t + 8}')
    e(f'v_add_u32 v{V_JHI}, {77 * K}, v{V_JLO}')
    e(f's_lshl_b32 s55, {sN8}, 1', 's_add_u32 s55, s55, s53', 's_lshl_b32 s55, s55, 3', 's_add_u32 s55, s55, s52', 's_lshl_b32 s55, s55, 14',
      f's_add_u32 s55, s55, {WS_W2F}', f'v_add_u32 v{V_W2}, s55, v{V_JLO}')
    e(f's_lshl_b32 s55, {sW4}, 15', f's_add_u32 s55, s55, {WS_WOF}', f'v_add_u32 v{V_WO}, s55, v{V_JLO}')
    e(f's_lshl_b32 s55, {sM2}, 19', f's_lshl_b32 s56, {sW4}, 7', 's_add_u32 s55, s55, s56', f's_lshl_b32 s56, {sN8}, 12', 's_add_u32 s55, s55, s56')
    e(f'v_lshlrev_b32 v{t + 8}, 17, {kq}', f'v_lshl_add_u32 v{t + 8}, {l16}, 3, v{t + 8}', f'v_add_u32 v{V_OUT}, s55, v{t + 8}')
    for r in range(4):
        e(f's_mov_b32 s{56 + r}, {r * 32768}')

    def rd_x(sig, s_):
        d = sub(sig)
        sh, sp = divmod(s_, 8)
        ee = sp & 1
        a = V_XA1 + sh * 4 + ee * 2 + d['kh'] if d['ph'] == 1 else V_XA2 + sh * 2 + ee
        base = L_XB
        if d['xbuf'] == L_X2:
            a, base = a - V_XA1 + V_WB[2], L_X2
        s.lds(f'ds_read_b128 {vr(xreg(s_))}, v{a} offset:{d["xbuf"] - base + (sp - ee) * 128}', ('X', sig, s_), ('r', d['xbuf'], 17408))

    def rd_w(k, j, h):
        slot = PL.wslot[k]
        a, off = (V_WLO, 0) if slot == 0 else (V_WHI, slot - L_SLOT[1])
        r = V_WB[k & 1] + 4 * j + 2 * h
        s.lds(f'ds_read_b64_tr_b16 {vr(r, 2)}, v{a} offset:{off + j * 4096 + h * 512}', ('W', k, j), ('r', slot + j * 4096, 4096))

    def ld_w2_pre(k, j):
        d = sub(k)
        return (lambda: e(f's_mov_b32 s48, {(d["c64"] * 32 + d["p"] * 8 + (j & 4)) * 1024}')) if j % 4 == 0 else None

    def ld_w2(k, j):
        d = sub(k)
        s.vmem(f'buffer_load_dwordx4 {vr(V_WB[d["bank"]] + 4 * j)}, v{V_W2}, {srd(SWS)}, s48 offen offset:{(j % 4) * 1024}{o.w2f if k < 40 else o.w2g}', ('W', k, j))

    def ld_wo_pre(tau, ka):
        return (lambda: e(f's_mov_b32 s49, {(tau * 8 + (ka & 4)) * 1024}')) if ka % 4 == 0 else None

    def ld_wo(tau, ka, so='s49'):
        s.vmem(f'buffer_load_dwordx4 {vr(wo_reg(tau, ka))}, v{V_WO}, {srd(SWS)}, {so} offen offset:{(ka % 4) * 1024} sc1', ('O', tau, ka))

    twins = []

    def dump(sig, b, src=None):
        src = src or sub(sig)['acc']
        a, off = (V_D1, L_ST + (7 - b) * 4096) if sub(sig)['ph'] == 1 else (V_D2, L_ST + b * 2080)
        s.lds(f'ds_write_b128 v{a}, {vr(src + 4 * b)} offset:{off}', ('D', sig, b), ('w', off, 4096 if sub(sig)['ph'] == 1 else 2048))
        if sub(sig)['ph'] == 2:
            s.ev.append(s.ev[-1].copy())
            e2, e1 = s.ev[-1], s.ev[-2]
            e2['lo'], e2['hi'] = off + 16640, off + 16640 + 2048
            twins.append((e1, e2))

    def jreg(k, ka):
        return (V_Z if k % 2 == 0 else V_Y) + 4 * ka

    def rd_j(k, ka):
        sl = L_J[k % NJ]
        a, off = (V_JLO, sl) if sl < 60 * K else (V_JHI, sl - 77 * K)
        s.lds(f'ds_read_b128 {vr(jreg(k, ka))}, v{a} offset:{off + ka * 1024}', ('A', k, ka), ('r', sl + ka * 1024, 1024))

    def dma_img(buf, p_, soff, flags, tag, pre):
        def item(i):
            def a():
                if i == 0 and pre:
                    pre()
                e(f's_add_u32 m0, {sHW1K}, {buf + 4096 * i}' if i < 4 else f's_mov_b32 m0, {buf + 16384}')
                if soff and i == 0:
                    e(f's_mov_b32 s52, {soff}')

            def b():
                if i == 4:
                    e('s_mov_b64 exec, s[62:63]')
                s.vmem(f'buffer_load_dwordx4 v{C_XV[5 * p_ + i]}, {srd(SA)}, {"s52" if soff else "0"} offen{flags} lds', tag, ('w', buf + 4096 * i, 4096 if i < 4 else 1024))
                if i == 4:
                    e('s_mov_b64 exec, -1')
            return a, b
        return [item(i) for i in range(5)]

    def dma_x(i):
        b, st = PL.IL[i]
        return dma_img(PL.ibuf[i], st & 1, (st >> 1) * 128, o.xf, ('dma', PL.ifirst[i] - 1), lambda: x_base(s, b))

    def dma_h(g):
        d = sub(32 + g)
        off = WS_H + (d['b'] * 4 + d['c64']) * (1 << 20)
        pre = (lambda: mk_srd(s, SA, S_WS, 1024000, add=off)) if d['p'] == 0 else None
        return dma_img(d['xbuf'], d['p'], 0, o.hf, ('img', g), pre)

    def dma_w(n):
        def item(j):
            return (lambda: e(f's_add_u32 m0, {sHW1K}, {PL.wslot[n] + j * 4096}', f's_mov_b32 s51, {w1_off(n, j)}'),
                    lambda: s.vmem(f'buffer_load_dwordx4 v{C_WD}, {srd(SW1)}, s51 offen{o.wf} lds', ('dma', PL.wfirst[n] - 1), ('w', PL.wslot[n] + j * 4096, 4096)))
        return [item(j) for j in range(PL.wset(n)['T'])]

    def window(win):
        dm = []
        for kind, i in PL.win.get(win, []):
            dm += dma_x(i) if kind == 'x' else dma_w(i)
        imgs = []
        if win == 30 and o.h0p == 30:
            imgs = []
        elif win == 31 and o.h0p == 30:
            imgs = [0, 1]
        elif 30 <= win <= 45:
            imgs = [win - 30] if (win - 30 < 8 or win > o.h1p + 1) else ([] if win <= o.h1p else list(range(8, win - 29)))
        for g in imgs:
            dm += dma_h(g)
        return dm

    def bslot(sig):
        T = sub(sig)['T']
        return 5 * T + o.bl if (sub(sig)['last'] and sub(sig)['ph'] == 2) else 4 * T - 1

    def win_slots(win):
        dm = window(win)
        if not dm or not cwin(o, win):
            return []
        T0_, T1_ = sub(win - 1)['T'], sub(win)['T']
        lo = bslot(win - 1) + 1
        slots = [(win - 1, i) for i in range(lo, 8 * T0_)] + [(win, i) for i in range(0, bslot(win) + 1)]
        span = len(slots) - 6 if win < 31 else (3 * T0_ - 2 if len(dm) <= 5 else len(slots) - 10)
        out = []
        for n_, (a, b) in enumerate(dm):
            i = (n_ * span) // len(dm)
            out.append((slots[i], lo if slots[i][0] == win - 1 else 0, [(1, a), (2, b)]))
        return out
    dsl = {}
    for win in range(1, 46):
        for (sg, i), lo, ab in win_slots(win):
            dsl.setdefault(sg, []).append((i, lo, ab))

    o.cnames = []
    cp = []

    def cflush():
        for i, r in cp:
            e(f'v_writelane_b32 v{(6, 7, 0)[i // 64]}, s{r}, {i % 64}')
        cp.clear()

    def cstamp(name):
        r = 96 + 2 * len(cp)
        e(f's_memtime s[{r}:{r + 1}]')
        cp.append((len(o.cnames), r))
        o.cnames.append(name)

    def bar(name):
        if o.diag:
            e('s_waitcnt lgkmcnt(%d)' % min(len(s.lg), 15))
            cflush()
            cstamp('a' + name)
        s.barrier(name)
        if o.diag:
            cstamp('r' + name)

    e('s_cmp_eq_u32 s2, 255', 's_cbranch_scc1 L_c_ge')
    x('L_c_ge:', 's_waitcnt vmcnt(0) lgkmcnt(0)', 's_barrier', 's_branch L_c_join')
    e('s_waitcnt lgkmcnt(0)')
    s.wait(vm=lambda t_: t_[0] == 'P0')
    bar('P0')
    for j in range(8):
        rd_w(0, j, 0)
        rd_w(0, j, 1)
        rd_x(0, j)
    carry = []
    for sig in range(48):
        d = sub(sig)
        T = d['T']
        s.c(f'--- sigma {sig} {d}')
        pos = {}
        load = {}

        def add(b, j, f, c_=1):
            pos.setdefault((b, j), []).append(f)
            load[b * T + j] = load.get(b * T + j, 0) + c_
        addi = lambda i, f, c_=1: add(i // T, i % T, f, c_)
        flex = []
        for i, s_ in enumerate(range(8, T + 7)):
            addi(3 * i, lambda s_=s_: rd_x(sig, s_))
        nz = (lambda k_: rd_x(sig + 1, k_)) if sig < 47 else (lambda k_: rd_j(0, k_))
        if sig + 1 < 32 and PL.wn[sig + 1] != PL.wn[sig]:
            i = 4 * T
            for j in range(8):
                if j < sub(sig + 1)['T']:
                    addi(i, lambda j=j: rd_w(PL.wn[sig + 1], j, 0))
                    addi(i + 1, lambda j=j: rd_w(PL.wn[sig + 1], j, 1))
                    i += 2
                addi(max(i, j * T + 1), lambda j=j: nz(j))
                i += 1
        else:
            for k_, (b, j) in enumerate([(4, 0), (4, 2), (4, 4), (5, 0), (5, 2), (5, 4), (6, 2), (7, 1)] if not (d['last'] and d['ph'] == 2) else
                                        [(5, 4), (5, 5), (5, 6), (6, 0), (6, 1), (6, 2), (6, 4), (7, 1)]):
                add(b, j, lambda k_=k_: nz(k_))

        def bankload(k, j, i, lo):
            if k < 48:
                if j >= sub(k)['T']:
                    return
                pre, f = ld_w2_pre(k, j), (lambda: ld_w2(k, j))
            else:
                pre, f = ld_wo_pre(k - 47, j), (lambda: ld_wo(k - 47, j))
            flex.append((i, lo, ([(1, pre)] if pre else []) + [(2, f)]))
        if sig in (28, 29):
            for j in range(4):
                bankload(32, 4 * (sig - 28) + j, 6 * j + 3, 0)
        if sig >= 31:
            for j in range(2, 8):
                bankload(sig + 2, j, (j - 2) * (5 if T == 8 else 4) + 1, 0)
        if 30 <= sig < 47:
            for j in range(2):
                bankload(sig + 3, j, 7 * T + 1 + 3 * j, 7 * T + j)
        tau3 = lambda ka, i, lo: flex.append((i, lo, [(1, lambda: e(f's_mov_b32 s50, {(24 + (ka & 4)) * 1024}')), (2, lambda: ld_wo(3, ka, 's50'))]))
        if sig == 46:
            for ka in range(5):
                tau3(ka, 4 * T + 1 + 4 * ka, 0)
        if sig == 47:
            for ka in range(5, 8):
                flex.append((7 * T + 2 * (ka - 5), 7 * T + ka - 5, [(2, lambda ka=ka: ld_wo(3, ka, 's50'))]))
        w0 = 25 if PL.M else 23
        if sig in (w0, w0 + 2, w0 + 4):
            for i_, ka in enumerate(range(3 * (sig - w0) // 2, min(8, 3 * (sig - w0) // 2 + 3))):
                bankload(47, ka, (2 + i_) * T - 5, 0) if False else flex.append(((1 + i_) * T + 1, 0, ([(1, ld_wo_pre(0, ka))] if ka % 4 == 0 else []) + [(2, lambda ka=ka: ld_wo(0, ka))]))
        for i, lo, ab in dsl.get(sig, []):
            flex.append((i, lo, ab))
        if sig == 29:
            ops = []
            for i in range(5):
                r_ = C_XV[i]
                ops += [f'v_and_b32 v119, 0x1ff, v{r_}', f'v_ashrrev_i32 v{r_}, 9, v{r_}', f'v_lshl_add_u32 v{r_}, v{r_}, 7, v119', f'v_add_u32 v{r_}, s61, v{r_}',
                        f'v_add_u32 v{C_XV[5 + i]}, 128, v{r_}']
            for i, op in enumerate(ops):
                addi(2 + i, lambda op=op: e(op))
        if o.otouch and sig in (o.otouch, o.otouch + 2):
            def ot():
                mk_srd(s, SB, S_OUT, 32768000)
                e(f's_mov_b32 s50, {16384000 if sig > o.otouch else 0}', 's_mov_b64 exec, 1')
                s.vmem(f'buffer_load_dword v119, v{V_OUT}, {srd(SB)}, s50 offen', ('T',))
                e('s_mov_b64 exec, -1')
            add(3, 2, ot)
        if sig == 46:
            add(1, 0, lambda: mk_srd(s, SA, S_OUT, 16384000))
            add(2, 0, lambda: mk_srd(s, SW1, S_OUT, 16384000, add=16384000))
        redir = o.redir and sig == 15
        lazy = PL.M and sig == PL.eA
        if d['last']:
            if d['ph'] == 1:
                for b, (c_, j) in (((0, (3, 0)), (1, (3, 2))) if sig < 31 else ((0, (2, 2)), (1, (2, T - 1)))):
                    add(c_, j, lambda b=b: (e('s_nop 0'), dump(sig, b)))
            else:
                add(2, 1, lambda: dump(sig, 0))
                add(3, 1, lambda: dump(sig, 1))
            for b in range(2, 3 if redir else (2 if lazy and o.lazy else 7)):
                add(b + 1, T - 1, lambda b=b: (e('s_nop 0'), dump(sig, b)))
        if sig > 0 and sub(sig - 1)['last']:
            if PL.M and sig == PL.eA + 1:
                if o.lazy:
                    for b, (c_, j) in zip(range(2, 6), ((2, 2), (2, 4), (2, 6), (3, 0))):
                        add(c_, j, lambda b=b: dump(sig - 1, b))
            elif not (o.redir and sig == 16):
                add(0, T - 1, lambda: dump(sig - 1, 7))
        if PL.M and sig == PL.eA + 2:
            for b, (c_, j) in ((6, (2, 3)), (7, (2, 6))) if o.lazy else ((7, (2, 4)),):
                add(c_, j, lambda b=b: dump(PL.eA, b))
        if o.redir and sig == 17:
            for b, (c_, j) in zip(range(3, 8), ((2, 1), (2, 3), (2, 5), (2, 7), (3, 1))):
                add(c_, j, lambda b=b: dump(15, b, V_WB[2]))
        for i in [8 * T - 1, bslot(sig)] + [b * T + T - 2 for b in range(1, 8)]:
            load[i] = load.get(i, 0) + 1
        last = -1
        flex += carry
        carry = []
        for i, lo, parts in sorted(flex, key=lambda it: it[0]):
            i = max(i, lo, last + 1)
            if i > 8 * T - len(parts) or carry:
                assert sig < 47
                carry.append((len(carry) - 100, 0, parts))
                continue
            for n_, (c_, f) in enumerate(parts):
                k_, top = i, 8 * T - (len(parts) - n_)
                if o.pack:
                    while k_ < top and k_ < i + 6 and load.get(k_, 0) + c_ > 2:
                        k_ += 1
                    if load.get(k_, 0) + c_ > 2:
                        k_ = i
                addi(k_, f, c_)
                last, i = k_, k_ + 1
        if o.xb >= 0 and sig == o.f0p:
            addi(o.xb, lambda: bar('X'))
        for b in range(8):
            if o.cst >= 0 and sig in (o.cst, o.cst + 1):
                r_ = 64 + 2 * (8 * (sig - o.cst) + b)
                e(f's_memtime s[{r_}:{r_ + 1}]')
            for j in range(T):
                if d['ph'] == 1:
                    s.wait(lg=[('W', d['wk'], j), ('X', sig, b + j)])
                else:
                    s.wait(vm=[('W', sig, j)], lg=[('X', sig, b + j)])
                acc = vr(d['acc'] + 4 * b)
                cin = '0' if (d['first'] and j == 0) else acc
                dst = vr(V_WB[2] + 4 * b) if (redir and b >= 3 and j == T - 1) else acc
                if o.skip and j in (2, 4) and (T == 8 or j == 2 or b % 2):
                    if o.skip == 2:
                        e('s_nop 3')
                else:
                    e(f'v_mfma_f32_16x16x32_bf16 {dst}, {vr(V_WB[d["bank"]] + 4 * j)}, {vr(xreg(b + j))}, {cin}')
                s.nmfma += 1
                if b * T + j != bslot(sig):
                    for f in pos.get((b, j), []):
                        f()
                    continue
                for f in pos.get((b, j), []):
                    f()
                if sig == 0:
                    vmp = lambda t_: t_[0] == 'P0b'
                else:
                    vmp = lambda t_: (t_[0] == 'dma' and t_[1] <= sig) or t_ == ('img', sig - 31)
                need = (1 if d['ph'] == 1 else 3) if d['last'] else 7
                s.wait(vm=vmp, lg=lambda t_: t_[0] != 'D' or t_[2] <= need)
                if o.idle and sig in o.idle_at:
                    e(f's_sleep {o.idle}')
                bar(f'B{sig}')
                if sig == JOIN:
                    e('L_c_join:')
                if sig == o.arr - 1 and o.arrm:
                    if o.arrm == 1:
                        s.vmem(f'buffer_atomic_add v{V_SP + 1}, v{V_SP}, {srd(SB)}, 0 offen sc1', ('arr',))
                    else:
                        s.vmem(f'buffer_store_byte v{V_SP + 1}, v{V_SP}, {srd(SB)}, s2 offen sc1', ('arr',))
    e('s_nop 7')
    dump(47, 7)

    def epi(k, r):
        a0 = V_ACC + 16 * (k % 2)
        return [lambda: e(f'v_cvt_pk_bf16_f32 v{V_PK + 2 * r}, v{a0 + r}, v{a0 + 4 + r}'),
                lambda: e(f'v_cvt_pk_bf16_f32 v{V_PK + 2 * r + 1}, v{a0 + 8 + r}, v{a0 + 12 + r}'),
                lambda: s.vmem(f'buffer_store_dwordx2 {vr(V_PK + 2 * r, 2)}, v{V_OUT}, {srd(SW1 if k // 8 else SA)}, s{56 + r} offen offset:{(k % 8) * 512}{o.of if k < o.ofk else o.of2}', ('S', k, r))]
    for k in range(16):
        s.c(f'--- joint step {k}')
        if k in o.jb:
            s.wait(lg=lambda t_: True)
            bar(f'J{k}')
        pos = {}
        if k < 15:
            for ka in range(8):
                pos.setdefault(2 * ka, []).append(lambda ka=ka: rd_j(k + 1, ka))
        if k > 0:
            fl = [f for r in range(4) for f in epi(k - 1, r)]
            for i, f in enumerate(fl):
                pos.setdefault(9 + (3 * i) // 2, []).append(f)
        for tau in range(4):
            if o.cst >= 48 and 0 <= k - (o.cst - 48) < 4:
                r_ = 64 + 2 * (4 * (k - (o.cst - 48)) + tau)
                e(f's_memtime s[{r_}:{r_ + 1}]')
            for ka in range(8):
                s.wait(vm=[('O', tau, ka)], lg=[('A', k, ka)])
                acc = vr(V_ACC + 16 * (k % 2) + 4 * tau)
                e(f'v_mfma_f32_16x16x32_bf16 {acc}, {vr(jreg(k, ka))}, {vr(wo_reg(tau, ka))}, {"0" if ka == 0 else acc}')
                s.nmfma += 1
                for f in pos.get(tau * 8 + ka, []):
                    f()
    e('s_nop 7')
    for r in range(4):
        for f in epi(15, r):
            f()
    if o.span:
        e('s_waitcnt vmcnt(0)', 's_memrealtime s[48:49]', 's_waitcnt lgkmcnt(0)', 'v_mov_b32 v2, s94', 'v_mov_b32 v3, s48', f's_lshl_b32 s48, s2, 2', f's_add_u32 s48, s48, {sW4}',
          's_lshl_b32 s48, s48, 3', f's_add_u32 s48, s48, {WS_DIAG}', 'v_mov_b32 v1, 0', 's_mov_b64 exec, 1', f'buffer_store_dwordx2 v[2:3], v1, {srd(SWS)}, s48 offen')
    if o.span == 2:
        mk_srd(s, SB, S_DBG, 256)
        e('s_not_b32 s50, s94', 'v_mov_b32 v2, s50', 's_sub_u32 s51, s48, s94', 's_nop 0')
        e(f'buffer_atomic_umax v2, v1, {srd(SB)}, 0 offen offset:8 sc1', f'buffer_atomic_umax v3, v1, {srd(SB)}, 0 offen offset:12 sc1',
          'v_sub_u32 v4, v3, v2', 'v_not_b32 v2, v2', 'v_sub_u32 v4, v3, v2', f'buffer_atomic_umax v4, v1, {srd(SB)}, 0 offen offset:16 sc1', f'buffer_atomic_umax v2, v1, {srd(SB)}, 0 offen offset:20 sc1')
    if o.diag:
        e('s_memtime s[48:49]', 's_waitcnt vmcnt(0)', 's_memtime s[50:51]', 's_waitcnt lgkmcnt(0)', 'v_mov_b32 v1, 0', 's_nop 1')
        cflush()
        if o.cst >= 0:
            for i in range(16):
                e(f'v_writelane_b32 v1, s{64 + 2 * i}, {i}')
        e('v_writelane_b32 v1, s48, 16', 'v_writelane_b32 v1, s50, 17')
        e(f's_lshl_b32 s48, s2, 2', f's_add_u32 s48, s48, {sW4}', 's_lshl_b32 s48, s48, 11', f's_add_u32 s48, s48, {WS_DIAG + 768}', f'v_lshrrev_b32 v2, 2, v{V_JLO}')
        for i, r in enumerate((1, 6, 7, 0)):
            e(f'buffer_store_dword v{r}, v2, {srd(SWS)}, s48 offen offset:{i * 256}')
    e('s_endpgm')
    for e1, e2 in twins:
        e2['done'] = e1['done']
    return s, ool


H_S1, H_HS, H_S2, H_L16, H_FLAG, H_HP, H_FP, H_C2, H_EB, H_TMP, H_ONE, H_JHI, H_ZERO, H_CP = 22, 26, 27, 31, 32, 33, 34, 35, 36, 37, 38, 39, 40, 41
H_STAMP = 42
H_PV = 45
H_JH2 = 46
H_ARR = 47
H_PIN = 16
H_ONES = 12
H_D, H_T, H_B, H_EA, H_WF = 48, 80, 96, 112, 128
H_EAB = [112, 2]
H_MX = 18
sGC1, sSLOW, sGEF, sSPIN = 's49', ('s52', 's73'), 's53', 's54'
sHPM = 's[56:57]'
sEX16 = 's[58:59]'
sRET = 's[60:61]'
sPM = 's[62:63]'
sFOFF = 's65'
sPD, sPT = 's64', 's48'
sBU = 's66'
sARS = 's79'
sFL = 's72'
SPIN_LIMIT = 1 << 15


def gen_helper(o, p):
    s = Stream('H')
    s.vm = list(p.vm)
    s.ev = [dict(e_, kind='r') for e_ in p.ev]
    s.open = {id(e_['tag']): e_ for e_ in s.ev}
    o.hentry = list(s.ev)
    s.ev = []
    e = s.e
    ool = Stream('Hool')
    x = ool.e
    nstamp = [0]
    cur = ['P0']
    pend = []

    def flush_stamps():
        if pend:
            s.drain(vm=False)
            for i, r in pend:
                e(f'v_writelane_b32 v{H_STAMP + i // 64}, s{r}, {i % 64}')
            pend.clear()

    def stamp(name, real=False):
        if o.diag and nstamp[0] < 192:
            i = nstamp[0]
            o.names.append(name)
            if len(pend) >= 4:
                flush_stamps()
            r = 84 + 2 * len(pend)
            e(f's_memrealtime s[{r}:{r + 1}]' if real else f's_memtime s[{r}:{r + 1}]')
            pend.append((i, r))
            nstamp[0] += 1

    def bar(name, vmp=None, lgp=None):
        s.wait(vm=vmp or (lambda t_: t_[0] != cur[0]), lg=lgp or (lambda t_: True))
        s.barrier(name)

    def vm(line, kind, mem=None):
        s.vmem(line, (cur[0], kind), mem)

    o.names = []
    stamp('rt0', True)
    stamp('t0')

    def dma_img(buf, av, soff, flags, kind, pre, idx=range(5)):
        def one(i):
            if i == 0 and pre:
                pre()
            if i < 4:
                e(f's_add_u32 m0, {sHW1K}, {buf + 4096 * i}')
                e(f's_mov_b32 s68, {soff}' if soff else 's_nop 0')
            else:
                e(f's_mov_b32 m0, {buf + 16384}', f's_mov_b64 exec, {sEX16}')
                if soff:
                    e(f's_mov_b32 s68, {soff}')
            vm(f'buffer_load_dwordx4 v{av + i}, {srd(SA)}, {"s68" if soff else "0"} offen{flags} lds', kind, ('w', buf + 4096 * i, 4096 if i < 4 else 1024))
            if i == 4:
                e('s_mov_b64 exec, -1')
        return [lambda i=i: one(i) for i in idx]

    def dma_x(i):
        b, st = PL.IL[i]
        return dma_img(PL.ibuf[i], H_XV + 5 * (st & 1), (st >> 1) * 128, o.xf, ('dl', PL.ifirst[i] - 1), lambda: x_base(s, b))

    def dma_w(n):
        def one(j):
            e(f's_add_u32 m0, {sHW1K}, {PL.wslot[n] + j * 4096}', f's_mov_b32 s68, {w1_off(n, j)}')
            vm(f'buffer_load_dwordx4 v{H_WD}, {srd(SW1)}, s68 offen{o.wf} lds', ('dl', PL.wfirst[n] - 1), ('w', PL.wslot[n] + j * 4096, 4096))
        return [lambda j=j: one(j) for j in range(PL.wset(n)['T'])]

    def now(fs):
        for f in fs:
            f()

    def pf_x(st, half):
        b, c64, p_ = st >> 3, (st >> 1) & 3, st & 1
        for i in (range(0, 5) if half == 0 else range(5, 9)):
            for hh in range(2):
                e(f's_load_dword s78, s[{74 + 2 * b}:{75 + 2 * b}], {i * 1024 + p_ * 512 + c64 * 128 + hh * 64}')

    t = 224
    sp, gam = f'v{E_SP}', f'v{E_GAM}'
    e(f's_lshl_b32 s73, {sW4}, 4', 's_mov_b64 s[76:77], 0xffff', f's_lshl_b64 {sEX16}, s[76:77], s73')
    cur[0] = 'P1'
    e('s_mov_b64 s[60:61], s[64:65]')
    e(f's_mov_b32 s68, {T0 & 0xffffffff}', f's_mov_b32 s69, {T0 >> 32}')
    for i in range(2, 4):
        e(f's_add_u32 s73, {sW4}, {4 * i}')
        img_addr(e, H_XV + i, 's73', 's67', 9, t + 3)
    for i in range(5):
        e(f'v_add_u32 v{H_XV + 5 + i}, 512, v{H_XV + i}')

    e(f's_lshl_b32 s68, {sNQ}, 2', f's_add_u32 s68, s68, {sW4}', 's_mul_i32 s68, s68, 18', 's_add_u32 s68, s68, s67', 's_sub_u32 s68, s68, 7',
      's_max_i32 s68, s68, 0', 's_min_i32 s68, s68, 15982', 's_lshl_b32 s68, s68, 9', f's_add_u32 s74, s{S_X}, s68', f's_addc_u32 s75, s{S_X + 1}, 0',
      's_add_u32 s76, s74, 8192000', 's_addc_u32 s77, s75, 0')
    l16, kq = f'v{t + 6}', f'v{t + 7}'
    e(f'v_and_b32 {l16}, 15, v0', f'v_lshrrev_b32 {kq}, 4, v0', f'v_lshlrev_b32 v{H_L16}, 4, v0')
    e(f'v_mov_b32 v{H_C2}, {fbits(GC2)}', f's_mov_b32 {sGC1}, {fbits(GC1)}', 's_mov_b32 s50, 0x05040100', 's_mov_b32 s51, 0x07060302')
    e(f'v_mov_b32 v{H_ONE}, 1', f'v_mov_b32 v{H_ZERO}, 0')
    flag_addr(e, H_FLAG, t + 8)
    mk_srd(s, SD, S_DBG, 256)
    cur[0] = 'P2'
    e(f's_lshl_b32 s68, s2, 2', f's_add_u32 s68, s68, {sW4}', f'v_lshlrev_b32 v{t + 8}, 3, {l16}')
    mk_srd(s, SB, S_W2, 1966080)
    e('s_cmp_lt_u32 s68, 480', 's_cbranch_scc1 L_prep_w2', 's_cmp_lt_u32 s68, 544', 's_cbranch_scc1 L_prep_fo')
    e(f's_mov_b32 {sPD}, {OOB}', f's_mov_b32 {sPT}, 0', f'v_mov_b32 v{t + 9}, {OOB}', 's_mov_b32 s70, 0', 's_mov_b32 s71, 0', 's_mov_b32 s72, 0', 's_mov_b32 s73, 0')
    e('L_prep_done:')
    x('L_prep_w2:')
    x('s_lshr_b32 s69, s68, 5', 's_lshr_b32 s70, s68, 2', 's_and_b32 s70, s70, 7', 's_and_b32 s55, s68, 3')
    x('s_lshl_b32 s72, s55, 5', 's_add_u32 s72, s72, s70', 's_lshl_b32 s72, s72, 4', 's_and_b32 s73, s69, 1', 's_lshl_b32 s73, s73, 3', 's_add_u32 s72, s72, s73',
      's_lshr_b32 s73, s69, 1', 's_add_u32 s72, s72, s73', 's_lshl_b32 s72, s72, 10', f's_add_u32 {sPD}, s72, {WS_W2F}', f's_mov_b32 {sPT}, 131072')
    x('s_lshl_b32 s72, s69, 17', 's_lshl_b32 s73, s70, 14', 's_add_u32 s72, s72, s73', 's_lshl_b32 s73, s55, 7', 's_add_u32 s70, s72, s73')
    x(f'v_lshl_add_u32 v{t + 9}, {kq}, 12, v{t + 8}', 's_mov_b32 s71, 512', 's_mov_b32 s72, 2048', 's_branch L_prep_done')
    x('L_prep_fo:')
    x('s_cmp_lt_u32 s68, 512', f's_cselect_b32 s{SB}, s{S_WF}, s{S_WO}', f's_cselect_b32 s{SB + 1}, s{S_WF + 1}, s{S_WO + 1}', f's_mov_b32 s{SB + 2}, 131072')
    x('s_sub_u32 s69, s68, 480', 's_and_b32 s70, s69, 7', 's_lshr_b32 s55, s69, 3')
    x('s_lshl_b32 s72, s55, 5', 's_add_u32 s72, s72, s70', 's_lshl_b32 s72, s72, 10', f's_add_u32 {sPD}, s72, {WS_WFF}', f's_mov_b32 {sPT}, 8192')
    x('s_lshr_b32 s72, s70, 1', 's_lshl_b32 s72, s72, 15', 's_and_b32 s73, s70, 1', 's_lshl_b32 s73, s73, 10', 's_add_u32 s72, s72, s73',
      's_and_b32 s73, s55, 3', 's_lshl_b32 s73, s73, 7', 's_add_u32 s70, s72, s73')
    x(f'v_lshl_add_u32 v{t + 9}, {kq}, 13, v{t + 8}', 's_mov_b32 s71, 2048', 's_mov_b32 s72, 512', 's_branch L_prep_done')
    e(f'v_mov_b32 v{H_PIN}, v{t + 9}', 's_mov_b32 s55, s70', 's_mov_b32 s65, s71', 's_mov_b32 s66, s72')

    def prep_a():
        for jj in range(8):
            if jj == 4:
                e('s_add_u32 s55, s55, s66')
            e('s_mov_b32 s73, s55' if jj % 4 == 0 else 's_add_u32 s73, s73, s65')
            vm(f'buffer_load_dwordx2 {vr(H_D + 2 * jj, 2)}, v{H_PIN}, {srd(SB)}, s73 offen', 'pin')
    e(f'v_or_b32 v{t + 8}, {sW4}, v0', f'v_cmp_eq_u32 vcc, 0, v{t + 8}', f'v_mov_b32 v{t + 9}, {OOB}', 's_nop 0', f'v_cndmask_b32 v{H_ARR}, v{t + 9}, v{t + 8}, vcc')
    for i in range(4):
        e(f'v_mov_b32 v{H_ONES + i}, -1')

    def resets(st_, tr):
        def fl():
            st_.e('s_mov_b64 exec, 3')
            tr(f'buffer_store_dword v{H_ZERO}, v{H_FLAG}, {srd(SWS)}, 0 offen sc1')
            st_.e('s_mov_b64 exec, -1')

        def ft(i):
            st_.e(f's_lshl_b32 s68, {sN8}, 8', f's_lshl_b32 s69, {sM2}, 3', 's_add_u32 s68, s68, s69', f's_add_u32 s68, s68, {sW4}', 's_lshl_b32 s68, s68, 10',
                  f's_add_u32 s68, s68, {WS_F + (i >> 1) * 2048 * K + (i & 1) * 4096}')
            tr(f'buffer_store_dwordx4 {vr(H_ONES)}, v{H_L16}, {srd(SWS)}, s68 offen sc1')
        return [fl] + [lambda i=i: ft(i) for i in range(4)]

    def arrive(st_, tr):
        tr(f'buffer_atomic_add v{H_ONE}, v{H_ARR}, {srd(SD)}, 0 offen sc1')

    def prep_b(tau):
        s.wait(vm=lambda t_: t_[1] == 'pin')
        for m_ in range(4):
            e(f'v_perm_b32 v{H_T + 4 * tau + m_}, v{H_D + 4 * m_ + 2 + (tau >> 1)}, v{H_D + 4 * m_ + (tau >> 1)}, {"s51" if tau & 1 else "s50"}')
        vm(f'buffer_store_dwordx4 {vr(H_T + 4 * tau)}, v{H_L16}, {srd(SWS)}, {sPD} offen sc1', 'pst')
        e(f's_add_u32 {sPD}, {sPD}, {sPT}')
    c8, row8 = gam, sp
    e(f's_and_b32 s70, {sW4}, 1', 's_lshl_b32 s71, s70, 3', f's_lshr_b32 s72, {sW4}, 1')
    for hh in range(2):
        e(f'v_lshlrev_b32 v{t + 9}, 1, {c8}', f'v_or_b32 v{t + 9}, {hh}, v{t + 9}', f'v_or_b32 v{t + 10}, s71, {row8}',
          f'v_xor_b32 v{t + 9}, v{t + 9}, v{t + 10}', f'v_lshlrev_b32 v{t + 10}, 8, v{t + 10}', f'v_lshl_add_u32 v{t + 9}, v{t + 9}, 4, v{t + 10}',
          's_xor_b32 s68, s72, 1', 's_lshl_b32 s68, s68, 12', f'v_add_u32 v{H_S1 + hh}, s68, v{t + 9}')
    e(f's_lshl_b32 s68, {sM}, 14', 's_lshl_b32 s69, s72, 7', 's_add_u32 s68, s68, s69', 's_lshl_b32 s69, s70, 13', 's_add_u32 s68, s68, s69',
      f'v_lshlrev_b32 v{t + 9}, 10, {row8}', f'v_lshl_add_u32 v{t + 9}, {c8}, 4, v{t + 9}', f'v_add_u32 v{H_HS}, s68, v{t + 9}')
    e(f's_mul_i32 s68, {sW4}, 2080', f'v_and_b32 v{t + 12}, 7, {l16}', f'v_lshl_add_u32 v{t + 11}, {l16}, 7, s68')
    for nh in range(2):
        e(f'v_or_b32 v{t + 13}, {4 * nh}, {kq}', f'v_xor_b32 v{t + 13}, v{t + 13}, v{t + 12}', f'v_lshl_add_u32 v{H_S2 + nh}, v{t + 13}, 4, v{t + 11}')
    e(f's_cmp_eq_u32 {sW4}, 0', f's_cselect_b64 {sPM}, -1, 0', f's_cselect_b32 s71, 0, {OOB}', f'v_mov_b32 v{H_CP}, s71' if o.arrm < 2 else f'v_lshl_add_u32 v{H_CP}, v0, 2, s71')
    e(f's_lshl_b32 s68, {sM2}, 1', 's_sub_u32 s68, s68, 1', f'v_add_u32 v{t + 9}, s68, {kq}', f'v_cmp_gt_u32 vcc, 64, v{t + 9}',
      f'v_lshlrev_b32 v{t + 9}, 9, v{t + 9}', f'v_lshrrev_b32 v{t + 10}, 2, {l16}', f'v_lshl_add_u32 v{t + 9}, v{t + 10}, 7, v{t + 9}', f'v_and_b32 v{t + 10}, 3, {l16}',
      f'v_lshl_add_u32 v{t + 9}, v{t + 10}, 2, v{t + 9}', f's_add_u32 s68, s71, {WS_HFL}', f'v_add_u32 v{H_HP}, s68, v{t + 9}',
      f's_and_b64 {sHPM}, vcc, {sPM}')
    e(f's_lshl_b32 s68, {sW4}, 8', f's_add_u32 s68, s68, {L_EB}', f'v_lshl_add_u32 v{H_EB}, {kq}, 6, s68')
    e(f's_lshl_b32 s68, {sW4}, 11', f'v_add_u32 v{H_JHI}, s68, v{H_L16}')
    e(f'v_add_u32 v{H_JH2}, {77 * K}, v{H_JHI}')
    e('s_lshr_b32 s68, s2, 3', f's_mul_i32 s68, s68, {o.arrn}', f's_lshr_b32 {sARS}, s68, 5')
    e('s_cmp_eq_u32 s2, 255', 's_cbranch_scc1 L_h_ge')

    x('L_h_ge:')
    mk_srd(ool, SB, S_G, 8192)
    x(f'v_lshlrev_b32 v{H_TMP}, 9, {l16}', f'v_lshl_add_u32 v{H_TMP}, {kq}, 4, v{H_TMP}')
    for ks in range(8):
        x(f'buffer_load_dwordx4 {vr(H_D + 4 * ks)}, v{H_TMP}, {srd(SB)}, 0 offen offset:{ks * 64}')
    x(f'v_lshlrev_b32 v{H_TMP}, 3, {l16}', f'v_lshl_add_u32 v{H_TMP}, {kq}, 12, v{H_TMP}')
    mk_srd(ool, SB, S_WG, 131072)
    x(f's_lshl_b32 s69, {sW4}, 7')
    for ks in range(8):
        x(f's_add_u32 s68, s69, {ks * 16384}')
        for jj in range(8):
            x(f'buffer_load_dwordx2 {vr(H_WF + 16 * ks + 2 * jj, 2)}, v{H_TMP}, {srd(SB)}, s68 offen offset:{jj * 512}')
    now(resets(ool, x))
    x('s_waitcnt vmcnt(0)', 's_barrier')
    arrive(ool, x)
    for ks in range(8):
        src = H_WF + 16 * ks
        for tau in range(4):
            for m_ in range(4):
                x(f'v_perm_b32 v{H_T + 4 * tau + m_}, v{src + 4 * m_ + 2 + (tau >> 1)}, v{src + 4 * m_ + (tau >> 1)}, {"s51" if tau & 1 else "s50"}')
        x('s_nop 1')
        for tau in range(4):
            acc = vr(H_B + 4 * tau)
            x(f'v_mfma_f32_16x16x32_bf16 {acc}, {vr(H_T + 4 * tau)}, {vr(H_D + 4 * ks)}, {"0" if ks == 0 else acc}')
    x('s_nop 7', f's_mov_b32 s68, {fbits(TC)}')
    for i_ in range(16):
        x(f'v_mul_f32 v{H_B + i_}, s68, v{H_B + i_}')
    for i_ in range(16):
        x(f'v_exp_f32 v{H_EA + i_}, v{H_B + i_}')
    x(f'v_max3_f32 v{H_T}, |v{H_B}|, |v{H_B + 1}|, 0')
    for i_ in range(2, 16, 2):
        x(f'v_max3_f32 v{H_T}, |v{H_B + i_}|, |v{H_B + i_ + 1}|, v{H_T}')
    x(f'v_cmp_lt_f32 vcc, {fbits(126.0)}, v{H_T}')
    x(f'v_and_b32 v{H_T + 1}, 15, v0', f'v_lshrrev_b32 v{H_T + 2}, 4, v0', f'v_lshlrev_b32 v{H_T + 1}, 10, v{H_T + 1}',
      f'v_lshl_add_u32 v{H_T + 1}, v{H_T + 2}, 6, v{H_T + 1}', f's_lshl_b32 s68, {sW4}, 8', f's_add_u32 s68, s68, {WS_EB}', f's_add_u32 s69, s68, {WS_GB - WS_EB}')
    for tau in range(4):
        x(f'buffer_store_dwordx4 {vr(H_EA + 4 * tau)}, v{H_T + 1}, {srd(SWS)}, s68 offen offset:{tau * 16} sc1')
        x(f'buffer_store_dwordx4 {vr(H_B + 4 * tau)}, v{H_T + 1}, {srd(SWS)}, s69 offen offset:{tau * 16} sc1')
    x('s_cmp_lg_u64 vcc, 0', 's_cselect_b32 s70, 1, 0', f'v_mov_b32 v{H_T + 3}, s70', f's_lshl_b32 s68, {sW4}, 2', f's_add_u32 s68, s68, {WS_EBF}',
      's_mov_b64 exec, 1', f'buffer_store_dword v{H_T + 3}, v{H_ZERO}, {srd(SWS)}, s68 offen sc1')
    x('s_waitcnt vmcnt(0)', f'buffer_atomic_add v{H_ONE}, v{H_ZERO}, {srd(SD)}, 0 offen offset:128 sc1', 's_mov_b64 exec, -1')
    x('s_branch L_h_join')

    npoll = [0]

    def poll_issue(kind, b):
        if kind in ('cnt', 'ge'):
            line = f'buffer_load_dword v{H_PV}, v{H_CP}, {srd(SD)}, 0 offen offset:{128 if kind == "ge" else 0} sc1'
        else:
            e(f's_mov_b32 s67, {b * 131072}')
            line = f'buffer_load_dword v{H_PV}, v{H_HP if kind == "h" else H_FP}, {srd(SWS)}, s67 offen sc1'
        vm(line, 'poll')
        return kind, line

    def poll_check(kind, line):
        n = npoll[0]
        npoll[0] += 1
        s.wait(vm=lambda t_: t_[1] == 'poll')
        e(f's_mov_b32 {sSPIN}, 0', f'L_poll{n}:')
        e({'cnt': f'v_cmp_le_u32 vcc, 0x100, v{H_PV}' if o.arrm < 2 else f'v_cmp_eq_u32 vcc, 0x01010101, v{H_PV}', 'ge': f'v_cmp_le_u32 vcc, 4, v{H_PV}'}.get(kind, f'v_cmp_eq_u32 vcc, 1, v{H_PV}'))
        e('s_nop 1', f's_andn2_b64 s[68:69], {sHPM if kind == "h" else sPM}, vcc', f's_cbranch_scc1 L_spin{n}', f'L_pok{n}:')
        stamp(f'x_pok_{kind}{n}')
        if o.diag:
            o.names.append(f's_spin_{kind}{n}')
            e(f'v_writelane_b32 v{H_STAMP + nstamp[0] // 64}, {sSPIN}, {nstamp[0] % 64}')
            nstamp[0] += 1
        x(f'L_spin{n}:', f's_add_u32 {sSPIN}, {sSPIN}, 1', f's_cmp_gt_u32 {sSPIN}, {SPIN_LIMIT}', f's_cbranch_scc1 L_pok{n}', f's_cmp_eq_u32 {sSPIN}, 1',
          f's_cbranch_scc1 L_again{n}', f's_sleep {16 if kind in ("cnt", "ge") else o.slp}', f'L_again{n}:', line, 's_waitcnt vmcnt(0)', f's_branch L_poll{n}')

    Q = []

    def q(cost, *lines):
        Q.append((cost, lambda: e(*lines)))

    def qf(f, cost=0.0):
        Q.append((cost, f))

    done = set()

    def mark(name):
        f = lambda: done.add(name)
        f.jmark = name[1]
        qf(f)

    def run_q(budget, dm=()):
        dm = list(dm)
        avail = min(budget, sum(c_ for c_, _ in Q))
        gap = avail / (len(dm) + 1) if dm else 0
        used, nxt = 0.0, 0.0
        while True:
            while dm and used >= nxt:
                dm.pop(0)()
                nxt += gap
            if not (Q and (used < budget or Q[0][0] == 0)):
                break
            c_, f = Q.pop(0)
            f()
            used += c_
        now(dm)
        return used

    def gelu8(v0_, t0):
        for i in range(8):
            q(.5, f'v_mul_f32 v{t0 + i}, v{v0_ + i}, v{v0_ + i}')
        for i in range(8):
            q(.5, f'v_fma_f32 v{t0 + i}, v{t0 + i}, v{H_C2}, {sGC1}')
        for i in range(8):
            q(.5, f'v_mul_f32 v{t0 + i}, v{t0 + i}, v{v0_ + i}')
        for i in range(8):
            q(1, f'v_exp_f32 v{t0 + i}, v{t0 + i}')
        for i in range(8):
            q(.5, f'v_add_f32 v{t0 + i}, 1.0, v{t0 + i}')
        for i in range(8):
            q(1, f'v_rcp_f32 v{t0 + i}, v{t0 + i}')
        for i in range(8):
            q(.5, f'v_mul_f32 v{v0_ + i}, v{v0_ + i}, v{t0 + i}')

    def pack8(dst, v0_):
        for i in range(4):
            q(.5, f'v_cvt_pk_bf16_f32 v{dst + i}, v{v0_ + 2 * i}, v{v0_ + 2 * i + 1}')

    def epi1_read(b, us):
        for u_ in us:
            for hh in range(2):
                s.lds(f'ds_read_b128 {vr(H_D + 8 * u_ + 4 * hh)}, v{H_S1 + hh} offset:{L_ST + (3 - u_) * 8192}', ('e', u_), ('r', L_ST + (3 - u_) * 8192, 8192))
        if 0 in us:
            e(f's_add_u32 s68, {sNQ}, {4 * b}', 's_lshl_b32 s68, s68, 20')
            mk_srd(s, SB, S_WS, 1 << 20, add='s68')

    held = []

    def epi1_unit(u_, defer):
        qf(lambda: s.wait(lg=[('e', u_)]))
        gelu8(H_D + 8 * u_, H_T)
        pack8(H_B + 4 * u_, H_D + 8 * u_)
        st_ = lambda: vm(f'buffer_store_dwordx4 {vr(H_B + 4 * u_)}, v{H_HS}, {srd(SB)}, 0 offen offset:{u_ * 256}{o.hs}', 'st')
        qf((lambda: held.append(st_)) if defer else st_)

    def epi2_read(b, gg):
        for kh in range(2):
            for nh in range(2):
                s.lds(f'ds_read_b128 {vr(H_D + 16 * gg + 8 * kh + 4 * nh)}, v{H_S2 + nh} offset:{L_ST + kh * 16640 + gg * 8320}', ('e', gg), ('r', L_ST + kh * 16640 + gg * 8320, 8288))
        if gg == 0:
            e(f's_add_u32 s68, {sN8}, {8 * b}', 's_lshl_b32 s68, s68, 8', f's_lshl_b32 s69, {sM2}, 3', 's_add_u32 s68, s68, s69',
              f's_add_u32 s68, s68, {sW4}', 's_lshl_b32 s68, s68, 10', f's_add_u32 {sFOFF}, s68, {WS_F}')
        else:
            e(f's_add_u32 {sFOFF}, {sFOFF}, 4096')

    def epi2_unit(gg):
        qf(lambda: s.wait(lg=[('e', gg)]))
        v_ = H_D + 16 * gg
        for i in range(8):
            q(.5, f'v_add_f32 v{v_ + i}, v{v_ + i}, v{v_ + 8 + i}')
        gelu8(v_, H_EAB[1])
        pack8(v_ + 8, v_)
        for i in range(4):
            q(.5, f'v_min_u32 v{v_ + 8 + i}, -2, v{v_ + 8 + i}')
        qf(lambda: vm(f'buffer_store_dwordx4 {vr(v_ + 8)}, v{H_L16}, {srd(SWS)}, {sFOFF} offen sc1', 'st'))

    def flag_set(k):
        stamp(f'x_preflag{k}')
        s.wait(vm=lambda t_: t_[1] == 'st')
        stamp(f'x_flag{k}')
        e(f's_mov_b64 exec, {1 << k}')
        vm(f'buffer_store_dword v{H_ONE}, v{H_FLAG}, {srd(SWS)}, 0 offen sc1', 'flag')
        e('s_mov_b64 exec, -1')
        done.add(f'flag{k}')

    def ld_wf(i):
        e(f's_lshl_b32 s68, {sW4}, 15', f's_add_u32 s68, s68, {WS_WFF + i * 1024}')
        vm(f'buffer_load_dwordx4 {vr(H_WF + 4 * i)}, v{H_L16}, {srd(SWS)}, s68 offen sc1', 'wf')

    def dma_eb():
        def one(i):
            e(f's_lshl_b32 s68, {sW4}, 12', f's_add_u32 m0, s68, {L_EB + i * 1024}', f's_add_u32 s68, s68, {WS_EB + i * 1024}')
            vm(f'buffer_load_dwordx4 v{H_L16}, {srd(SWS)}, s68 offen sc1 lds', 'eb', ('w', L_EB, 16384))

        def fl():
            e(f's_lshl_b32 s68, {sW4}, 2', f's_add_u32 s68, s68, {WS_EBF}')
            vm(f'buffer_load_dword v{H_TMP}, v{H_ZERO}, {srd(SWS)}, s68 offen sc1', 'ebf')
        return [lambda i=i: one(i) for i in range(4)] + [fl]

    def get_ebf():
        s.wait(vm=lambda t_: t_[1] == 'ebf')
        e(f'v_readfirstlane_b32 {sGEF}, v{H_TMP}')

    def ld_f(b, st_=None):
        (st_ or s).e(f's_lshl_b32 s69, {sG}, 10')
        for ka in range(8):
            (st_ or s).e(f's_add_u32 s68, s69, {WS_F + (b * 8 + ka) * 256 * 1024}')
            line = f'buffer_load_dwordx4 {vr(H_D + 4 * ka)}, v{H_L16}, {srd(SWS)}, s68 offen' + (' sc1' if st_ or not o.fplain else '')
            if st_:
                st_.e(line)
            else:
                vm(line, 'f')

    PR = [80, 81, 82, 83, 74, 75, 76, 77]

    def probe_issue(st_, b):
        st_.e(f's_lshl_b32 s68, {sG}, 10', f's_add_u32 s68, s68, {WS_F + (b * 8 + 4) * 256 * K}', f's_add_u32 s70, s{S_WS}, s68', f's_addc_u32 s71, s{S_WS + 1}, 0')
        for ka in range(8):
            st_.e(f's_load_dword s{PR[ka]}, s[70:71], {(ka - 4) * 256 * K + 1020} glc')

    def probe_test(st_):
        st_.e('s_waitcnt lgkmcnt(0)')
        for ka in range(1, 8):
            st_.e(f's_max_u32 s{PR[0]}, s{PR[0]}, s{PR[ka]}')
        st_.e(f's_cmp_eq_u32 s{PR[0]}, -1')

    def f_try(b):
        probe_test(s)
        s.lg = []
        e(f's_cselect_b32 {sFL}, 0, 1', f's_cbranch_scc1 L_ftry{b}')
        ld_f(b, s)
        e(f'L_ftry{b}:')

    def f_force(b):
        e(f's_cmp_eq_u32 {sFL}, 0', f's_cbranch_scc1 L_fwait{b}', f'L_fgot{b}:')
        x(f'L_fwait{b}:', f's_mov_b32 {sSPIN}, 0', f'L_fw{b}:')
        probe_issue(ool, b)
        probe_test(ool)
        x(f's_cbranch_scc0 L_fwd{b}', f's_add_u32 {sSPIN}, {sSPIN}, 1', f's_cmp_gt_u32 {sSPIN}, {SPIN_LIMIT}', f's_cbranch_scc1 L_fwd{b}', 's_sleep 2', f's_branch L_fw{b}', f'L_fwd{b}:')
        ld_f(b, ool)
        x(f's_branch L_fgot{b}')

    def chk_f(b):
        if o.probe:
            s.drain(lg=False)
        s.wait(vm=lambda t_: t_[1] in ('f', 'wf'))
        e(f's_mov_b32 {sSPIN}, 0', f'L_fchk{b}:')
        e(f'v_max3_u32 v{H_MX}, v{H_D}, v{H_D + 1}, v{H_D + 2}')
        for i in range(3, 31, 2):
            e(f'v_max3_u32 v{H_MX}, v{H_D + i}, v{H_D + i + 1}, v{H_MX}')
        e(f'v_max_u32 v{H_MX}, v{H_D + 31}, v{H_MX}', f'v_cmp_eq_u32 vcc, -1, v{H_MX}', 's_nop 1', 's_cmp_lg_u64 vcc, 0', f's_cbranch_scc1 L_fspin{b}', f'L_fok{b}:')
        stamp(f'x_fok{b}')
        if o.diag:
            o.names.append(f's_spin_f{b}')
            e(f'v_writelane_b32 v{H_STAMP + nstamp[0] // 64}, {sSPIN}, {nstamp[0] % 64}')
            nstamp[0] += 1
        x(f'L_fspin{b}:', f's_add_u32 {sSPIN}, {sSPIN}, 1', f's_cmp_gt_u32 {sSPIN}, {SPIN_LIMIT}', f's_cbranch_scc1 L_fok{b}', f's_sleep {o.slp}')
        ld_f(b, ool)
        x('s_waitcnt vmcnt(0)', f's_branch L_fchk{b}')

    def fe(b):
        EA = H_EAB[b]
        qf(lambda: chk_f(b), 9)
        for tau in range(4):
            for ka in range(8):
                acc = vr(EA + 4 * tau)
                q(1, f'v_mfma_f32_16x16x32_bf16 {acc}, {vr(H_WF + 32 * tau + 4 * ka)}, {vr(H_D + 4 * ka)}, {"0" if ka == 0 else acc}')
        q(0, 's_nop 7', f's_mov_b32 s55, {fbits(TC)}')
        for i in range(16):
            q(.5, f'v_mul_f32 v{EA + i}, s55, v{EA + i}')
        q(.5, f'v_max3_f32 v{H_MX}, |v{EA}|, |v{EA + 1}|, 0')
        for i in range(2, 16, 2):
            q(.5, f'v_max3_f32 v{H_MX}, |v{EA + i}|, |v{EA + i + 1}|, v{H_MX}')
        q(16, f'v_cmp_lt_f32 vcc, {fbits(126.0)}, v{H_MX}', 's_nop 1', 's_cmp_lg_u64 vcc, 0', f's_cselect_b32 {sSLOW[b]}, 1, {sGEF}',
          f's_cmp_lg_u32 {sSLOW[b]}, 0', f's_cbranch_scc1 L_noexp{b}', *[f'v_exp_f32 v{EA + i}, v{EA + i}' for i in range(16)], f'L_noexp{b}:')

    def eb_read(k):
        for i in range(4):
            s.lds(f'ds_read_b128 {vr(H_B + 4 * i)}, v{H_EB} offset:{k * 1024 + i * 16}', ('eb', k), ('r', L_EB + k * 1024, 1024))

    def jstep(k, nxt):
        def head():
            s.wait(lg=[('eb', k)])
            e(f's_cmp_lg_u32 {sSLOW[k // 8]}, 0', f's_cbranch_scc1 L_js{k}')
            for i in range(16):
                e(f'v_fma_f32 v{H_T + i}, v{H_EAB[k // 8] + i}, v{H_B + i}, 1.0')
            e(f'L_jb{k}:')
            if nxt:
                eb_read(k + 1)
        qf(head, 8)
        x(f'L_js{k}:', f's_mov_b32 {sBU}, {WS_GB - L_EB + k * 1024}', f's_call_b64 {sRET}, L_slow{k // 8}', f's_branch L_jb{k}')
        sl = L_J[k % NJ]
        a, off = (H_JHI, sl) if sl < 60 * K else (H_JH2, sl - 77 * K)
        for hf in range(2):
            for i in range(8 * hf, 8 * hf + 8):
                q(1, f'v_rcp_f32 v{H_T + i}, v{H_T + i}')
            for i in range(8 * hf, 8 * hf + 8):
                q(.5, f'v_fma_f32 v{H_T + i}, v{H_T + i}, -2.0, 1.0')
            pack8(H_T + 8 * hf, H_T + 8 * hf)
            qf(lambda hf=hf: s.lds(f'ds_write_b128 v{a}, {vr(H_T + 8 * hf)} offset:{off + hf * 1024}', ('jw', k), ('w', sl, 8192)))
        mark(('j', k))

    for b in range(2):
        x(f'L_slow{b}:', 's_waitcnt lgkmcnt(0)')
        for i in range(4):
            x(f'buffer_load_dwordx4 {vr(H_B + 4 * i)}, v{H_EB}, {srd(SWS)}, {sBU} offen offset:{i * 16} sc1')
        x('s_waitcnt vmcnt(0)')
        for i in range(16):
            x(f'v_add_f32 v{H_T + i}, v{H_EAB[b] + i}, v{H_B + i}')
        for i in range(16):
            x(f'v_exp_f32 v{H_T + i}, v{H_T + i}')
        for i in range(16):
            x(f'v_add_f32 v{H_T + i}, 1.0, v{H_T + i}')
        x(f's_setpc_b64 {sRET}')

    def t_base(kind, arg):
        if kind == 'w2':
            e(f's_and_b32 s68, {sM2}, 3', 's_lshl_b32 s68, s68, 2', f's_add_u32 s68, s68, {sW4}', 's_lshl_b32 s68, s68, 10', f's_lshl_b32 s69, {sN8}, 18',
              's_add_u32 s68, s68, s69', f's_add_u32 s68, s68, {WS_W2F}')
        elif kind == 'wfo':
            e(f's_and_b32 s68, {sG}, 31', 's_lshl_b32 s68, s68, 2', f's_add_u32 s68, s68, {sW4}', 's_lshl_b32 s68, s68, 10', f's_add_u32 s68, s68, {arg}')
        else:
            d = sub(32 + arg)
            e(f's_lshl_b32 s68, {sN8}, 2', f's_add_u32 s68, s68, {sW4}', 's_mul_i32 s68, s68, 17', 's_lshr_b32 s68, s68, 2', 's_lshl_b32 s68, s68, 1',
              f's_lshl_b32 s69, {sM2}, 8', 's_add_u32 s68, s68, s69', f's_sub_u32 s68, s68, {7 - d["p"]}', 's_max_i32 s68, s68, 0', 's_lshl_b32 s68, s68, 7',
              f's_add_u32 s68, s68, {WS_H + (d["b"] * 4 + d["c64"]) * (1 << 20)}')
        e(f's_add_u32 s70, s{S_WS}, s68', f's_addc_u32 s71, s{S_WS + 1}, 0')

    def t_item(kind, arg, offs):
        def f():
            t_base(kind, arg)
            for x_ in offs:
                e(f's_load_dword s78, s[70:71], {x_}')
        return f
    TQ = {}

    def t_plan():
        k = o.cntp + 1
        def put(k_, it):
            TQ.setdefault(k_, []).append(it)
        if o.tf:
            put(k, t_item('wfo', WS_WFF, [i * 64 for i in range(16)]))
            k += 1
        if o.tw:
            for c32 in range(o.tw):
                for tau in range(2):
                    while k in o.tskip:
                        k += 1
                    put(k, t_item('w2', 0, [tau * 131072 + c32 * 16384 + i * 64 for i in range(16)]))
                    k += 1
        if o.to:
            put(o.to, t_item('wfo', WS_WOF, [i * 64 for i in range(16)]))
        if o.th:
            for g, k_ in ((2, 29), (3, 30), (4, 31), (5, 33), (6, 34), (7, 35), (11, 39), (12, 41), (13, 42), (14, 43)):
                if g < 8 or k_ > o.h1p:
                    put(k_, t_item('h', g, [r_ * 256 + hh * 64 for r_ in range(5) for hh in range(2)]))
    t_plan()

    e('s_branch L_hmain', ';SPLIT', 'L_hmain:', ';HOP')
    bar('P0', lambda t_: t_[0] == 'P0', lambda t_: False)
    wf_next = [0]
    early = [lambda tau=tau: prep_b(tau) for tau in range(4)] + resets(s, lambda l_: vm(l_, 'rst'))[:1]
    frst = resets(s, lambda l_: vm(l_, 'st'))[1:]
    last_early = [0]
    PF = [(PL.ifirst[k_] + i // 5, f's_load_dword s78, s[{74 + 2 * b_}:{75 + 2 * b_}], {i * 1024 + (st & 1) * 512 + (st >> 1) * 128 + hh * 64}')
          for k_, (b_, st) in enumerate(PL.IL) if k_ >= o.pf0 + (1 if PL.M else 0) for i in range(9) for hh in range(2)]
    pend_flag = []

    def late_flag(dm, at):
        if pend_flag and pend_flag[0][1] != cur[0]:
            assert not frst
            k_ = pend_flag.pop(0)[0]
            dm.insert(len(dm) if k_ == 0 else 0, lambda: flag_set(k_))
    polls = {o.cntp: ('cnt', 0), o.h0p: ('h', 0), o.h1p: ('h', 1), o.gep: ('ge', 0)}
    assert len(polls) == 4 and o.gep < 36 and o.cntp > JOIN

    for sig in range(48):
        cur[0] = f'B{sig}'
        s.c(f'--- interval {sig}')
        now(held)
        held.clear()
        P = poll_issue(*polls[sig]) if sig in polls else None
        if sig == o.f0p + 1:
            assert not Q
            if o.probe:
                e(f's_mov_b32 {sFL}, 0')
                f_force(0)
                q(o.f0w, 's_nop 0')
            fe(0)
            qf(lambda: eb_read(0))
            for k in range(8):
                jstep(k, True)
        if sig >= o.st0:
            for _ in range(o.stn):
                if early:
                    early.pop(0)()
        if sig >= o.fr0 and frst:
            frst.pop(0)()
        if sig == o.arr - 1:
            assert not early and last_early[0] < sig
        if early:
            last_early[0] = sig + 1
        if sig in (PL.eA + 1, 32):
            epi1_read(sig // 32, [0])
            epi1_unit(0, sig < 32 and o.defer)
        if PL.M and sig == PL.eA + 2:
            epi1_read(0, [1, 2])
            epi1_unit(1, o.defer)
            epi1_unit(2, o.defer)
        if sig in (PL.eA + 3 if PL.M else 18 if o.redir else 17, 33):
            us = [3] if (PL.M and sig < 32) else [1, 2, 3]
            epi1_read(sig // 32, us)
            for u_ in us:
                epi1_unit(u_, sig < 32 and o.defer)
            if sig < 32 and o.defer:
                qf(lambda: held.append(lambda: pend_flag.append((0, cur[0]))))
            else:
                qf(lambda k_=sig // 32: pend_flag.append((k_, cur[0])))
        if sig == 40:
            epi2_read(0, 0)
            epi2_unit(0)
        if sig == 41:
            qf(lambda: epi2_read(0, 1))
            epi2_unit(1)
            qf(lambda: stamp('x_fst0'))
        dm = []
        if not cwin(o, sig):
            for kind, i in PL.win.get(sig, []):
                dm += dma_x(i) if kind == 'x' else dma_w(i)
        for _ in range(o.wf14 if sig == 14 else o.wfn if sig < 30 else 6):
            if sig > o.cntp + 2 * o.tf and (sig % 2 == 1 or sig in (14, 30) or (PL.M and sig == 28)) and sig not in polls and not (PL.M and PL.eA < sig < PL.eA + 5) and wf_next[0] < 32:
                dm.append(lambda i=wf_next[0]: ld_wf(i))
                wf_next[0] += 1
        if 36 <= sig <= 38:
            dm += dma_eb()[2 * (sig - 36):2 * (sig - 36) + 2]
        if sig == 40:
            get_ebf()
        T_ = 4 * sub(sig)['T'] + (4 * sub(sig - 1)['T'] if sig else 0)
        nd = len(dm)
        late_flag(dm, 0)
        run_q(T_ - o.qm - nd * o.qd, dm)
        if sig == o.pa:
            prep_a()
        if sig == o.f0p and not o.probe:
            assert not Q
            if o.xb >= 0:
                s.barrier('X')
            ld_f(0)
        if o.arr <= sig < o.arr + o.arrn and o.arrm == 0:
            assert o.arr + o.arrn - 1 <= JOIN and o.fr0 + 3 <= JOIN and o.arrm == 0
            e(f's_cmp_eq_u32 {sARS}, {sig - o.arr}', 's_cselect_b32 s68, 0, 0x40000000')
            vm(f'buffer_atomic_add v{H_ONE}, v{H_ARR}, {srd(SD)}, s68 offen sc1', 'arr')
        e(';HOP')
        if sig == 0:
            for i in range(o.tc, 5):
                e(f's_load_dword s82, s[80:81], {i * 16384}', f's_load_dword s82, s[80:81], {i * 16384 - 256}')
        tch = {0: 3} if o.pf == 1 else dict(zip(o.tw1, range(4))) if o.pf == 2 else {}
        if sig in tch:
            for i in range(4):
                e(f's_load_dword s82, s[60:61], {tch[sig] * 32768 + i * 64}', f's_load_dword s82, s[60:61], {tch[sig] * 32768 - 1024 + i * 64}')
        if o.pfx and sig >= o.pfs and sig not in tch and sig not in ((PL.eA, PL.eA + 1, PL.eA + 2) if PL.M else (15, 17) if o.redir else (15, 16)):
            n_ = 0
            while PF and n_ < o.pfn and PF[0][0] <= sig + o.pfd:
                if n_ == 0:
                    s.wait(lg=lambda t_: True)
                e(PF.pop(0)[1])
                n_ += 1
        if sig in TQ:
            s.wait(lg=lambda t_: True)
            now(TQ[sig])
        if P:
            if P[0] == 'h':
                assert f'flag{polls[sig][1]}' in done
            poll_check(*P)
        lgp = lambda t_: t_[0] == 'e' or (t_[0] == 'jw' and t_[1] <= 0 and sig == 47)
        if sig == 47:
            assert ('j', 0) in done
        vmp = lambda t_: (t_[1][0] == 'dl' and t_[1][1] <= sig) or (sig == o.arr - 1 and t_[1] in ('pst', 'rst')) or (sig == 40 and t_[1] == 'eb')
        bar(f'B{sig}', vmp, lgp)
        if o.diag == 2 and sig % 4 == 3:
            stamp(f'c_{sig}')
            stamp(f'r_{sig}', True)
        if sig == JOIN:
            e('L_h_join:')
    assert wf_next[0] == 32
    for n_, k in enumerate(o.jb):
        cur[0] = f'J{k}'
        nxt = o.jb[n_ + 1] if n_ + 1 < len(o.jb) else 15
        s.c(f'--- joint interval {k}')
        if k == 0 and o.jprio:
            e('s_setprio 3')
        if n_ <= 1:
            print(f'j steps done before window {n_}:', sorted(d_[1] for d_ in done if d_[0] == 'j'), file=sys.stderr)
            cut = 0 if n_ == 0 else next((i + 1 for i, it in enumerate(Q) if it[1].__name__ == 'u0end'), 0)
            rest = Q[cut:]
            del Q[cut:]
            qf(lambda n_=n_: epi2_read(1, n_))
            epi2_unit(n_)
            if n_ == 0:
                def u0end():
                    pass
                qf(u0end)
            else:
                qf(lambda: (stamp('x_fst1'), done.add('fst1')))
                if o.jprio in (1, 3):
                    q(0, 's_setprio 0')
            Q.extend(rest)
            if n_ == 1:
                def after(jn):
                    return next(i + 1 for i, it in enumerate(Q) if getattr(it[1], 'jmark', None) == jn)
                if o.probe:
                    i_ = after(o.f1a)
                    Q.insert(i_ + o.f1c, (0, lambda: f_try(1)))
                    Q.insert(i_, (0, lambda: probe_issue(s, 1)))
                else:
                    Q.insert(after(o.f1a), (0, lambda: ld_f(1)))
                cut = after(o.f1b)
                rest = Q[cut:]
                del Q[cut:]
                if o.probe:
                    qf(lambda: f_force(1))
                if o.jprio == 3:
                    q(0, 's_setprio 3')
                fe(1)
                Q.extend(rest)
                for k_ in range(8, 16):
                    jstep(k_, k_ < 15)
                    if k_ == 8 and o.jprio == 3:
                        q(0, 's_setprio 0')
        if n_ == 0:
            run_q(o.qj0)
        while ('j', nxt) not in done:
            run_q(1)
        if n_:
            run_q(o.joff if k >= 7 else o.joff0)
        bar(f'J{k}', lambda t_: False, lambda t_: t_[0] == 'e' or (t_[0] == 'jw' and t_[1] <= nxt))
        if o.diag == 2 and k in (0, 7, 11):
            stamp(f'c_J{k}')
            stamp(f'r_J{k}', True)
    assert not Q
    if o.diag:
        flush_stamps()
        stamp('end')
        stamp('rt1', True)
        flush_stamps()
        e(f's_lshl_b32 s68, s2, 2', f's_add_u32 s68, s68, {sW4}', 's_lshl_b32 s68, s68, 11', f's_add_u32 s68, s68, {WS_DIAG}', f'v_lshlrev_b32 v{H_TMP}, 2, v0')
        for i in range(3):
            e(f'buffer_store_dword v{H_STAMP + i}, v{H_TMP}, {srd(SWS)}, s68 offen offset:{i * 256}')
    e('s_endpgm')
    return s, ool


def sizes_of(lines):
    import subprocess, re, os
    body = [l for l in lines]
    labels = set(re.findall(r'\bL[\w]+', '\n'.join(l.split(';')[0] for l in body)))
    defined = set(l.strip()[:-1] for l in body if l.strip().endswith(':'))
    txt = '.amdgcn_target "amdgcn-amd-amdhsa--gfx950"\n.text\n' + '\n'.join(body) + '\n' + ''.join(f'{l}:\n' for l in labels - defined) + 's_endpgm\n'
    open('_sz.s', 'w').write(txt)
    subprocess.run(['clang', '-x', 'assembler', '-target', 'amdgcn-amd-amdhsa', '-mcpu=gfx950', '-c', '_sz.s', '-o', '_sz.o'], check=True)
    d = subprocess.run(['llvm-objdump', '-d', '--mcpu=gfx950', '_sz.o'], capture_output=True, text=True).stdout
    ad = [int(m, 16) for m in re.findall(r'// ([0-9A-F]{12}):', d)]
    out, k = [], 0
    for l in body:
        t = l.split(';')[0].strip()
        if not t or t.endswith(':'):
            out.append(0)
        else:
            out.append(ad[k + 1] - ad[k])
            k += 1
    assert k == len(ad) - 1
    return out


def warm_pages(o, cl, cool, hl):
    isbar = lambda l: l.strip().startswith('s_barrier') and not l.strip().endswith('; X')
    base = cl + cool + hl
    sz = sizes_of(base)
    nc, h0 = len(cl), len(cl) + len(cool)
    hops = {}
    for it in range(30):
        out, pc, page, nb, sites, masked = [], 0, 1, 0, [], False
        for i, l in enumerate(base):
            if i == h0:
                nb = 0
            if i >= h0 and l.strip() == ';HOP':
                for pg in hops.get(nb, []):
                    out += ['    s_mov_b64 exec, 0', f'    s_branch L_pg{pg}', f'L_pb{pg}:', '    s_mov_b64 exec, -1']
                    pc += 12
            if sz[i] and pc >= page * 4096 and not masked:
                if i < nc or (i >= h0 and nb in o.busy):
                    out += [f'L_pg{page}:', f'    s_cbranch_execz L_pb{page}']
                    sites.append((page, nb, i >= h0))
                    pc += 4
                page += 1
            out.append(l)
            if l.strip().startswith('s_mov_b64 exec'):
                masked = not l.strip().endswith('-1')
            pc += sz[i]
            if isbar(l):
                nb += 1
        new = {}
        busy = o.busy
        for pg, b, own in sites:
            k = max(b - (3 if own else 2), 0)
            while k > 0 and (k in busy or (k < 31 and k % 2) or len(new.get(k, [])) >= (1 if k < 31 else 2)):
                k -= 1
            new.setdefault(k, []).append(pg)
        if new == hops:
            print('pages', sites, 'hops', hops, file=sys.stderr)
            return out
        if it >= 5 and sorted(p_ for v_ in new.values() for p_ in v_) == sorted(p_ for v_ in hops.values() for p_ in v_):
            return out
        hops = new
    raise RuntimeError('no fixpoint')


def gen(o):
    global PL, JOIN
    JOIN = o.join
    PL = Plan(o.M)
    if o.M:
        o.redir = 0
        o.busy = set([1] + list(range(PL.eA + 2, PL.eA + 7)) + [33, 34, 35, 36, 41, 42] + list(range(45, 70)))
    p = gen_entry(o)
    c, cool = gen_compute(o, p)
    h, ool = gen_helper(o, p)
    assert c.nbar == h.nbar, (c.nbar, h.nbar)
    errs = lint(p.l + c.l, 'C') + lint(p.l + h.l, 'H') + lint(ool.l, 'ool') + lint(cool.l, 'cool')
    for ec, eh in zip(c.ev, o.hentry):
        ec['done'] = max(ec['done'], eh['done'])
    races = lds_races([c, h])
    errs += races[:20] + lint_async(p.l + c.l, 'C')[:20] + lint_async(p.l + h.l, 'H')[:20]
    for x in errs:
        print('LINT', x, file=sys.stderr)
    hdr = open('standalone__seq2seq_rnn_t_joint__speech.s.ref').read().split('\n')
    hdr = [l for l in hdr if l.startswith(';') and '@launch' not in l]
    out = '\n'.join(hdr[:11]) + '\n'
    out += '; @launch grid=(256,1,1) block=(512,1,1) lds=163840\n'
    out += DOC
    out += f'''.amdgcn_target "amdgcn-amd-amdhsa--gfx950"
.text
.globl {KN}
.p2align 8
.type {KN},@function
{KN}:
'''
    cut = next(i for i, l in enumerate(h.l) if l.strip() == ';SPLIT')
    h1, h2 = h.l[:cut], h.l[cut + 1:]
    body = warm_pages(o, c.l, cool.l, h2) if o.warm else c.l + cool.l + h2
    out += p.text() + '\n'.join(h1) + '\n.p2align 12\nL_compute:\n' + '\n'.join(body) + '\n' + ool.text() + 'L_exit:\n    s_endpgm\n.p2align 8\n' + '    s_endpgm\n' * 2048
    out += f'''.section .rodata,"a"
.p2align 6
.amdhsa_kernel {KN}
  .amdhsa_next_free_vgpr 256
  .amdhsa_next_free_sgpr {102 if o.diag else 96}
  .amdhsa_accum_offset 256
  .amdhsa_group_segment_fixed_size 0
  .amdhsa_kernarg_size 80
  .amdhsa_user_sgpr_count 2
  .amdhsa_user_sgpr_kernarg_segment_ptr 1
  .amdhsa_system_sgpr_workgroup_id_x 1
.end_amdhsa_kernel
'''
    print(f'mfma={c.nmfma} barriers={c.nbar} lines C={len(c.l)} H={len(h.l)} ool={len(ool.l)} lint={len(errs)}', file=sys.stderr)
    return out


if __name__ == '__main__':
    o = Opt()
    outp = sys.argv[1]
    for a in sys.argv[2:]:
        k, v = a.split('=')
        assert hasattr(o, k), k
        if k in ('xf', 'wf', 'of', 'of2', 'hf', 'hs', 'w2f', 'w2g'):
            setattr(o, k, v.replace('_', ' '))
            continue
        setattr(o, k, tuple(int(y) for y in v.split(',') if y) if k in ('cw', 'jb', 'idle_at', 'tw1') else float(v) if '.' in v else int(v))
    txt = gen(o)
    if o.diag:
        txt += '; STAMPS ' + ' '.join(o.names) + '\n; CSTAMPS ' + ' '.join(o.cnames) + '\n'
    open(outp, 'w').write(txt)
    import subprocess, re
    subprocess.run(['clang', '-x', 'assembler', '-target', 'amdgcn-amd-amdhsa', '-mcpu=gfx950', '-c', outp, '-o', '_fin.o'], check=True)
    d = subprocess.run(['llvm-objdump', '-d', '-h', '_fin.o'], capture_output=True, text=True).stdout
    pc = int(re.search(r'([0-9a-f]+) <L_pc>', d).group(1), 16)
    size = int(re.search(r'\.text\s+([0-9a-f]+)', d).group(1), 16)
    end = int(re.search(r'([0-9a-f]+) <L_exit>', d).group(1), 16)
    assert pc + 5 * 16384 <= size and end <= pc + 5 * 16384, (pc, end, size)
    r = subprocess.run([sys.executable, 'cdna_unwritten_srd_check.py', outp], capture_output=True, text=True)
    assert r.returncode == 0, r.stdout + r.stderr
```

```python
import sys, struct
from stream import Stream, lint, lds_races, lint_async

KN = 'standalone__seq2seq_rnn_t_joint__speech_kernel'
K = 1024
OOB = 0x80000000
WS_H = 0
WS_F = 8 << 20
WS_W2F = 12 << 20
WS_WFF = 14 << 20
WS_WOF = WS_WFF + 128 * K
WS_EB = WS_WFF + 256 * K
WS_GB = WS_EB + 16 * K
WS_EBF = WS_GB + 16 * K
WS_W1F = 18 << 20
WS_HFL = 15 << 20
WS_FFL = WS_HFL + 256 * K
WS_DIAG = 16 << 20
WS_SIZE = 19 << 20
L_SLOT = [0, 60 * K, 92 * K]
L_ST = 28 * K
L_XB = 90 * K
L_X = [124 * K, 141 * K]
L_X2 = 43 * K
L_IMG = [124 * K, 107 * K, 90 * K, 141 * K]
L_EB = 61 * K
L_J = [0, 8 * K, 16 * K, 77 * K, 124 * K, 132 * K, 107 * K, 115 * K]
NJ = len(L_J)
ZT = [2, 0, 3, 1, 0, 2, 4, 3, 7, 4, 6, 5, 0, 6, 4, 7, 2]
T0 = sum(ZT[l] << (4 * l) for l in range(16))
T1 = sum(ZT[l + 1] << (4 * l) for l in range(16))
JOIN = 15


def fbits(x):
    return '0x%08x' % struct.unpack('<I', struct.pack('<f', x))[0]


GC1 = -2 * 0.7978845608028654 * 1.4426950408889634
GC2 = GC1 * 0.044715
TC = 2 * 1.4426950408889634


def vr(b, n=4):
    return f'v[{b}:{b + n - 1}]'


S_X, S_W1, S_W2, S_G, S_WF, S_WG, S_WO, S_OUT, S_DBG, S_WS = 4, 6, 8, 10, 12, 14, 16, 18, 20, 22
sWAVE, sW4, sM, sNQ, sM2, sN8, sG, sHW1K = 's24', 's25', 's26', 's27', 's28', 's29', 's30', 's31'
SA, SW1, SWS, SB, SD = 32, 36, 40, 44, 92


def srd(n):
    return f's[{n}:{n + 3}]'


def mk_srd(s, n, base, nrec, add=None):
    if add is None:
        s.e(f's_mov_b32 s{n}, s{base}', f's_mov_b32 s{n + 1}, s{base + 1}')
    else:
        s.e(f's_add_u32 s{n}, s{base}, {add}', f's_addc_u32 s{n + 1}, s{base + 1}, 0')
    s.e(f's_mov_b32 s{n + 2}, {nrec}', f's_mov_b32 s{n + 3}, 0x20000')


DOC = """;
; One persistent workgroup per CU (256 workgroups, 8 waves): waves 0-3 run the MFMA stream, waves 4-7 ("helpers") stage
; operands, run the activations and handle the hand-offs.  The code is generated (fully unrolled, barrier-delimited intervals).
;          ds_read; rows are interleaved (t = 8*l + block) so one x fragment serves up to 8 taps; the first half of the
;          weight sets is shared by both batches, then batch 0 finishes, then batch 1 (this hides the hand-off latency).
;   conv2  128 rows x 32 channels per batch, K split over wave pairs; w2 comes re-laid-out (fragment order) from d_ws.
;   joint  16 rows x 8 u per batch: helpers compute fe = f @ w_f, j = tanh(fe + ge) = 1 - 2 / (1 + 2^(c*fe) * 2^(c*ge)),
;          c = 2*log2(e) (direct 2^(c*fe + c*ge) whenever either factor could leave the normal range), MFMA waves j @ w_o.
; Hand-offs through d_ws: write-through (sc1) stores; h tiles are announced by flags (reset in this launch, validity counted
; in d_debug), f tiles carry their own readiness (reset to all ones in this launch).  Every wait is bounded.
"""


class Opt:
    diag = 0
    prio = 0
    cst = -1
    pf = 2
    pfx = 1
    pf0 = 3
    pfn = 10
    fr0 = 10
    pfd = 7
    pa = 0
    hopcap = {2: 1, 6: 2, 10: 3, 12: 1, 30: 2, 31: 1, 36: 1, 37: 2, 38: 2, 39: 2, 42: 2, 43: 1}
    s32 = 1
    fnow = 30
    jcp = 1
    fplain = 1
    tw1 = (0, 2, 5, 9)
    xf = ' nt sc1'
    hf = ' sc1'
    hs = ' sc1'
    w2f = ' sc1'
    w2g = ' sc1'
    wf = ' sc1'
    of = ' nt sc1'
    of2 = ''
    ofk = 16
    join = 15
    tc = 3
    pfs = 1
    wf14 = 12
    st0 = 1
    stn = 1
    wfn = 4
    arrn = 3
    M = 8
    redir = 1
    lazy = 1
    defer = 0
    skip = 0
    idle = 0
    idle_at = (10,)
    xb = -1
    ext = 10
    extv = 56
    pack = 1
    tf = 0
    tw = 0
    to = 37
    th = 0
    tskip = (17, 31, 32)
    otouch = 0
    bl = 1
    jprio = 3
    jb = (0, 3, 5, 7, 8, 9, 10, 11, 12, 13, 14)
    f1a = 5
    f1b = 7
    joff0 = 8
    arrm = 0
    arr = 7
    cntp = 13
    gep = 35
    h0p = 30
    h1p = 38
    f0p = 43
    f1p = 3
    qm = 3
    qd = 2.0
    qj = 40
    qj0 = 48
    span = 0
    probe = 0
    f0w = 40
    f1c = 22
    joff = 14
    serp = 1
    warm = 1
    busy = set([1, 17, 19, 20, 21, 33, 34, 35, 36, 41, 42] + list(range(45, 70)))
    cw = (24, 25, 26, 27)
    slp = 6


class Plan:
    def __init__(p, M):
        p.M = M
        p.order = [(b, r) for r in range(M) for b in range(2)] + [(0, r) for r in range(M, 16)] + [(1, r) for r in range(M, 16)]
        p.WL = list(range(M)) + 2 * list(range(M, 16))
        p.wn = [sg // 2 if sg < 2 * M else sg - M for sg in range(32)]
        p.wfirst = [p.wn.index(n) for n in range(len(p.WL))]
        p.wslot = [L_SLOT[(n + M) % 3] for n in range(len(p.WL))]
        p.IL = []
        for b, r in p.order:
            if (b, r >> 1) not in p.IL:
                p.IL.append((b, r >> 1))
        p.img = [p.IL.index((b, r >> 1)) for b, r in p.order]
        p.ifirst = [p.img.index(i) for i in range(16)]
        ilast = [31 - p.img[::-1].index(i) for i in range(16)]
        p.ibuf = [L_X[i & 1] for i in range(16)] if M == 0 else [(L_X[1], L_X[0], L_X2)[i % 3] for i in range(M + 1)] + [L_X[(i - M) & 1] for i in range(M + 1, 16)]
        assert M in (0, 8) and p.ibuf[14:] == L_X
        p.eA = p.order.index((0, 15))
        p.win = {}
        p.npi = 3 if M else 2
        for i in range(p.npi, 16):
            prev = max(k for k in range(i) if p.ibuf[k] == p.ibuf[i])
            w = ilast[prev] + 1 if i <= M else p.ifirst[i] - 2
            assert ilast[prev] + 1 <= w <= p.ifirst[i] - 2 or (i <= M and w <= p.ifirst[i] - 1), (i, w)
            p.win.setdefault(w, []).append(('x', i))
        for w, it in ([(0, ('w', 1)), (1, ('x', 2)), (1, ('w', 2))] if M else [(0, ('w', 2)), (0, ('x', 1))]):
            p.win.setdefault(w, []).append(it)
        for n in range(3, len(p.WL)):
            w = p.wfirst[n - 3] + 1 + (1 if M and n == 3 else 0)
            assert w <= p.wfirst[n] - 2
            p.win.setdefault(w, []).append(('w', n))

    def wset(p, n):
        r = p.WL[n]
        return dict(c64=r >> 2, p=(r >> 1) & 1, kh=r & 1, T=8 - ((r >> 1) & 1))


PL = None


def sub(sig):
    if sig < 32:
        b, r = PL.order[sig]
        c64, p, kh = r >> 2, (r >> 1) & 1, r & 1
        return dict(ph=1, b=b, c64=c64, p=p, kh=kh, T=8 - p, first=r == 0, last=r == 15,
                    xbuf=PL.ibuf[PL.img[sig]], bank=PL.wn[sig] & 1, wk=PL.wn[sig], acc=216 if (PL.M and b == 0) else 24)
    g = sig - 32
    b, r = divmod(g, 8)
    c64, p = r >> 1, r & 1
    return dict(ph=2, b=b, c64=c64, p=p, kh=None, T=8 - p, first=r == 0, last=r == 7,
                xbuf=L_IMG[g & 3], bank=(g + 2) % 3, wk=sig, acc=24)


def cwin(o, win):
    return win >= 30 or win in o.cw


def w1_off(n, j):
    d = PL.wset(n)
    return (2 * j + d['p']) * 131072 + (64 * d['c64'] + 32 * d['kh']) * 512


def x_base(s_, b):
    if b:
        s_.e(f's_add_u32 s{SA}, s{S_X}, 8192000', f's_addc_u32 s{SA + 1}, s{S_X + 1}, 0')
    else:
        s_.e(f's_mov_b32 s{SA}, s{S_X}', f's_mov_b32 s{SA + 1}, s{S_X + 1}')


H_XV, H_HV, H_WD = 1, 11, 21
E_SP, E_GAM, E_S = 240, 241, 242


def img_addr(e, dst, lreg, rowbase, shift, t):
    e(f's_lshl_b32 s74, {lreg}, 2', 's_lshr_b64 s[76:77], s[68:69], s74', 's_and_b32 s76, s76, 7',
      f's_lshl_b32 s74, {lreg}, 4', f's_add_u32 s74, s74, {rowbase}', 's_sub_u32 s74, s74, 7')
    e(f'v_lshl_add_u32 v{t}, v{E_S}, 1, s74', f'v_xor_b32 v{t + 1}, s76, v{E_GAM}', f'v_lshlrev_b32 v{t + 1}, 4, v{t + 1}',
      f'v_lshl_add_u32 v{dst}, v{t}, {shift}, v{t + 1}')


def gen_entry(o):
    p = Stream('P')
    e = p.e
    e('s_cmp_ge_u32 s2, 256', 's_cbranch_scc1 L_exit')
    if o.span:
        e('s_memrealtime s[94:95]')
    e('s_load_dwordx4 s[4:7], s[0:1], 0', 's_load_dwordx8 s[8:15], s[0:1], 16', 's_load_dwordx8 s[16:23], s[0:1], 48')
    e('v_lshrrev_b32 v1, 6, v0', 's_and_b32 s70, s2, 7', 's_lshr_b32 s71, s2, 3', f'v_readfirstlane_b32 {sWAVE}, v1', 'v_and_b32 v0, 63, v0')
    if o.serp:
        e('s_bitcmp1_b32 s2, 0', 's_cselect_b32 s72, 0, 31', 's_xor_b32 s71, s71, s72')
    e('s_lshl_b32 s72, s70, 3', 's_lshr_b32 s73, s71, 2', f's_add_u32 {sM}, s72, s73', f's_and_b32 {sNQ}, s71, 3')
    e(f'v_lshrrev_b32 v{E_SP}, 3, v0', f'v_and_b32 v{E_GAM}, 7, v0', f's_and_b32 {sW4}, {sWAVE}, 3', f's_lshl_b32 {sHW1K}, {sW4}, 10')
    e(f's_mov_b32 s68, {T0 & 0xffffffff}', f's_mov_b32 s69, {T0 >> 32}', f's_and_b32 s78, {sW4}, 1', f'v_xor_b32 v{E_S}, s78, v{E_SP}')
    e(f's_lshr_b32 s79, {sWAVE}, 2', 's_xor_b32 s79, s79, 1', 's_lshl_b32 s75, s79, 3', f's_add_u32 s75, s75, {sW4}', f's_lshl_b32 s67, {sM}, 8')
    img_addr(e, H_XV, 's75', 's67', 9, 243)
    e('s_add_u32 s66, s75, 4')
    img_addr(e, H_XV + 1, 's66', 's67', 9, 243)
    e(f'v_and_b32 v243, 2, v{E_SP}', 's_lshl_b32 s78, s78, 2', 'v_or_b32 v243, s78, v243', f'v_xor_b32 v243, v243, v{E_GAM}',
      f's_lshl_b32 s73, {sW4}, 12', f's_lshl_b32 s74, {sNQ}, 7', 's_add_u32 s73, s73, s74',
      f'v_lshlrev_b32 v244, 9, v{E_SP}', 'v_lshl_add_u32 v244, v243, 4, v244', f'v_add_u32 v{H_WD}, s73, v244')
    e(f'v_lshlrev_b32 v245, 1, v{E_SP}', f'v_add_u32 v245, {256 - 7}, v245', f'v_xor_b32 v246, {ZT[16]}, v{E_GAM}', 'v_lshlrev_b32 v246, 4, v246',
      'v_add_u32 v243, s67, v245', f'v_lshl_add_u32 v{H_XV + 4}, v243, 9, v246', f's_lshl_b32 s74, {sWAVE}, 3', 's_mov_b64 s[76:77], 0xff', 's_lshl_b64 s[76:77], s[76:77], s74')
    e('s_lshl_b32 s75, s75, 10', 's_lshl_b32 s65, s79, 14', f's_add_u32 s65, s65, {sHW1K}', 's_lshl_b32 s64, s79, 20')
    e('s_waitcnt lgkmcnt(0)')
    mk_srd(p, SA, S_X, 8192000)
    mk_srd(p, SW1, S_W1, 1966080)
    def img(buf, tag):
        for i in range(2):
            e(f's_add_u32 m0, s75, {buf + 4096 * i}', 's_nop 0')
            p.vmem(f'buffer_load_dwordx4 v{H_XV + i}, {srd(SA)}, 0 offen lds', tag, ('w', buf, 17408) if i == 0 else None)
        e(f's_mov_b32 m0, {buf + 16384}', 's_mov_b64 exec, s[76:77]')
        p.vmem(f'buffer_load_dwordx4 v{H_XV + 4}, {srd(SA)}, 0 offen lds', tag)
        e('s_mov_b64 exec, -1')

    def wset(n, tag):
        for j in range(4):
            e(f's_add_u32 m0, s65, {PL.wslot[n] + j * 4096}', f's_add_u32 s66, s64, {w1_off(n, j)}')
            p.vmem(f'buffer_load_dwordx4 v{H_WD}, {srd(SW1)}, s66 offen lds', tag, ('w', PL.wslot[n], 32768) if j == 3 else None)
    img(PL.ibuf[0], ('P0', ('dl', -1)))
    wset(0, ('P0', ('dl', -1)))
    if PL.M:
        x_base(p, 1)
        img(PL.ibuf[1], ('P0b', ('dl', 0)))
    else:
        wset(1, ('P0b', ('dl', 0)))
    e('s_lshl_b32 s72, s70, 2', 's_lshr_b32 s73, s71, 3', f's_add_u32 {sM2}, s72, s73', f's_and_b32 {sN8}, s71, 7')
    e('s_lshl_b32 s72, s70, 5', f's_add_u32 {sG}, s72, s71')
    mk_srd(p, SWS, S_WS, WS_SIZE)
    e('s_getpc_b64 s[80:81]', 'L_pc:', 's_lshl_b32 s72, s71, 3', f's_add_u32 s72, s72, {sWAVE}', 's_lshl_b32 s72, s72, 6',
      's_add_u32 s80, s80, s72', 's_addc_u32 s81, s81, 0')
    for i in range(o.tc):
        e(f's_load_dword s82, s[80:81], {i * 16384}')
    if o.pf == 2:
        e(f's_and_b32 s72, {sM}, 7', 's_lshl_b32 s72, s72, 18', f's_lshl_b32 s73, {sWAVE}, 11', 's_add_u32 s72, s72, s73', f's_lshl_b32 s73, {sNQ}, 7', 's_add_u32 s72, s72, s73',
          f's_add_u32 s62, s{S_W1}, s72', f's_addc_u32 s63, s{S_W1 + 1}, 0')
        for i in range(15 - o.tc):
            e(f's_load_dword s82, s[62:63], {(i >> 3) * 16384 + ((i >> 1) & 3) * 512 + (i & 1) * 64}')
    if o.pf:
        e('s_lshl_b32 s72, s2, 3', f's_add_u32 s72, s72, {sWAVE}', 's_lshr_b32 s73, s72, 7', 's_min_u32 s73, s73, 14', 's_lshl_b32 s73, s73, 17', 's_and_b32 s72, s72, 127',
          's_lshl_b32 s72, s72, 8', 's_add_u32 s72, s72, s73', f's_add_u32 s64, s{S_W1}, s72', f's_addc_u32 s65, s{S_W1 + 1}, 0')
    if o.pf == 1:
        for c_ in range(3):
            for i in range(4):
                e(f's_load_dword s82, s[64:65], {c_ * 32768 + i * 64}')
    e(f's_cmp_lt_u32 {sWAVE}, 4', 's_cbranch_scc1 L_compute')
    return p


def flag_addr(e, dst, t):
    e(f's_lshl_b32 s68, {sM}, 2', f's_add_u32 s68, s68, {sNQ}', 's_lshl_b32 s68, s68, 5', f's_add_u32 s68, s68, {sW4}', 's_lshl_b32 s68, s68, 2', f's_add_u32 s68, s68, {WS_HFL}')
    e(f's_lshl_b32 s69, {sM2}, 3', f's_add_u32 s69, s69, {sN8}', 's_lshl_b32 s69, s69, 2', f's_add_u32 s69, s69, {sW4}', 's_lshl_b32 s69, s69, 7', f's_add_u32 s69, s69, {WS_FFL}')
    e(f'v_mov_b32 v{t}, s68', f'v_mov_b32 v{t + 1}, s69', 'v_cmp_gt_u32 vcc, 2, v0', f'v_and_b32 v{t + 2}, 1, v0', 's_nop 0',
      f'v_cndmask_b32 v{t}, v{t + 1}, v{t}, vcc', f'v_lshl_add_u32 v{dst}, v{t + 2}, 17, v{t}')


V_D2, V_WO, V_JLO, V_JHI, V_OUT = 1, 2, 3, 4, 5
V_XA2 = 8
V_XA1 = 12
V_WLO, V_WHI, V_D1, V_W2 = 20, 21, 22, 23
V_ACC = 24
V_Z = 56
V_Y = 88
C_XV = [248, 249, 250, 251, 252, 253, 254, 255, 116, 117]
C_WD = 118
V_WB = [120, 152, 184]
V_SP = 216
V_PK = V_WB[2] + 16


def wo_reg(tau, ka):
    if tau < 3:
        return (V_SP, V_WB[0], V_WB[1])[tau] + 4 * ka
    return (12, 16, 20, 248, 252, V_WB[2], V_WB[2] + 4, V_WB[2] + 8)[ka]


def xreg(s_):
    return V_Z + 4 * s_ if s_ < 8 else V_Y + 4 * (s_ - 8)


def gen_compute(o, p):
    s = Stream('C')
    s.vm = list(p.vm)
    s.ev = [dict(e_) for e_ in p.ev]
    s.open = {id(e_['tag']): e_ for e_ in s.ev}
    ool = Stream('Cool')
    if o.ext:
        s.ext = (o.extv, o.ext, lambda t_: t_[0] in ('W', 'O'))
    e, x = s.e, ool.e
    if o.prio:
        e('s_setprio 2')
    t = 224
    e(f'v_and_b32 v{t}, 15, v0', f'v_lshrrev_b32 v{t + 1}, 4, v0', f'v_lshlrev_b32 v{V_JLO}, 4, v0')
    l16, kq = f'v{t}', f'v{t + 1}'
    e(f'v_mov_b32 v{C_XV[2]}, v{H_XV}', f'v_mov_b32 v{C_XV[3]}, v{H_XV + 1}', f'v_mov_b32 v{C_XV[4]}, v{H_XV + 4}', f'v_mov_b32 v{C_WD}, v{H_WD}')
    img_addr(e, C_XV[0], sW4, 's67', 9, t + 8)
    e(f's_add_u32 s73, {sW4}, 4')
    img_addr(e, C_XV[1], 's73', 's67', 9, t + 8)
    for i in range(5):
        e(f'v_add_u32 v{C_XV[5 + i]}, 512, v{C_XV[i]}')
    e(f's_lshl_b32 s73, {sW4}, 4', 's_mov_b64 s[76:77], 0xffff', 's_lshl_b64 s[62:63], s[76:77], s73')
    e(f's_sub_u32 s61, {sM2}, {sM}', 's_lshl_b32 s61, s61, 15')
    mk_srd(s, SB, S_DBG, 256)
    e(f'v_or_b32 v{t + 8}, {sW4}, v0', f'v_cmp_eq_u32 vcc, 0, v{t + 8}', f'v_mov_b32 v{t + 9}, {OOB}', f'v_mov_b32 v{V_SP + 1}, 1', f'v_cndmask_b32 v{V_SP}, v{t + 9}, v{t + 8}, vcc')
    e(f'v_lshlrev_b32 v{t + 2}, 2, {l16}')
    e(f's_mov_b32 s48, {T0 & 0xffffffff}', f's_mov_b32 s49, {T0 >> 32}', f's_mov_b32 s50, {T1 & 0xffffffff}', f's_mov_b32 s51, {T1 >> 32}')
    e(f'v_lshrrev_b64 v[{t + 4}:{t + 5}], v{t + 2}, s[48:49]', f'v_lshrrev_b64 v[{t + 6}:{t + 7}], v{t + 2}, s[50:51]')
    e(f'v_and_b32 v{t + 4}, 7, v{t + 4}', f'v_and_b32 v{t + 6}, 7, v{t + 6}')
    e(f's_lshr_b32 s52, {sW4}, 1', f's_and_b32 s53, {sW4}, 1')
    e('s_lshl_b32 s54, s52, 2')
    for sh in range(2):
        z = f'v{t + 4 + 2 * sh}'
        e(f'v_add_u32 v{t + 8}, {sh}, {l16}', f'v_and_b32 v{t + 9}, 1, v{t + 8}', f'v_lshlrev_b32 v{t + 8}, 10, v{t + 8}',
          f'v_add_u32 v{t + 8}, {L_XB}, v{t + 8}')
        for ee in range(2):
            e(f'v_xor_b32 v{t + 10}, {ee}, v{t + 9}', f'v_lshl_add_u32 v{t + 10}, v{t + 10}, 7, v{t + 8}')
            for kh in range(2):
                e(f'v_or_b32 v{t + 11}, {4 * kh}, {kq}', f'v_xor_b32 v{t + 11}, v{t + 11}, {z}',
                  f'v_lshl_add_u32 v{V_XA1 + sh * 4 + ee * 2 + kh}, v{t + 11}, 4, v{t + 10}')
            e(f'v_or_b32 v{t + 11}, s54, {kq}', f'v_xor_b32 v{t + 11}, v{t + 11}, {z}',
              f'v_lshl_add_u32 v{V_XA2 + sh * 2 + ee}, v{t + 11}, 4, v{t + 10}')
    e(f'v_lshrrev_b32 v{t + 8}, 2, {l16}', f'v_and_b32 v{t + 9}, 3, {l16}')
    e(f'v_and_b32 v{t + 10}, 2, v{t + 8}', f'v_and_b32 v{t + 11}, 1, {kq}', f'v_lshl_add_u32 v{t + 10}, v{t + 11}, 2, v{t + 10}')
    e(f's_lshl_b32 s55, {sW4}, 1', f'v_lshrrev_b32 v{t + 11}, 1, v{t + 9}', f'v_add_u32 v{t + 11}, s55, v{t + 11}',
      f'v_xor_b32 v{t + 11}, v{t + 11}, v{t + 10}')
    e(f'v_lshlrev_b32 v{t + 12}, 10, {kq}', f'v_lshl_add_u32 v{t + 12}, v{t + 8}, 7, v{t + 12}', f'v_lshl_add_u32 v{t + 12}, v{t + 11}, 4, v{t + 12}',
      f'v_and_b32 v{t + 9}, 1, v{t + 9}', f'v_lshl_add_u32 v{V_WLO}, v{t + 9}, 3, v{t + 12}', f'v_add_u32 v{V_WHI}, {L_SLOT[1]}, v{V_WLO}')
    if PL.M:
        for i in range(8):
            e(f'v_subrev_u32 v{V_WB[2] + i}, {L_XB - L_X2}, v{V_XA1 + i}')
    e(f's_lshl_b32 s55, {sW4}, 2', f'v_add_u32 v{t + 8}, s55, {kq}', f'v_xor_b32 v{t + 8}, v{t + 8}, {l16}',
      f'v_lshlrev_b32 v{t + 9}, 8, {l16}', f'v_lshl_add_u32 v{V_D1}, v{t + 8}, 4, v{t + 9}')
    e('s_lshl_b32 s55, s53, 2', f'v_add_u32 v{t + 8}, s55, {kq}', f'v_and_b32 v{t + 9}, 7, {l16}', f'v_xor_b32 v{t + 8}, v{t + 8}, v{t + 9}',
      f'v_lshlrev_b32 v{t + 9}, 7, {l16}', f'v_lshl_add_u32 v{t + 8}, v{t + 8}, 4, v{t + 9}', 's_mul_i32 s55, s52, 16640', f'v_add_u32 v{V_D2}, s55, v{t + 8}')
    e(f'v_add_u32 v{V_JHI}, {77 * K}, v{V_JLO}')
    e(f's_lshl_b32 s55, {sN8}, 1', 's_add_u32 s55, s55, s53', 's_lshl_b32 s55, s55, 3', 's_add_u32 s55, s55, s52', 's_lshl_b32 s55, s55, 14',
      f's_add_u32 s55, s55, {WS_W2F}', f'v_add_u32 v{V_W2}, s55, v{V_JLO}')
    e(f's_lshl_b32 s55, {sW4}, 15', f's_add_u32 s55, s55, {WS_WOF}', f'v_add_u32 v{V_WO}, s55, v{V_JLO}')
    e(f's_lshl_b32 s55, {sM2}, 19', f's_lshl_b32 s56, {sW4}, 7', 's_add_u32 s55, s55, s56', f's_lshl_b32 s56, {sN8}, 12', 's_add_u32 s55, s55, s56')
    e(f'v_lshlrev_b32 v{t + 8}, 17, {kq}', f'v_lshl_add_u32 v{t + 8}, {l16}, 3, v{t + 8}', f'v_add_u32 v{V_OUT}, s55, v{t + 8}')
    for r in range(4):
        e(f's_mov_b32 s{56 + r}, {r * 32768}')

    def rd_x(sig, s_):
        d = sub(sig)
        sh, sp = divmod(s_, 8)
        ee = sp & 1
        a = V_XA1 + sh * 4 + ee * 2 + d['kh'] if d['ph'] == 1 else V_XA2 + sh * 2 + ee
        base = L_XB
        if d['xbuf'] == L_X2:
            a, base = a - V_XA1 + V_WB[2], L_X2
        s.lds(f'ds_read_b128 {vr(xreg(s_))}, v{a} offset:{d["xbuf"] - base + (sp - ee) * 128}', ('X', sig, s_), ('r', d['xbuf'], 17408))

    def rd_w(k, j, h):
        slot = PL.wslot[k]
        a, off = (V_WLO, 0) if slot == 0 else (V_WHI, slot - L_SLOT[1])
        r = V_WB[k & 1] + 4 * j + 2 * h
        s.lds(f'ds_read_b64_tr_b16 {vr(r, 2)}, v{a} offset:{off + j * 4096 + h * 512}', ('W', k, j), ('r', slot + j * 4096, 4096))

    def ld_w2_pre(k, j):
        d = sub(k)
        return (lambda: e(f's_mov_b32 s48, {(d["c64"] * 32 + d["p"] * 8 + (j & 4)) * 1024}')) if j % 4 == 0 else None

    def ld_w2(k, j):
        d = sub(k)
        s.vmem(f'buffer_load_dwordx4 {vr(V_WB[d["bank"]] + 4 * j)}, v{V_W2}, {srd(SWS)}, s48 offen offset:{(j % 4) * 1024}{o.w2f if k < 40 else o.w2g}', ('W', k, j))

    def ld_wo_pre(tau, ka):
        return (lambda: e(f's_mov_b32 s49, {(tau * 8 + (ka & 4)) * 1024}')) if ka % 4 == 0 else None

    def ld_wo(tau, ka, so='s49'):
        s.vmem(f'buffer_load_dwordx4 {vr(wo_reg(tau, ka))}, v{V_WO}, {srd(SWS)}, {so} offen offset:{(ka % 4) * 1024} sc1', ('O', tau, ka))

    twins = []

    def dump(sig, b, src=None):
        src = src or sub(sig)['acc']
        a, off = (V_D1, L_ST + (7 - b) * 4096) if sub(sig)['ph'] == 1 else (V_D2, L_ST + b * 2080)
        s.lds(f'ds_write_b128 v{a}, {vr(src + 4 * b)} offset:{off}', ('D', sig, b), ('w', off, 4096 if sub(sig)['ph'] == 1 else 2048))
        if sub(sig)['ph'] == 2:
            s.ev.append(s.ev[-1].copy())
            e2, e1 = s.ev[-1], s.ev[-2]
            e2['lo'], e2['hi'] = off + 16640, off + 16640 + 2048
            twins.append((e1, e2))

    def jreg(k, ka):
        return (V_Z if k % 2 == 0 else V_Y) + 4 * ka

    def rd_j(k, ka):
        sl = L_J[k % NJ]
        a, off = (V_JLO, sl) if sl < 60 * K else (V_JHI, sl - 77 * K)
        s.lds(f'ds_read_b128 {vr(jreg(k, ka))}, v{a} offset:{off + ka * 1024}', ('A', k, ka), ('r', sl + ka * 1024, 1024))

    def dma_img(buf, p_, soff, flags, tag, pre):
        def item(i):
            def a():
                if i == 0 and pre:
                    pre()
                e(f's_add_u32 m0, {sHW1K}, {buf + 4096 * i}' if i < 4 else f's_mov_b32 m0, {buf + 16384}')
                if soff and i == 0:
                    e(f's_mov_b32 s52, {soff}')

            def b():
                if i == 4:
                    e('s_mov_b64 exec, s[62:63]')
                s.vmem(f'buffer_load_dwordx4 v{C_XV[5 * p_ + i]}, {srd(SA)}, {"s52" if soff else "0"} offen{flags} lds', tag, ('w', buf + 4096 * i, 4096 if i < 4 else 1024))
                if i == 4:
                    e('s_mov_b64 exec, -1')
            return a, b
        return [item(i) for i in range(5)]

    def dma_x(i):
        b, st = PL.IL[i]
        return dma_img(PL.ibuf[i], st & 1, (st >> 1) * 128, o.xf, ('dma', PL.ifirst[i] - 1), lambda: x_base(s, b))

    def dma_h(g):
        d = sub(32 + g)
        off = WS_H + (d['b'] * 4 + d['c64']) * (1 << 20)
        pre = (lambda: mk_srd(s, SA, S_WS, 1024000, add=off)) if d['p'] == 0 else None
        return dma_img(d['xbuf'], d['p'], 0, o.hf, ('img', g), pre)

    def dma_w(n):
        def item(j):
            return (lambda: e(f's_add_u32 m0, {sHW1K}, {PL.wslot[n] + j * 4096}', f's_mov_b32 s51, {w1_off(n, j)}'),
                    lambda: s.vmem(f'buffer_load_dwordx4 v{C_WD}, {srd(SW1)}, s51 offen{o.wf} lds', ('dma', PL.wfirst[n] - 1), ('w', PL.wslot[n] + j * 4096, 4096)))
        return [item(j) for j in range(PL.wset(n)['T'])]

    def window(win):
        dm = []
        for kind, i in PL.win.get(win, []):
            dm += dma_x(i) if kind == 'x' else dma_w(i)
        imgs = []
        if win == 30 and o.h0p == 30:
            imgs = []
        elif win == 31 and o.h0p == 30:
            imgs = [0, 1]
        elif 30 <= win <= 45:
            imgs = [win - 30] if (win - 30 < 8 or win > o.h1p + 1) else ([] if win <= o.h1p else list(range(8, win - 29)))
        for g in imgs:
            dm += dma_h(g)
        return dm

    def bslot(sig):
        T = sub(sig)['T']
        return 5 * T + o.bl if (sub(sig)['last'] and sub(sig)['ph'] == 2) else 4 * T - 1

    def win_slots(win):
        dm = window(win)
        if not dm or not cwin(o, win):
            return []
        T0_, T1_ = sub(win - 1)['T'], sub(win)['T']
        lo = bslot(win - 1) + 1
        slots = [(win - 1, i) for i in range(lo, 8 * T0_)] + [(win, i) for i in range(0, bslot(win) + 1)]
        span = len(slots) - 6 if win < 31 else (3 * T0_ - 2 if len(dm) <= 5 else len(slots) - 10)
        out = []
        for n_, (a, b) in enumerate(dm):
            i = (n_ * span) // len(dm)
            out.append((slots[i], lo if slots[i][0] == win - 1 else 0, [(1, a), (2, b)]))
        return out
    dsl = {}
    for win in range(1, 46):
        for (sg, i), lo, ab in win_slots(win):
            dsl.setdefault(sg, []).append((i, lo, ab))

    o.cnames = []
    cp = []

    def cflush():
        for i, r in cp:
            e(f'v_writelane_b32 v{(6, 7, 0)[i // 64]}, s{r}, {i % 64}')
        cp.clear()

    def cstamp(name):
        r = 96 + 2 * len(cp)
        e(f's_memtime s[{r}:{r + 1}]')
        cp.append((len(o.cnames), r))
        o.cnames.append(name)

    def bar(name):
        if o.diag:
            e('s_waitcnt lgkmcnt(%d)' % min(len(s.lg), 15))
            cflush()
            cstamp('a' + name)
        s.barrier(name)
        if o.diag:
            cstamp('r' + name)

    e('s_cmp_eq_u32 s2, 255', 's_cbranch_scc1 L_c_ge')
    x('L_c_ge:', 's_waitcnt vmcnt(0) lgkmcnt(0)', 's_barrier', 's_branch L_c_join')
    e('s_waitcnt lgkmcnt(0)')
    s.wait(vm=lambda t_: t_[0] == 'P0')
    if o.idle and 99 in o.idle_at:
        e(f's_sleep {o.idle}')
    bar('P0')
    for j in range(8):
        rd_w(0, j, 0)
        rd_w(0, j, 1)
        rd_x(0, j)
    carry = []
    for sig in range(48):
        d = sub(sig)
        T = d['T']
        s.c(f'--- sigma {sig} {d}')
        pos = {}
        load = {}

        def add(b, j, f, c_=1):
            pos.setdefault((b, j), []).append(f)
            load[b * T + j] = load.get(b * T + j, 0) + c_
        addi = lambda i, f, c_=1: add(i // T, i % T, f, c_)
        flex = []
        for i, s_ in enumerate(range(8, T + 7)):
            addi(3 * i, lambda s_=s_: rd_x(sig, s_))
        nz = (lambda k_: rd_x(sig + 1, k_)) if sig < 47 else (lambda k_: rd_j(0, k_))
        if sig + 1 < 32 and PL.wn[sig + 1] != PL.wn[sig]:
            i = 4 * T
            for j in range(8):
                if j < sub(sig + 1)['T']:
                    addi(i, lambda j=j: rd_w(PL.wn[sig + 1], j, 0))
                    addi(i + 1, lambda j=j: rd_w(PL.wn[sig + 1], j, 1))
                    i += 2
                addi(max(i, j * T + 1), lambda j=j: nz(j))
                i += 1
        else:
            for k_, (b, j) in enumerate([(4, 0), (4, 2), (4, 4), (5, 0), (5, 2), (5, 4), (6, 2), (7, 1)] if not (d['last'] and d['ph'] == 2) else
                                        [(5, 4), (5, 5), (5, 6), (6, 0), (6, 1), (6, 2), (6, 4), (7, 1)]):
                add(b, j, lambda k_=k_: nz(k_))

        def bankload(k, j, i, lo):
            if k < 48:
                if j >= sub(k)['T']:
                    return
                pre, f = ld_w2_pre(k, j), (lambda: ld_w2(k, j))
            else:
                pre, f = ld_wo_pre(k - 47, j), (lambda: ld_wo(k - 47, j))
            flex.append((i, lo, ([(1, pre)] if pre else []) + [(2, f)]))
        if o.s32 and sig in (29, 30):
            for j in range(4):
                bankload(32, 4 * (sig - 29) + j, 6 * j + 2 + (4 * T if sig == 29 else 0), 0)
        if not o.s32 and sig in (28, 29):
            for j in range(4):
                bankload(32, 4 * (sig - 28) + j, 6 * j + 3, 0)
        if sig >= 31:
            for j in range(2, 8):
                bankload(sig + 2, j, (j - 2) * (5 if T == 8 else 4) + 1, 0)
        if 30 <= sig < 47:
            for j in range(2):
                bankload(sig + 3, j, 7 * T + 1 + 3 * j, 7 * T + j)
        tau3 = lambda ka, i, lo: flex.append((i, lo, [(1, lambda: e(f's_mov_b32 s50, {(24 + (ka & 4)) * 1024}')), (2, lambda: ld_wo(3, ka, 's50'))]))
        if sig == 46:
            for ka in range(5):
                tau3(ka, 4 * T + 1 + 4 * ka, 0)
        if sig == 47:
            for ka in range(5, 8):
                flex.append((7 * T + 2 * (ka - 5), 7 * T + ka - 5, [(2, lambda ka=ka: ld_wo(3, ka, 's50'))]))
        w0 = 25 if PL.M else 23
        if sig in (w0, w0 + 2, w0 + 4):
            for i_, ka in enumerate(range(3 * (sig - w0) // 2, min(8, 3 * (sig - w0) // 2 + 3))):
                bankload(47, ka, (2 + i_) * T - 5, 0) if False else flex.append(((1 + i_) * T + 1, 0, ([(1, ld_wo_pre(0, ka))] if ka % 4 == 0 else []) + [(2, lambda ka=ka: ld_wo(0, ka))]))
        for i, lo, ab in dsl.get(sig, []):
            flex.append((i, lo, ab))
        if sig == 29:
            ops = []
            for i in range(5):
                r_ = C_XV[i]
                ops += [f'v_and_b32 v119, 0x1ff, v{r_}', f'v_ashrrev_i32 v{r_}, 9, v{r_}', f'v_lshl_add_u32 v{r_}, v{r_}, 7, v119', f'v_add_u32 v{r_}, s61, v{r_}',
                        f'v_add_u32 v{C_XV[5 + i]}, 128, v{r_}']
            for i, op in enumerate(ops):
                addi(2 + i, lambda op=op: e(op))
        if o.otouch and sig in (o.otouch, o.otouch + 2):
            def ot():
                mk_srd(s, SB, S_OUT, 32768000)
                e(f's_mov_b32 s50, {16384000 if sig > o.otouch else 0}', 's_mov_b64 exec, 1')
                s.vmem(f'buffer_load_dword v119, v{V_OUT}, {srd(SB)}, s50 offen', ('T',))
                e('s_mov_b64 exec, -1')
            add(3, 2, ot)
        if sig == 46:
            add(1, 0, lambda: mk_srd(s, SA, S_OUT, 16384000))
            add(2, 0, lambda: mk_srd(s, SW1, S_OUT, 16384000, add=16384000))
        redir = o.redir and sig == 15
        lazy = PL.M and sig == PL.eA
        if d['last']:
            if d['ph'] == 1:
                for b, (c_, j) in (((0, (3, 0)), (1, (3, 2))) if sig < 31 else ((0, (2, 2)), (1, (2, T - 1)))):
                    add(c_, j, lambda b=b: (e('s_nop 0'), dump(sig, b)))
            else:
                add(2, 1, lambda: dump(sig, 0))
                add(3, 1, lambda: dump(sig, 1))
            for b in range(2, 3 if redir else (2 if lazy and o.lazy else 7)):
                add(b + 1, T - 1, lambda b=b: (e('s_nop 0'), dump(sig, b)))
        if sig > 0 and sub(sig - 1)['last']:
            if PL.M and sig == PL.eA + 1:
                if o.lazy:
                    for b, (c_, j) in zip(range(2, 6), ((2, 2), (2, 4), (2, 6), (3, 0))):
                        add(c_, j, lambda b=b: dump(sig - 1, b))
            elif not (o.redir and sig == 16):
                add(0, T - 1, lambda: dump(sig - 1, 7))
        if PL.M and sig == PL.eA + 2:
            for b, (c_, j) in ((6, (2, 3)), (7, (2, 6))) if o.lazy else ((7, (2, 4)),):
                add(c_, j, lambda b=b: dump(PL.eA, b))
        if o.redir and sig == 17:
            for b, (c_, j) in zip(range(3, 8), ((2, 1), (2, 3), (2, 5), (2, 7), (3, 1))):
                add(c_, j, lambda b=b: dump(15, b, V_WB[2]))
        for i in [8 * T - 1, bslot(sig)] + [b * T + T - 2 for b in range(1, 8)]:
            load[i] = load.get(i, 0) + 1
        last = -1
        flex += carry
        carry = []
        for i, lo, parts in sorted(flex, key=lambda it: it[0]):
            i = max(i, lo, last + 1)
            if i > 8 * T - len(parts) or carry:
                assert sig < 47
                carry.append((len(carry) - 100, 0, parts))
                continue
            for n_, (c_, f) in enumerate(parts):
                k_, top = i, 8 * T - (len(parts) - n_)
                if o.pack:
                    while k_ < top and k_ < i + 6 and load.get(k_, 0) + c_ > 2:
                        k_ += 1
                    if load.get(k_, 0) + c_ > 2:
                        k_ = i
                addi(k_, f, c_)
                last, i = k_, k_ + 1
        if o.xb >= 0 and sig == o.f0p:
            addi(o.xb, lambda: bar('X'))
        for b in range(8):
            if o.cst >= 0 and sig in (o.cst, o.cst + 1):
                r_ = 64 + 2 * (8 * (sig - o.cst) + b)
                e(f's_memtime s[{r_}:{r_ + 1}]')
            for j in range(T):
                if d['ph'] == 1:
                    s.wait(lg=[('W', d['wk'], j), ('X', sig, b + j)])
                else:
                    s.wait(vm=[('W', sig, j)], lg=[('X', sig, b + j)])
                acc = vr(d['acc'] + 4 * b)
                cin = '0' if (d['first'] and j == 0) else acc
                dst = vr(V_WB[2] + 4 * b) if (redir and b >= 3 and j == T - 1) else acc
                if o.skip and j in (2, 4) and (T == 8 or j == 2 or b % 2):
                    if o.skip == 2:
                        e('s_nop 3')
                else:
                    e(f'v_mfma_f32_16x16x32_bf16 {dst}, {vr(V_WB[d["bank"]] + 4 * j)}, {vr(xreg(b + j))}, {cin}')
                s.nmfma += 1
                if b * T + j != bslot(sig):
                    for f in pos.get((b, j), []):
                        f()
                    continue
                for f in pos.get((b, j), []):
                    f()
                if sig == 0:
                    vmp = lambda t_: t_[0] == 'P0b'
                else:
                    vmp = lambda t_: (t_[0] == 'dma' and t_[1] <= sig) or t_ == ('img', sig - 31)
                need = (1 if d['ph'] == 1 else 3) if d['last'] else 7
                s.wait(vm=vmp, lg=lambda t_: t_[0] != 'D' or t_[2] <= need)
                if o.idle and sig in o.idle_at:
                    e(f's_sleep {o.idle}')
                bar(f'B{sig}')
                if sig == JOIN:
                    e('L_c_join:')
                if sig == o.arr - 1 and o.arrm:
                    if o.arrm == 1:
                        s.vmem(f'buffer_atomic_add v{V_SP + 1}, v{V_SP}, {srd(SB)}, 0 offen sc1', ('arr',))
                    else:
                        s.vmem(f'buffer_store_byte v{V_SP + 1}, v{V_SP}, {srd(SB)}, s2 offen sc1', ('arr',))
    e('s_nop 7')
    dump(47, 7)
    if o.jcp:
        e('s_setprio 2')

    def epi(k, r):
        a0 = V_ACC + 16 * (k % 2)
        return [lambda: e(f'v_cvt_pk_bf16_f32 v{V_PK + 2 * r}, v{a0 + r}, v{a0 + 4 + r}'),
                lambda: e(f'v_cvt_pk_bf16_f32 v{V_PK + 2 * r + 1}, v{a0 + 8 + r}, v{a0 + 12 + r}'),
                lambda: s.vmem(f'buffer_store_dwordx2 {vr(V_PK + 2 * r, 2)}, v{V_OUT}, {srd(SW1 if k // 8 else SA)}, s{56 + r} offen offset:{(k % 8) * 512}{o.of if k < o.ofk else o.of2}', ('S', k, r))]
    for k in range(16):
        s.c(f'--- joint step {k}')
        if k in o.jb:
            if o.idle and 48 + k in o.idle_at:
                e(f's_sleep {o.idle}')
            s.wait(lg=lambda t_: True)
            bar(f'J{k}')
        pos = {}
        if k < 15:
            for ka in range(8):
                pos.setdefault(2 * ka, []).append(lambda ka=ka: rd_j(k + 1, ka))
        if k > 0:
            fl = [f for r in range(4) for f in epi(k - 1, r)]
            for i, f in enumerate(fl):
                pos.setdefault(9 + (3 * i) // 2, []).append(f)
        for tau in range(4):
            if o.cst >= 48 and 0 <= k - (o.cst - 48) < 4:
                r_ = 64 + 2 * (4 * (k - (o.cst - 48)) + tau)
                e(f's_memtime s[{r_}:{r_ + 1}]')
            for ka in range(8):
                s.wait(vm=[('O', tau, ka)], lg=[('A', k, ka)])
                acc = vr(V_ACC + 16 * (k % 2) + 4 * tau)
                e(f'v_mfma_f32_16x16x32_bf16 {acc}, {vr(jreg(k, ka))}, {vr(wo_reg(tau, ka))}, {"0" if ka == 0 else acc}')
                s.nmfma += 1
                for f in pos.get(tau * 8 + ka, []):
                    f()
    e('s_nop 7')
    for r in range(4):
        for f in epi(15, r):
            f()
    if o.span:
        e('s_waitcnt vmcnt(0)', 's_memrealtime s[48:49]', 's_waitcnt lgkmcnt(0)', 'v_mov_b32 v2, s94', 'v_mov_b32 v3, s48', f's_lshl_b32 s48, s2, 2', f's_add_u32 s48, s48, {sW4}',
          's_lshl_b32 s48, s48, 3', f's_add_u32 s48, s48, {WS_DIAG}', 'v_mov_b32 v1, 0', 's_mov_b64 exec, 1', f'buffer_store_dwordx2 v[2:3], v1, {srd(SWS)}, s48 offen')
    if o.span == 2:
        mk_srd(s, SB, S_DBG, 256)
        e('s_not_b32 s50, s94', 'v_mov_b32 v2, s50', 's_sub_u32 s51, s48, s94', 's_nop 0')
        e(f'buffer_atomic_umax v2, v1, {srd(SB)}, 0 offen offset:8 sc1', f'buffer_atomic_umax v3, v1, {srd(SB)}, 0 offen offset:12 sc1',
          'v_sub_u32 v4, v3, v2', 'v_not_b32 v2, v2', 'v_sub_u32 v4, v3, v2', f'buffer_atomic_umax v4, v1, {srd(SB)}, 0 offen offset:16 sc1', f'buffer_atomic_umax v2, v1, {srd(SB)}, 0 offen offset:20 sc1')
    if o.diag:
        e('s_memtime s[48:49]', 's_waitcnt vmcnt(0)', 's_memtime s[50:51]', 's_waitcnt lgkmcnt(0)', 'v_mov_b32 v1, 0', 's_nop 1')
        cflush()
        if o.cst >= 0:
            for i in range(16):
                e(f'v_writelane_b32 v1, s{64 + 2 * i}, {i}')
        e('v_writelane_b32 v1, s48, 16', 'v_writelane_b32 v1, s50, 17')
        e(f's_lshl_b32 s48, s2, 2', f's_add_u32 s48, s48, {sW4}', 's_lshl_b32 s48, s48, 11', f's_add_u32 s48, s48, {WS_DIAG + 768}', f'v_lshrrev_b32 v2, 2, v{V_JLO}')
        for i, r in enumerate((1, 6, 7, 0)):
            e(f'buffer_store_dword v{r}, v2, {srd(SWS)}, s48 offen offset:{i * 256}')
    e('s_endpgm')
    for e1, e2 in twins:
        e2['done'] = e1['done']
    return s, ool


H_S1, H_HS, H_S2, H_L16, H_FLAG, H_HP, H_FP, H_C2, H_EB, H_TMP, H_ONE, H_JHI, H_ZERO, H_CP = 22, 26, 27, 31, 32, 33, 34, 35, 36, 37, 38, 39, 40, 41
H_STAMP = 42
H_PV = 45
H_JH2 = 46
H_ARR = 47
H_PIN = 16
H_ONES = 12
H_D, H_T, H_B, H_EA, H_WF = 48, 80, 96, 112, 128
H_EAB = [112, 2]
H_MX = 18
sGC1, sSLOW, sGEF, sSPIN = 's49', ('s52', 's73'), 's53', 's54'
sHPM = 's[56:57]'
sEX16 = 's[58:59]'
sRET = 's[60:61]'
sPM = 's[62:63]'
sFOFF = 's65'
sPD, sPT = 's64', 's48'
sBU = 's66'
sARS = 's79'
sFL = 's72'
SPIN_LIMIT = 1 << 15


def gen_helper(o, p):
    s = Stream('H')
    s.vm = list(p.vm)
    s.ev = [dict(e_, kind='r') for e_ in p.ev]
    s.open = {id(e_['tag']): e_ for e_ in s.ev}
    o.hentry = list(s.ev)
    s.ev = []
    e = s.e
    ool = Stream('Hool')
    x = ool.e
    nstamp = [0]
    cur = ['P0']
    pend = []

    def flush_stamps():
        if pend:
            s.drain(vm=False)
            for i, r in pend:
                e(f'v_writelane_b32 v{H_STAMP + i // 64}, s{r}, {i % 64}')
            pend.clear()

    def stamp(name, real=False):
        if o.diag and nstamp[0] < 192:
            i = nstamp[0]
            o.names.append(name)
            if len(pend) >= 4:
                flush_stamps()
            r = 84 + 2 * len(pend)
            e(f's_memrealtime s[{r}:{r + 1}]' if real else f's_memtime s[{r}:{r + 1}]')
            pend.append((i, r))
            nstamp[0] += 1

    def bar(name, vmp=None, lgp=None):
        s.wait(vm=vmp or (lambda t_: t_[0] != cur[0]), lg=lgp or (lambda t_: True))
        s.barrier(name)

    def vm(line, kind, mem=None):
        s.vmem(line, (cur[0], kind), mem)

    o.names = []
    stamp('rt0', True)
    stamp('t0')

    def dma_img(buf, av, soff, flags, kind, pre, idx=range(5)):
        def one(i):
            if i == 0 and pre:
                pre()
            if i < 4:
                e(f's_add_u32 m0, {sHW1K}, {buf + 4096 * i}')
                e(f's_mov_b32 s68, {soff}' if soff else 's_nop 0')
            else:
                e(f's_mov_b32 m0, {buf + 16384}', f's_mov_b64 exec, {sEX16}')
                if soff:
                    e(f's_mov_b32 s68, {soff}')
            vm(f'buffer_load_dwordx4 v{av + i}, {srd(SA)}, {"s68" if soff else "0"} offen{flags} lds', kind, ('w', buf + 4096 * i, 4096 if i < 4 else 1024))
            if i == 4:
                e('s_mov_b64 exec, -1')
        return [lambda i=i: one(i) for i in idx]

    def dma_x(i):
        b, st = PL.IL[i]
        return dma_img(PL.ibuf[i], H_XV + 5 * (st & 1), (st >> 1) * 128, o.xf, ('dl', PL.ifirst[i] - 1), lambda: x_base(s, b))

    def dma_w(n):
        def one(j):
            e(f's_add_u32 m0, {sHW1K}, {PL.wslot[n] + j * 4096}', f's_mov_b32 s68, {w1_off(n, j)}')
            vm(f'buffer_load_dwordx4 v{H_WD}, {srd(SW1)}, s68 offen{o.wf} lds', ('dl', PL.wfirst[n] - 1), ('w', PL.wslot[n] + j * 4096, 4096))
        return [lambda j=j: one(j) for j in range(PL.wset(n)['T'])]

    def now(fs):
        for f in fs:
            f()

    def pf_x(st, half):
        b, c64, p_ = st >> 3, (st >> 1) & 3, st & 1
        for i in (range(0, 5) if half == 0 else range(5, 9)):
            for hh in range(2):
                e(f's_load_dword s78, s[{74 + 2 * b}:{75 + 2 * b}], {i * 1024 + p_ * 512 + c64 * 128 + hh * 64}')

    t = 224
    sp, gam = f'v{E_SP}', f'v{E_GAM}'
    e(f's_lshl_b32 s73, {sW4}, 4', 's_mov_b64 s[76:77], 0xffff', f's_lshl_b64 {sEX16}, s[76:77], s73')
    cur[0] = 'P1'
    e('s_mov_b64 s[60:61], s[64:65]')
    e(f's_mov_b32 s68, {T0 & 0xffffffff}', f's_mov_b32 s69, {T0 >> 32}')
    for i in range(2, 4):
        e(f's_add_u32 s73, {sW4}, {4 * i}')
        img_addr(e, H_XV + i, 's73', 's67', 9, t + 3)
    for i in range(5):
        e(f'v_add_u32 v{H_XV + 5 + i}, 512, v{H_XV + i}')

    e(f's_lshl_b32 s68, {sNQ}, 2', f's_add_u32 s68, s68, {sW4}', 's_mul_i32 s68, s68, 18', 's_add_u32 s68, s68, s67', 's_sub_u32 s68, s68, 7',
      's_max_i32 s68, s68, 0', 's_min_i32 s68, s68, 15982', 's_lshl_b32 s68, s68, 9', f's_add_u32 s74, s{S_X}, s68', f's_addc_u32 s75, s{S_X + 1}, 0',
      's_add_u32 s76, s74, 8192000', 's_addc_u32 s77, s75, 0')
    l16, kq = f'v{t + 6}', f'v{t + 7}'
    e(f'v_and_b32 {l16}, 15, v0', f'v_lshrrev_b32 {kq}, 4, v0', f'v_lshlrev_b32 v{H_L16}, 4, v0')
    e(f'v_mov_b32 v{H_C2}, {fbits(GC2)}', f's_mov_b32 {sGC1}, {fbits(GC1)}', 's_mov_b32 s50, 0x05040100', 's_mov_b32 s51, 0x07060302')
    e(f'v_mov_b32 v{H_ONE}, 1', f'v_mov_b32 v{H_ZERO}, 0')
    flag_addr(e, H_FLAG, t + 8)
    mk_srd(s, SD, S_DBG, 256)
    cur[0] = 'P2'
    e(f's_lshl_b32 s68, s2, 2', f's_add_u32 s68, s68, {sW4}', f'v_lshlrev_b32 v{t + 8}, 3, {l16}')
    mk_srd(s, SB, S_W2, 1966080)
    e('s_cmp_lt_u32 s68, 480', 's_cbranch_scc1 L_prep_w2', 's_cmp_lt_u32 s68, 544', 's_cbranch_scc1 L_prep_fo')
    e(f's_mov_b32 {sPD}, {OOB}', f's_mov_b32 {sPT}, 0', f'v_mov_b32 v{t + 9}, {OOB}', 's_mov_b32 s70, 0', 's_mov_b32 s71, 0', 's_mov_b32 s72, 0', 's_mov_b32 s73, 0')
    e('L_prep_done:')
    x('L_prep_w2:')
    x('s_lshr_b32 s69, s68, 5', 's_lshr_b32 s70, s68, 2', 's_and_b32 s70, s70, 7', 's_and_b32 s55, s68, 3')
    x('s_lshl_b32 s72, s55, 5', 's_add_u32 s72, s72, s70', 's_lshl_b32 s72, s72, 4', 's_and_b32 s73, s69, 1', 's_lshl_b32 s73, s73, 3', 's_add_u32 s72, s72, s73',
      's_lshr_b32 s73, s69, 1', 's_add_u32 s72, s72, s73', 's_lshl_b32 s72, s72, 10', f's_add_u32 {sPD}, s72, {WS_W2F}', f's_mov_b32 {sPT}, 131072')
    x('s_lshl_b32 s72, s69, 17', 's_lshl_b32 s73, s70, 14', 's_add_u32 s72, s72, s73', 's_lshl_b32 s73, s55, 7', 's_add_u32 s70, s72, s73')
    x(f'v_lshl_add_u32 v{t + 9}, {kq}, 12, v{t + 8}', 's_mov_b32 s71, 512', 's_mov_b32 s72, 2048', 's_branch L_prep_done')
    x('L_prep_fo:')
    x('s_cmp_lt_u32 s68, 512', f's_cselect_b32 s{SB}, s{S_WF}, s{S_WO}', f's_cselect_b32 s{SB + 1}, s{S_WF + 1}, s{S_WO + 1}', f's_mov_b32 s{SB + 2}, 131072')
    x('s_sub_u32 s69, s68, 480', 's_and_b32 s70, s69, 7', 's_lshr_b32 s55, s69, 3')
    x('s_lshl_b32 s72, s55, 5', 's_add_u32 s72, s72, s70', 's_lshl_b32 s72, s72, 10', f's_add_u32 {sPD}, s72, {WS_WFF}', f's_mov_b32 {sPT}, 8192')
    x('s_lshr_b32 s72, s70, 1', 's_lshl_b32 s72, s72, 15', 's_and_b32 s73, s70, 1', 's_lshl_b32 s73, s73, 10', 's_add_u32 s72, s72, s73',
      's_and_b32 s73, s55, 3', 's_lshl_b32 s73, s73, 7', 's_add_u32 s70, s72, s73')
    x(f'v_lshl_add_u32 v{t + 9}, {kq}, 13, v{t + 8}', 's_mov_b32 s71, 2048', 's_mov_b32 s72, 512', 's_branch L_prep_done')
    e(f'v_mov_b32 v{H_PIN}, v{t + 9}', 's_mov_b32 s55, s70', 's_mov_b32 s65, s71', 's_mov_b32 s66, s72')

    def prep_a():
        for jj in range(8):
            if jj == 4:
                e('s_add_u32 s55, s55, s66')
            e('s_mov_b32 s73, s55' if jj % 4 == 0 else 's_add_u32 s73, s73, s65')
            vm(f'buffer_load_dwordx2 {vr(H_D + 2 * jj, 2)}, v{H_PIN}, {srd(SB)}, s73 offen', 'pin')
    e(f'v_or_b32 v{t + 8}, {sW4}, v0', f'v_cmp_eq_u32 vcc, 0, v{t + 8}', f'v_mov_b32 v{t + 9}, {OOB}', 's_nop 0', f'v_cndmask_b32 v{H_ARR}, v{t + 9}, v{t + 8}, vcc')
    for i in range(4):
        e(f'v_mov_b32 v{H_ONES + i}, -1')

    def resets(st_, tr):
        def fl():
            st_.e('s_mov_b64 exec, 3')
            tr(f'buffer_store_dword v{H_ZERO}, v{H_FLAG}, {srd(SWS)}, 0 offen sc1')
            st_.e('s_mov_b64 exec, -1')

        def ft(i):
            st_.e(f's_lshl_b32 s68, {sN8}, 8', f's_lshl_b32 s69, {sM2}, 3', 's_add_u32 s68, s68, s69', f's_add_u32 s68, s68, {sW4}', 's_lshl_b32 s68, s68, 10',
                  f's_add_u32 s68, s68, {WS_F + (i >> 1) * 2048 * K + (i & 1) * 4096}')
            tr(f'buffer_store_dwordx4 {vr(H_ONES)}, v{H_L16}, {srd(SWS)}, s68 offen sc1')
        return [fl] + [lambda i=i: ft(i) for i in range(4)]

    def arrive(st_, tr):
        tr(f'buffer_atomic_add v{H_ONE}, v{H_ARR}, {srd(SD)}, 0 offen sc1')

    def prep_b(tau):
        s.wait(vm=lambda t_: t_[1] == 'pin')
        for m_ in range(4):
            e(f'v_perm_b32 v{H_T + 4 * tau + m_}, v{H_D + 4 * m_ + 2 + (tau >> 1)}, v{H_D + 4 * m_ + (tau >> 1)}, {"s51" if tau & 1 else "s50"}')
        vm(f'buffer_store_dwordx4 {vr(H_T + 4 * tau)}, v{H_L16}, {srd(SWS)}, {sPD} offen sc1', 'pst')
        e(f's_add_u32 {sPD}, {sPD}, {sPT}')
    c8, row8 = gam, sp
    e(f's_and_b32 s70, {sW4}, 1', 's_lshl_b32 s71, s70, 3', f's_lshr_b32 s72, {sW4}, 1')
    for hh in range(2):
        e(f'v_lshlrev_b32 v{t + 9}, 1, {c8}', f'v_or_b32 v{t + 9}, {hh}, v{t + 9}', f'v_or_b32 v{t + 10}, s71, {row8}',
          f'v_xor_b32 v{t + 9}, v{t + 9}, v{t + 10}', f'v_lshlrev_b32 v{t + 10}, 8, v{t + 10}', f'v_lshl_add_u32 v{t + 9}, v{t + 9}, 4, v{t + 10}',
          's_xor_b32 s68, s72, 1', 's_lshl_b32 s68, s68, 12', f'v_add_u32 v{H_S1 + hh}, s68, v{t + 9}')
    e(f's_lshl_b32 s68, {sM}, 14', 's_lshl_b32 s69, s72, 7', 's_add_u32 s68, s68, s69', 's_lshl_b32 s69, s70, 13', 's_add_u32 s68, s68, s69',
      f'v_lshlrev_b32 v{t + 9}, 10, {row8}', f'v_lshl_add_u32 v{t + 9}, {c8}, 4, v{t + 9}', f'v_add_u32 v{H_HS}, s68, v{t + 9}')
    e(f's_mul_i32 s68, {sW4}, 2080', f'v_and_b32 v{t + 12}, 7, {l16}', f'v_lshl_add_u32 v{t + 11}, {l16}, 7, s68')
    for nh in range(2):
        e(f'v_or_b32 v{t + 13}, {4 * nh}, {kq}', f'v_xor_b32 v{t + 13}, v{t + 13}, v{t + 12}', f'v_lshl_add_u32 v{H_S2 + nh}, v{t + 13}, 4, v{t + 11}')
    e(f's_cmp_eq_u32 {sW4}, 0', f's_cselect_b64 {sPM}, -1, 0', f's_cselect_b32 s71, 0, {OOB}', f'v_mov_b32 v{H_CP}, s71' if o.arrm < 2 else f'v_lshl_add_u32 v{H_CP}, v0, 2, s71')
    e(f's_lshl_b32 s68, {sM2}, 1', 's_sub_u32 s68, s68, 1', f'v_add_u32 v{t + 9}, s68, {kq}', f'v_cmp_gt_u32 vcc, 64, v{t + 9}',
      f'v_lshlrev_b32 v{t + 9}, 9, v{t + 9}', f'v_lshrrev_b32 v{t + 10}, 2, {l16}', f'v_lshl_add_u32 v{t + 9}, v{t + 10}, 7, v{t + 9}', f'v_and_b32 v{t + 10}, 3, {l16}',
      f'v_lshl_add_u32 v{t + 9}, v{t + 10}, 2, v{t + 9}', f's_add_u32 s68, s71, {WS_HFL}', f'v_add_u32 v{H_HP}, s68, v{t + 9}',
      f's_and_b64 {sHPM}, vcc, {sPM}')
    e(f's_lshl_b32 s68, {sW4}, 8', f's_add_u32 s68, s68, {L_EB}', f'v_lshl_add_u32 v{H_EB}, {kq}, 6, s68')
    e(f's_lshl_b32 s68, {sW4}, 11', f'v_add_u32 v{H_JHI}, s68, v{H_L16}')
    e(f'v_add_u32 v{H_JH2}, {77 * K}, v{H_JHI}')
    e('s_lshr_b32 s68, s2, 3', f's_mul_i32 s68, s68, {o.arrn}', f's_lshr_b32 {sARS}, s68, 5')
    e('s_cmp_eq_u32 s2, 255', 's_cbranch_scc1 L_h_ge')

    x('L_h_ge:')
    mk_srd(ool, SB, S_G, 8192)
    x(f'v_lshlrev_b32 v{H_TMP}, 9, {l16}', f'v_lshl_add_u32 v{H_TMP}, {kq}, 4, v{H_TMP}')
    for ks in range(8):
        x(f'buffer_load_dwordx4 {vr(H_D + 4 * ks)}, v{H_TMP}, {srd(SB)}, 0 offen offset:{ks * 64}')
    x(f'v_lshlrev_b32 v{H_TMP}, 3, {l16}', f'v_lshl_add_u32 v{H_TMP}, {kq}, 12, v{H_TMP}')
    mk_srd(ool, SB, S_WG, 131072)
    x(f's_lshl_b32 s69, {sW4}, 7')
    for ks in range(8):
        x(f's_add_u32 s68, s69, {ks * 16384}')
        for jj in range(8):
            x(f'buffer_load_dwordx2 {vr(H_WF + 16 * ks + 2 * jj, 2)}, v{H_TMP}, {srd(SB)}, s68 offen offset:{jj * 512}')
    now(resets(ool, x))
    x('s_waitcnt vmcnt(0)', 's_barrier')
    arrive(ool, x)
    for ks in range(8):
        src = H_WF + 16 * ks
        for tau in range(4):
            for m_ in range(4):
                x(f'v_perm_b32 v{H_T + 4 * tau + m_}, v{src + 4 * m_ + 2 + (tau >> 1)}, v{src + 4 * m_ + (tau >> 1)}, {"s51" if tau & 1 else "s50"}')
        x('s_nop 1')
        for tau in range(4):
            acc = vr(H_B + 4 * tau)
            x(f'v_mfma_f32_16x16x32_bf16 {acc}, {vr(H_T + 4 * tau)}, {vr(H_D + 4 * ks)}, {"0" if ks == 0 else acc}')
    x('s_nop 7', f's_mov_b32 s68, {fbits(TC)}')
    for i_ in range(16):
        x(f'v_mul_f32 v{H_B + i_}, s68, v{H_B + i_}')
    for i_ in range(16):
        x(f'v_exp_f32 v{H_EA + i_}, v{H_B + i_}')
    x(f'v_max3_f32 v{H_T}, |v{H_B}|, |v{H_B + 1}|, 0')
    for i_ in range(2, 16, 2):
        x(f'v_max3_f32 v{H_T}, |v{H_B + i_}|, |v{H_B + i_ + 1}|, v{H_T}')
    x(f'v_cmp_lt_f32 vcc, {fbits(126.0)}, v{H_T}')
    x(f'v_and_b32 v{H_T + 1}, 15, v0', f'v_lshrrev_b32 v{H_T + 2}, 4, v0', f'v_lshlrev_b32 v{H_T + 1}, 10, v{H_T + 1}',
      f'v_lshl_add_u32 v{H_T + 1}, v{H_T + 2}, 6, v{H_T + 1}', f's_lshl_b32 s68, {sW4}, 8', f's_add_u32 s68, s68, {WS_EB}', f's_add_u32 s69, s68, {WS_GB - WS_EB}')
    for tau in range(4):
        x(f'buffer_store_dwordx4 {vr(H_EA + 4 * tau)}, v{H_T + 1}, {srd(SWS)}, s68 offen offset:{tau * 16} sc1')
        x(f'buffer_store_dwordx4 {vr(H_B + 4 * tau)}, v{H_T + 1}, {srd(SWS)}, s69 offen offset:{tau * 16} sc1')
    x('s_cmp_lg_u64 vcc, 0', 's_cselect_b32 s70, 1, 0', f'v_mov_b32 v{H_T + 3}, s70', f's_lshl_b32 s68, {sW4}, 2', f's_add_u32 s68, s68, {WS_EBF}',
      's_mov_b64 exec, 1', f'buffer_store_dword v{H_T + 3}, v{H_ZERO}, {srd(SWS)}, s68 offen sc1')
    x('s_waitcnt vmcnt(0)', f'buffer_atomic_add v{H_ONE}, v{H_ZERO}, {srd(SD)}, 0 offen offset:128 sc1', 's_mov_b64 exec, -1')
    x('L_ge_tail:')

    npoll = [0]

    def poll_issue(kind, b):
        if kind in ('cnt', 'ge'):
            line = f'buffer_load_dword v{H_PV}, v{H_CP}, {srd(SD)}, 0 offen offset:{128 if kind == "ge" else 0} sc1'
        else:
            e(f's_mov_b32 s67, {b * 131072}')
            line = f'buffer_load_dword v{H_PV}, v{H_HP if kind == "h" else H_FP}, {srd(SWS)}, s67 offen sc1'
        vm(line, 'poll')
        return kind, line

    def poll_check(kind, line):
        n = npoll[0]
        npoll[0] += 1
        s.wait(vm=lambda t_: t_[1] == 'poll')
        e(f's_mov_b32 {sSPIN}, 0', f'L_poll{n}:')
        e({'cnt': f'v_cmp_le_u32 vcc, 0x100, v{H_PV}' if o.arrm < 2 else f'v_cmp_eq_u32 vcc, 0x01010101, v{H_PV}', 'ge': f'v_cmp_le_u32 vcc, 4, v{H_PV}'}.get(kind, f'v_cmp_eq_u32 vcc, 1, v{H_PV}'))
        e('s_nop 1', f's_andn2_b64 s[68:69], {sHPM if kind == "h" else sPM}, vcc', f's_cbranch_scc1 L_spin{n}', f'L_pok{n}:')
        stamp(f'x_pok_{kind}{n}')
        if o.diag:
            o.names.append(f's_spin_{kind}{n}')
            e(f'v_writelane_b32 v{H_STAMP + nstamp[0] // 64}, {sSPIN}, {nstamp[0] % 64}')
            nstamp[0] += 1
        x(f'L_spin{n}:', f's_add_u32 {sSPIN}, {sSPIN}, 1', f's_cmp_gt_u32 {sSPIN}, {SPIN_LIMIT}', f's_cbranch_scc1 L_pok{n}', f's_cmp_eq_u32 {sSPIN}, 1',
          f's_cbranch_scc1 L_again{n}', f's_sleep {16 if kind in ("cnt", "ge") else o.slp}', f'L_again{n}:', line, 's_waitcnt vmcnt(0)', f's_branch L_poll{n}')

    Q = []

    def q(cost, *lines):
        Q.append((cost, lambda: e(*lines)))

    def qf(f, cost=0.0):
        Q.append((cost, f))

    done = set()

    def mark(name):
        f = lambda: done.add(name)
        f.jmark = name[1]
        qf(f)

    def run_q(budget, dm=()):
        dm = list(dm)
        avail = min(budget, sum(c_ for c_, _ in Q))
        gap = avail / (len(dm) + 1) if dm else 0
        used, nxt = 0.0, 0.0
        while True:
            while dm and used >= nxt:
                dm.pop(0)()
                nxt += gap
            if not (Q and (used < budget or Q[0][0] == 0)):
                break
            c_, f = Q.pop(0)
            f()
            used += c_
        now(dm)
        return used

    def gelu8(v0_, t0):
        for i in range(8):
            q(.5, f'v_mul_f32 v{t0 + i}, v{v0_ + i}, v{v0_ + i}')
        for i in range(8):
            q(.5, f'v_fma_f32 v{t0 + i}, v{t0 + i}, v{H_C2}, {sGC1}')
        for i in range(8):
            q(.5, f'v_mul_f32 v{t0 + i}, v{t0 + i}, v{v0_ + i}')
        for i in range(8):
            q(1, f'v_exp_f32 v{t0 + i}, v{t0 + i}')
        for i in range(8):
            q(.5, f'v_add_f32 v{t0 + i}, 1.0, v{t0 + i}')
        for i in range(8):
            q(1, f'v_rcp_f32 v{t0 + i}, v{t0 + i}')
        for i in range(8):
            q(.5, f'v_mul_f32 v{v0_ + i}, v{v0_ + i}, v{t0 + i}')

    def pack8(dst, v0_):
        for i in range(4):
            q(.5, f'v_cvt_pk_bf16_f32 v{dst + i}, v{v0_ + 2 * i}, v{v0_ + 2 * i + 1}')

    def epi1_read(b, us):
        for u_ in us:
            for hh in range(2):
                s.lds(f'ds_read_b128 {vr(H_D + 8 * u_ + 4 * hh)}, v{H_S1 + hh} offset:{L_ST + (3 - u_) * 8192}', ('e', u_), ('r', L_ST + (3 - u_) * 8192, 8192))
        if 0 in us:
            e(f's_add_u32 s68, {sNQ}, {4 * b}', 's_lshl_b32 s68, s68, 20')
            mk_srd(s, SB, S_WS, 1 << 20, add='s68')

    held = []

    def epi1_unit(u_, defer):
        qf(lambda: s.wait(lg=[('e', u_)]))
        gelu8(H_D + 8 * u_, H_T)
        pack8(H_B + 4 * u_, H_D + 8 * u_)
        st_ = lambda: vm(f'buffer_store_dwordx4 {vr(H_B + 4 * u_)}, v{H_HS}, {srd(SB)}, 0 offen offset:{u_ * 256}{o.hs}', 'st')
        qf((lambda: held.append(st_)) if defer else st_)

    def epi2_read(b, gg):
        for kh in range(2):
            for nh in range(2):
                s.lds(f'ds_read_b128 {vr(H_D + 16 * gg + 8 * kh + 4 * nh)}, v{H_S2 + nh} offset:{L_ST + kh * 16640 + gg * 8320}', ('e', gg), ('r', L_ST + kh * 16640 + gg * 8320, 8288))
        if gg == 0:
            e(f's_add_u32 s68, {sN8}, {8 * b}', 's_lshl_b32 s68, s68, 8', f's_lshl_b32 s69, {sM2}, 3', 's_add_u32 s68, s68, s69',
              f's_add_u32 s68, s68, {sW4}', 's_lshl_b32 s68, s68, 10', f's_add_u32 {sFOFF}, s68, {WS_F}')
        else:
            e(f's_add_u32 {sFOFF}, {sFOFF}, 4096')

    def epi2_unit(gg):
        qf(lambda: s.wait(lg=[('e', gg)]))
        v_ = H_D + 16 * gg
        for i in range(8):
            q(.5, f'v_add_f32 v{v_ + i}, v{v_ + i}, v{v_ + 8 + i}')
        gelu8(v_, H_EAB[1])
        pack8(v_ + 8, v_)
        for i in range(4):
            q(.5, f'v_min_u32 v{v_ + 8 + i}, -2, v{v_ + 8 + i}')
        qf(lambda: vm(f'buffer_store_dwordx4 {vr(v_ + 8)}, v{H_L16}, {srd(SWS)}, {sFOFF} offen sc1', 'st'))

    def flag_set(k):
        stamp(f'x_preflag{k}')
        s.wait(vm=lambda t_: t_[1] == 'st')
        stamp(f'x_flag{k}')
        e(f's_mov_b64 exec, {1 << k}')
        vm(f'buffer_store_dword v{H_ONE}, v{H_FLAG}, {srd(SWS)}, 0 offen sc1', 'flag')
        e('s_mov_b64 exec, -1')
        done.add(f'flag{k}')

    def ld_wf(i, st_=None):
        if st_:
            st_.e(f's_lshl_b32 s68, {sW4}, 15', f's_add_u32 s68, s68, {WS_WFF + i * 1024}', f'buffer_load_dwordx4 {vr(H_WF + 4 * i)}, v{H_L16}, {srd(SWS)}, s68 offen sc1')
            return
        e(f's_lshl_b32 s68, {sW4}, 15', f's_add_u32 s68, s68, {WS_WFF + i * 1024}')
        vm(f'buffer_load_dwordx4 {vr(H_WF + 4 * i)}, v{H_L16}, {srd(SWS)}, s68 offen sc1', 'wf')

    def dma_eb():
        def one(i):
            e(f's_lshl_b32 s68, {sW4}, 12', f's_add_u32 m0, s68, {L_EB + i * 1024}', f's_add_u32 s68, s68, {WS_EB + i * 1024}')
            vm(f'buffer_load_dwordx4 v{H_L16}, {srd(SWS)}, s68 offen sc1 lds', 'eb', ('w', L_EB, 16384))

        def fl():
            e(f's_lshl_b32 s68, {sW4}, 2', f's_add_u32 s68, s68, {WS_EBF}')
            vm(f'buffer_load_dword v{H_TMP}, v{H_ZERO}, {srd(SWS)}, s68 offen sc1', 'ebf')
        return [lambda i=i: one(i) for i in range(4)] + [fl]

    def get_ebf():
        s.wait(vm=lambda t_: t_[1] == 'ebf')
        e(f'v_readfirstlane_b32 {sGEF}, v{H_TMP}')

    def ld_f(b, st_=None):
        (st_ or s).e(f's_lshl_b32 s69, {sG}, 10')
        for ka in range(8):
            (st_ or s).e(f's_add_u32 s68, s69, {WS_F + (b * 8 + ka) * 256 * 1024}')
            line = f'buffer_load_dwordx4 {vr(H_D + 4 * ka)}, v{H_L16}, {srd(SWS)}, s68 offen' + (' sc1' if st_ or not o.fplain else '')
            if st_:
                st_.e(line)
            else:
                vm(line, 'f')

    PR = [80, 81, 82, 83, 74, 75, 76, 77]

    def probe_issue(st_, b):
        st_.e(f's_lshl_b32 s68, {sG}, 10', f's_add_u32 s68, s68, {WS_F + (b * 8 + 4) * 256 * K}', f's_add_u32 s70, s{S_WS}, s68', f's_addc_u32 s71, s{S_WS + 1}, 0')
        for ka in range(8):
            st_.e(f's_load_dword s{PR[ka]}, s[70:71], {(ka - 4) * 256 * K + 1020} glc')

    def probe_test(st_):
        st_.e('s_waitcnt lgkmcnt(0)')
        for ka in range(1, 8):
            st_.e(f's_max_u32 s{PR[0]}, s{PR[0]}, s{PR[ka]}')
        st_.e(f's_cmp_eq_u32 s{PR[0]}, -1')

    def f_try(b):
        probe_test(s)
        s.lg = []
        e(f's_cselect_b32 {sFL}, 0, 1', f's_cbranch_scc1 L_ftry{b}')
        ld_f(b, s)
        e(f'L_ftry{b}:')

    def f_force(b):
        e(f's_cmp_eq_u32 {sFL}, 0', f's_cbranch_scc1 L_fwait{b}', f'L_fgot{b}:')
        x(f'L_fwait{b}:', f's_mov_b32 {sSPIN}, 0', f'L_fw{b}:')
        probe_issue(ool, b)
        probe_test(ool)
        x(f's_cbranch_scc0 L_fwd{b}', f's_add_u32 {sSPIN}, {sSPIN}, 1', f's_cmp_gt_u32 {sSPIN}, {SPIN_LIMIT}', f's_cbranch_scc1 L_fwd{b}', 's_sleep 2', f's_branch L_fw{b}', f'L_fwd{b}:')
        ld_f(b, ool)
        x(f's_branch L_fgot{b}')

    def chk_f(b):
        if o.probe:
            s.drain(lg=False)
        s.wait(vm=lambda t_: t_[1] in ('f', 'wf'))
        e(f's_mov_b32 {sSPIN}, 0', f'L_fchk{b}:')
        e(f'v_max3_u32 v{H_MX}, v{H_D}, v{H_D + 1}, v{H_D + 2}')
        for i in range(3, 31, 2):
            e(f'v_max3_u32 v{H_MX}, v{H_D + i}, v{H_D + i + 1}, v{H_MX}')
        e(f'v_max_u32 v{H_MX}, v{H_D + 31}, v{H_MX}', f'v_cmp_eq_u32 vcc, -1, v{H_MX}', 's_nop 1', 's_cmp_lg_u64 vcc, 0', f's_cbranch_scc1 L_fspin{b}', f'L_fok{b}:')
        stamp(f'x_fok{b}')
        if o.diag:
            o.names.append(f's_spin_f{b}')
            e(f'v_writelane_b32 v{H_STAMP + nstamp[0] // 64}, {sSPIN}, {nstamp[0] % 64}')
            nstamp[0] += 1
        x(f'L_fspin{b}:', f's_add_u32 {sSPIN}, {sSPIN}, 1', f's_cmp_gt_u32 {sSPIN}, {SPIN_LIMIT}', f's_cbranch_scc1 L_fok{b}', f's_sleep {o.slp}')
        ld_f(b, ool)
        x('s_waitcnt vmcnt(0)', f's_branch L_fchk{b}')

    def fe(b):
        EA = H_EAB[b]
        qf(lambda: chk_f(b), 9)
        for tau in range(4):
            for ka in range(8):
                acc = vr(EA + 4 * tau)
                q(1, f'v_mfma_f32_16x16x32_bf16 {acc}, {vr(H_WF + 32 * tau + 4 * ka)}, {vr(H_D + 4 * ka)}, {"0" if ka == 0 else acc}')
        q(0, 's_nop 7', f's_mov_b32 s55, {fbits(TC)}')
        for i in range(16):
            q(.5, f'v_mul_f32 v{EA + i}, s55, v{EA + i}')
        q(.5, f'v_max3_f32 v{H_MX}, |v{EA}|, |v{EA + 1}|, 0')
        for i in range(2, 16, 2):
            q(.5, f'v_max3_f32 v{H_MX}, |v{EA + i}|, |v{EA + i + 1}|, v{H_MX}')
        q(16, f'v_cmp_lt_f32 vcc, {fbits(126.0)}, v{H_MX}', 's_nop 1', 's_cmp_lg_u64 vcc, 0', f's_cselect_b32 {sSLOW[b]}, 1, {sGEF}',
          f's_cmp_lg_u32 {sSLOW[b]}, 0', f's_cbranch_scc1 L_noexp{b}', *[f'v_exp_f32 v{EA + i}, v{EA + i}' for i in range(16)], f'L_noexp{b}:')

    def eb_read(k):
        for i in range(4):
            s.lds(f'ds_read_b128 {vr(H_B + 4 * i)}, v{H_EB} offset:{k * 1024 + i * 16}', ('eb', k), ('r', L_EB + k * 1024, 1024))

    def jstep(k, nxt):
        def head():
            s.wait(lg=[('eb', k)])
            e(f's_cmp_lg_u32 {sSLOW[k // 8]}, 0', f's_cbranch_scc1 L_js{k}')
            for i in range(16):
                e(f'v_fma_f32 v{H_T + i}, v{H_EAB[k // 8] + i}, v{H_B + i}, 1.0')
            e(f'L_jb{k}:')
            if nxt:
                eb_read(k + 1)
        qf(head, 8)
        x(f'L_js{k}:', f's_mov_b32 {sBU}, {WS_GB - L_EB + k * 1024}', f's_call_b64 {sRET}, L_slow{k // 8}', f's_branch L_jb{k}')
        sl = L_J[k % NJ]
        a, off = (H_JHI, sl) if sl < 60 * K else (H_JH2, sl - 77 * K)
        for hf in range(2):
            for i in range(8 * hf, 8 * hf + 8):
                q(1, f'v_rcp_f32 v{H_T + i}, v{H_T + i}')
            for i in range(8 * hf, 8 * hf + 8):
                q(.5, f'v_fma_f32 v{H_T + i}, v{H_T + i}, -2.0, 1.0')
            pack8(H_T + 8 * hf, H_T + 8 * hf)
            qf(lambda hf=hf: s.lds(f'ds_write_b128 v{a}, {vr(H_T + 8 * hf)} offset:{off + hf * 1024}', ('jw', k), ('w', sl, 8192)))
        mark(('j', k))

    for b in range(2):
        x(f'L_slow{b}:', 's_waitcnt lgkmcnt(0)')
        for i in range(4):
            x(f'buffer_load_dwordx4 {vr(H_B + 4 * i)}, v{H_EB}, {srd(SWS)}, {sBU} offen offset:{i * 16} sc1')
        x('s_waitcnt vmcnt(0)')
        for i in range(16):
            x(f'v_add_f32 v{H_T + i}, v{H_EAB[b] + i}, v{H_B + i}')
        for i in range(16):
            x(f'v_exp_f32 v{H_T + i}, v{H_T + i}')
        for i in range(16):
            x(f'v_add_f32 v{H_T + i}, 1.0, v{H_T + i}')
        x(f's_setpc_b64 {sRET}')

    def t_base(kind, arg):
        if kind == 'w2':
            e(f's_and_b32 s68, {sM2}, 3', 's_lshl_b32 s68, s68, 2', f's_add_u32 s68, s68, {sW4}', 's_lshl_b32 s68, s68, 10', f's_lshl_b32 s69, {sN8}, 18',
              's_add_u32 s68, s68, s69', f's_add_u32 s68, s68, {WS_W2F}')
        elif kind == 'wfo':
            e(f's_and_b32 s68, {sG}, 31', 's_lshl_b32 s68, s68, 2', f's_add_u32 s68, s68, {sW4}', 's_lshl_b32 s68, s68, 10', f's_add_u32 s68, s68, {arg}')
        else:
            d = sub(32 + arg)
            e(f's_lshl_b32 s68, {sN8}, 2', f's_add_u32 s68, s68, {sW4}', 's_mul_i32 s68, s68, 17', 's_lshr_b32 s68, s68, 2', 's_lshl_b32 s68, s68, 1',
              f's_lshl_b32 s69, {sM2}, 8', 's_add_u32 s68, s68, s69', f's_sub_u32 s68, s68, {7 - d["p"]}', 's_max_i32 s68, s68, 0', 's_lshl_b32 s68, s68, 7',
              f's_add_u32 s68, s68, {WS_H + (d["b"] * 4 + d["c64"]) * (1 << 20)}')
        e(f's_add_u32 s70, s{S_WS}, s68', f's_addc_u32 s71, s{S_WS + 1}, 0')

    def t_item(kind, arg, offs):
        def f():
            t_base(kind, arg)
            for x_ in offs:
                e(f's_load_dword s78, s[70:71], {x_}')
        return f
    TQ = {}

    def t_plan():
        k = o.cntp + 1
        def put(k_, it):
            TQ.setdefault(k_, []).append(it)
        if o.tf:
            put(k, t_item('wfo', WS_WFF, [i * 64 for i in range(16)]))
            k += 1
        if o.tw:
            for c32 in range(o.tw):
                for tau in range(2):
                    while k in o.tskip:
                        k += 1
                    put(k, t_item('w2', 0, [tau * 131072 + c32 * 16384 + i * 64 for i in range(16)]))
                    k += 1
        if o.to:
            put(o.to, t_item('wfo', WS_WOF, [i * 64 for i in range(16)]))
        if o.th:
            for g, k_ in ((2, 29), (3, 30), (4, 31), (5, 33), (6, 34), (7, 35), (11, 39), (12, 41), (13, 42), (14, 43)):
                if g < 8 or k_ > o.h1p:
                    put(k_, t_item('h', g, [r_ * 256 + hh * 64 for r_ in range(5) for hh in range(2)]))
    t_plan()

    e('s_branch L_hmain', ';SPLIT', 'L_hmain:', ';HOP')
    bar('P0', lambda t_: t_[0] == 'P0', lambda t_: False)
    wf_next = [0]
    early = resets(s, lambda l_: vm(l_, 'rst'))[:1] + [lambda tau=tau: prep_b(tau) for tau in range(4)]
    frst = resets(s, lambda l_: vm(l_, 'st'))[1:]
    last_early = [0]
    PF = [(PL.ifirst[k_] + i // 5, f's_load_dword s78, s[{74 + 2 * b_}:{75 + 2 * b_}], {i * 1024 + (st & 1) * 512 + (st >> 1) * 128 + hh * 64}')
          for k_, (b_, st) in enumerate(PL.IL) if k_ >= o.pf0 + (1 if PL.M else 0) for i in range(9) for hh in range(2)]
    pend_flag = []

    def late_flag(dm, at):
        if pend_flag and pend_flag[0][1] != cur[0]:
            assert not frst
            k_ = pend_flag.pop(0)[0]
            dm.insert(len(dm) if k_ == 0 else 0, lambda: flag_set(k_))
    polls = {o.cntp: ('cnt', 0), o.h0p: ('h', 0), o.h1p: ('h', 1), o.gep: ('ge', 0)}
    assert len(polls) == 4 and o.gep < 36

    for sig in range(48):
        cur[0] = f'B{sig}'
        s.c(f'--- interval {sig}')
        now(held)
        held.clear()
        P = poll_issue(*polls[sig]) if sig in polls else None
        if sig == o.f0p + 1:
            assert not Q
            if o.probe:
                e(f's_mov_b32 {sFL}, 0')
                f_force(0)
                q(o.f0w, 's_nop 0')
            fe(0)
            qf(lambda: eb_read(0))
            for k in range(8):
                jstep(k, True)
        if sig >= o.st0:
            for _ in range(o.stn):
                if early:
                    early.pop(0)()
        if sig >= o.fr0 and frst:
            frst.pop(0)()
        if sig == o.arr - 1:
            assert not early and last_early[0] < sig
        if early:
            last_early[0] = sig + 1
        if sig in (PL.eA + 1, 32):
            epi1_read(sig // 32, [0])
            epi1_unit(0, sig < 32 and o.defer)
        if PL.M and sig == PL.eA + 2:
            epi1_read(0, [1, 2])
            epi1_unit(1, o.defer)
            epi1_unit(2, o.defer)
        if sig in (PL.eA + 3 if PL.M else 18 if o.redir else 17, 33):
            us = [3] if (PL.M and sig < 32) else [1, 2, 3]
            epi1_read(sig // 32, us)
            for u_ in us:
                epi1_unit(u_, sig < 32 and o.defer)
            if sig < 32 and o.defer:
                qf(lambda: held.append(lambda: pend_flag.append((0, cur[0]))))
            else:
                qf(lambda k_=sig // 32: pend_flag.append((k_, cur[0])))
        if sig == 40:
            epi2_read(0, 0)
            epi2_unit(0)
        if sig == 41:
            qf(lambda: epi2_read(0, 1))
            epi2_unit(1)
            qf(lambda: stamp('x_fst0'))
        dm = []
        if not cwin(o, sig):
            for kind, i in PL.win.get(sig, []):
                dm += dma_x(i) if kind == 'x' else dma_w(i)
        for _ in range(o.wf14 if sig == 14 else o.wfn if sig < 28 else 6):
            if sig > o.cntp + 2 * o.tf and (sig % 2 == 1 or sig in (14, 30) or (PL.M and sig == 28)) and sig not in polls and not (PL.M and PL.eA < sig < PL.eA + 5) and wf_next[0] < 32:
                dm.append(lambda i=wf_next[0]: ld_wf(i))
                wf_next[0] += 1
        if 36 <= sig <= 38:
            dm += dma_eb()[2 * (sig - 36):2 * (sig - 36) + 2]
        if sig == 40:
            get_ebf()
        T_ = 4 * sub(sig)['T'] + (4 * sub(sig - 1)['T'] if sig else 0)
        nd = len(dm)
        late_flag(dm, 0)
        used = run_q(T_ - o.qm - nd * o.qd, dm)
        if pend_flag and T_ - nd * o.qd - used >= o.fnow:
            flag_set(pend_flag.pop(0)[0])
        if sig == o.pa:
            prep_a()
        if sig == o.f0p and not o.probe:
            assert not Q
            if o.xb >= 0:
                s.barrier('X')
            ld_f(0)
        if o.arr <= sig < o.arr + o.arrn and o.arrm == 0:
            assert o.arr + o.arrn - 1 <= JOIN and o.fr0 + 3 <= JOIN and o.arrm == 0
            e(f's_cmp_eq_u32 {sARS}, {sig - o.arr}', 's_cselect_b32 s68, 0, 0x40000000')
            vm(f'buffer_atomic_add v{H_ONE}, v{H_ARR}, {srd(SD)}, s68 offen sc1', 'arr')
        e(';HOP')
        if sig == 0:
            for i in range(o.tc, 5):
                e(f's_load_dword s82, s[80:81], {i * 16384}', f's_load_dword s82, s[80:81], {i * 16384 - 256}')
        tch = {0: 3} if o.pf == 1 else dict(zip(o.tw1, range(4))) if o.pf == 2 else {}
        if sig in tch:
            for i in range(4):
                e(f's_load_dword s82, s[60:61], {tch[sig] * 32768 + i * 64}', f's_load_dword s82, s[60:61], {tch[sig] * 32768 - 1024 + i * 64}')
        if o.pfx and sig >= o.pfs and sig not in tch and sig not in ((PL.eA, PL.eA + 1, PL.eA + 2) if PL.M else (15, 17) if o.redir else (15, 16)):
            n_ = 0
            while PF and n_ < o.pfn and PF[0][0] <= sig + o.pfd:
                if n_ == 0:
                    s.wait(lg=lambda t_: True)
                e(PF.pop(0)[1])
                n_ += 1
        if sig in TQ:
            s.wait(lg=lambda t_: True)
            now(TQ[sig])
        if P:
            if P[0] == 'h':
                assert f'flag{polls[sig][1]}' in done
            poll_check(*P)
        lgp = lambda t_: t_[0] == 'e' or (t_[0] == 'jw' and t_[1] <= 0 and sig == 47)
        if sig == 47:
            assert ('j', 0) in done
        vmp = lambda t_: (t_[1][0] == 'dl' and t_[1][1] <= sig) or (sig == o.arr - 1 and t_[1] in ('pst', 'rst')) or (sig == 40 and t_[1] == 'eb')
        bar(f'B{sig}', vmp, lgp)
        if o.diag == 2 and sig % 4 == 3:
            stamp(f'c_{sig}')
            stamp(f'r_{sig}', True)
        if sig == JOIN:
            e('L_h_join:')
            tail = Stream('tail')
            if o.cntp <= JOIN:
                tail.e(f's_mov_b32 {sSPIN}, 0', 'L_gec:', f'buffer_load_dword v{H_PV}, v{H_ZERO}, {srd(SD)}, 0 offen sc1', 's_waitcnt vmcnt(0)',
                       f'v_cmp_le_u32 vcc, 0x100, v{H_PV}', 's_nop 1', 's_cmp_lg_u64 vcc, 0', 's_cbranch_scc1 L_ged', f's_add_u32 {sSPIN}, {sSPIN}, 1',
                       f's_cmp_gt_u32 {sSPIN}, {SPIN_LIMIT}', 's_cbranch_scc1 L_ged', 's_sleep 16', 's_branch L_gec', 'L_ged:')
                for i in range(wf_next[0]):
                    ld_wf(i, tail)
            tail.e('s_branch L_h_join')
            i_ = ool.l.index('L_ge_tail:')
            ool.l[i_:i_ + 1] = tail.l
    assert wf_next[0] == 32
    for n_, k in enumerate(o.jb):
        cur[0] = f'J{k}'
        nxt = o.jb[n_ + 1] if n_ + 1 < len(o.jb) else 15
        s.c(f'--- joint interval {k}')
        if k == 0 and o.jprio:
            e('s_setprio 3')
        if n_ <= 1:
            print(f'j steps done before window {n_}:', sorted(d_[1] for d_ in done if d_[0] == 'j'), file=sys.stderr)
            cut = 0 if n_ == 0 else next((i + 1 for i, it in enumerate(Q) if it[1].__name__ == 'u0end'), 0)
            rest = Q[cut:]
            del Q[cut:]
            qf(lambda n_=n_: epi2_read(1, n_))
            epi2_unit(n_)
            if n_ == 0:
                def u0end():
                    pass
                qf(u0end)
            else:
                qf(lambda: (stamp('x_fst1'), done.add('fst1')))
                if o.jprio in (1, 3):
                    q(0, 's_setprio 0')
            Q.extend(rest)
            if n_ == 1:
                def after(jn):
                    return next(i + 1 for i, it in enumerate(Q) if getattr(it[1], 'jmark', None) == jn)
                if o.probe:
                    i_ = after(o.f1a)
                    Q.insert(i_ + o.f1c, (0, lambda: f_try(1)))
                    Q.insert(i_, (0, lambda: probe_issue(s, 1)))
                else:
                    Q.insert(after(o.f1a), (0, lambda: ld_f(1)))
                cut = after(o.f1b)
                rest = Q[cut:]
                del Q[cut:]
                if o.probe:
                    qf(lambda: f_force(1))
                if o.jprio == 3:
                    q(0, 's_setprio 3')
                fe(1)
                Q.extend(rest)
                for k_ in range(8, 16):
                    jstep(k_, k_ < 15)
                    if k_ == 8 and o.jprio == 3:
                        q(0, 's_setprio 0')
        if n_ == 0:
            run_q(o.qj0)
        while ('j', nxt) not in done:
            run_q(1)
        if n_:
            run_q(o.joff if k >= 7 else o.joff0)
        bar(f'J{k}', lambda t_: False, lambda t_: t_[0] == 'e' or (t_[0] == 'jw' and t_[1] <= nxt))
        if o.diag == 2 and k in (0, 7, 11):
            stamp(f'c_J{k}')
            stamp(f'r_J{k}', True)
    assert not Q
    if o.diag:
        flush_stamps()
        stamp('end')
        stamp('rt1', True)
        flush_stamps()
        e(f's_lshl_b32 s68, s2, 2', f's_add_u32 s68, s68, {sW4}', 's_lshl_b32 s68, s68, 11', f's_add_u32 s68, s68, {WS_DIAG}', f'v_lshlrev_b32 v{H_TMP}, 2, v0')
        for i in range(3):
            e(f'buffer_store_dword v{H_STAMP + i}, v{H_TMP}, {srd(SWS)}, s68 offen offset:{i * 256}')
    e('s_endpgm')
    return s, ool


def sizes_of(lines):
    import subprocess, re, os
    body = [l for l in lines]
    labels = set(re.findall(r'\bL[\w]+', '\n'.join(l.split(';')[0] for l in body)))
    defined = set(l.strip()[:-1] for l in body if l.strip().endswith(':'))
    txt = '.amdgcn_target "amdgcn-amd-amdhsa--gfx950"\n.text\n' + '\n'.join(body) + '\n' + ''.join(f'{l}:\n' for l in labels - defined) + 's_endpgm\n'
    open('_sz.s', 'w').write(txt)
    subprocess.run(['clang', '-x', 'assembler', '-target', 'amdgcn-amd-amdhsa', '-mcpu=gfx950', '-c', '_sz.s', '-o', '_sz.o'], check=True)
    d = subprocess.run(['llvm-objdump', '-d', '--mcpu=gfx950', '_sz.o'], capture_output=True, text=True).stdout
    ad = [int(m, 16) for m in re.findall(r'// ([0-9A-F]{12}):', d)]
    out, k = [], 0
    for l in body:
        t = l.split(';')[0].strip()
        if not t or t.endswith(':'):
            out.append(0)
        else:
            out.append(ad[k + 1] - ad[k])
            k += 1
    assert k == len(ad) - 1
    return out


def warm_pages(o, cl, cool, hl):
    isbar = lambda l: l.strip().startswith('s_barrier') and not l.strip().endswith('; X')
    base = cl + cool + hl
    sz = sizes_of(base)
    nc, h0 = len(cl), len(cl) + len(cool)
    hops = {}
    for it in range(30):
        out, pc, page, nb, sites, masked = [], 0, 1, 0, [], False
        for i, l in enumerate(base):
            if i == h0:
                nb = 0
            if i >= h0 and l.strip() == ';HOP':
                for pg in hops.get(nb, []):
                    out += ['    s_mov_b64 exec, 0', f'    s_branch L_pg{pg}', f'L_pb{pg}:', '    s_mov_b64 exec, -1']
                    pc += 12
            if sz[i] and pc >= page * 4096 and not masked:
                if i < nc or (i >= h0 and nb in o.busy):
                    out += [f'L_pg{page}:', f'    s_cbranch_execz L_pb{page}']
                    sites.append((page, nb, i >= h0))
                    pc += 4
                page += 1
            out.append(l)
            if l.strip().startswith('s_mov_b64 exec'):
                masked = not l.strip().endswith('-1')
            pc += sz[i]
            if isbar(l):
                nb += 1
        new = {}
        busy = o.busy
        cap = {sg + 1: c_ for sg, c_ in o.hopcap.items()} if PL.M else None
        for pg, b, own in sites:
            k = max(b - (3 if own else 2), 0)
            if cap:
                while k > 0 and len(new.get(k, [])) >= cap.get(k, 0):
                    k -= 1
            else:
                while k > 0 and (k in busy or (k < 31 and k % 2) or len(new.get(k, [])) >= (1 if k < 31 else 2)):
                    k -= 1
            new.setdefault(k, []).append(pg)
        if new == hops:
            print('pages', sites, 'hops', hops, file=sys.stderr)
            return out
        if it >= 5 and sorted(p_ for v_ in new.values() for p_ in v_) == sorted(p_ for v_ in hops.values() for p_ in v_):
            return out
        hops = new
    raise RuntimeError('no fixpoint')


def gen(o):
    global PL, JOIN
    JOIN = o.join
    PL = Plan(o.M)
    if o.M:
        o.redir = 0
        o.busy = set([1] + list(range(PL.eA + 2, PL.eA + 7)) + [33, 34, 35, 36, 41, 42] + list(range(45, 70)))
    p = gen_entry(o)
    c, cool = gen_compute(o, p)
    h, ool = gen_helper(o, p)
    assert c.nbar == h.nbar, (c.nbar, h.nbar)
    errs = lint(p.l + c.l, 'C') + lint(p.l + h.l, 'H') + lint(ool.l, 'ool') + lint(cool.l, 'cool')
    for ec, eh in zip(c.ev, o.hentry):
        ec['done'] = max(ec['done'], eh['done'])
    races = lds_races([c, h])
    errs += races[:20] + lint_async(p.l + c.l, 'C')[:20] + lint_async(p.l + h.l, 'H')[:20]
    for x in errs:
        print('LINT', x, file=sys.stderr)
    hdr = open('standalone__seq2seq_rnn_t_joint__speech.s.ref').read().split('\n')
    hdr = [l for l in hdr if l.startswith(';') and '@launch' not in l]
    out = '\n'.join(hdr[:11]) + '\n'
    out += '; @launch grid=(256,1,1) block=(512,1,1) lds=163840\n'
    out += DOC
    out += f'''.amdgcn_target "amdgcn-amd-amdhsa--gfx950"
.text
.globl {KN}
.p2align 8
.type {KN},@function
{KN}:
'''
    cut = next(i for i, l in enumerate(h.l) if l.strip() == ';SPLIT')
    h1, h2 = h.l[:cut], h.l[cut + 1:]
    body = warm_pages(o, c.l, cool.l, h2) if o.warm else c.l + cool.l + h2
    out += p.text() + '\n'.join(h1) + '\n.p2align 12\nL_compute:\n' + '\n'.join(body) + '\n' + ool.text() + 'L_exit:\n    s_endpgm\n.p2align 8\n' + '    s_endpgm\n' * 2048
    out += f'''.section .rodata,"a"
.p2align 6
.amdhsa_kernel {KN}
  .amdhsa_next_free_vgpr 256
  .amdhsa_next_free_sgpr {102 if o.diag else 96}
  .amdhsa_accum_offset 256
  .amdhsa_group_segment_fixed_size 0
  .amdhsa_kernarg_size 80
  .amdhsa_user_sgpr_count 2
  .amdhsa_user_sgpr_kernarg_segment_ptr 1
  .amdhsa_system_sgpr_workgroup_id_x 1
.end_amdhsa_kernel
'''
    print(f'mfma={c.nmfma} barriers={c.nbar} lines C={len(c.l)} H={len(h.l)} ool={len(ool.l)} lint={len(errs)}', file=sys.stderr)
    return out


if __name__ == '__main__':
    o = Opt()
    outp = sys.argv[1]
    for a in sys.argv[2:]:
        k, v = a.split('=')
        assert hasattr(o, k), k
        if k in ('xf', 'wf', 'of', 'of2', 'hf', 'hs', 'w2f', 'w2g'):
            setattr(o, k, v.replace('_', ' '))
            continue
        setattr(o, k, tuple(int(y) for y in v.split(',') if y) if k in ('cw', 'jb', 'idle_at', 'tw1') else float(v) if '.' in v else int(v))
    txt = gen(o)
    if o.diag:
        txt += '; STAMPS ' + ' '.join(o.names) + '\n; CSTAMPS ' + ' '.join(o.cnames) + '\n'
    open(outp, 'w').write(txt)
    import subprocess, re
    subprocess.run(['clang', '-x', 'assembler', '-target', 'amdgcn-amd-amdhsa', '-mcpu=gfx950', '-c', outp, '-o', '_fin.o'], check=True)
    d = subprocess.run(['llvm-objdump', '-d', '-h', '_fin.o'], capture_output=True, text=True).stdout
    pc = int(re.search(r'([0-9a-f]+) <L_pc>', d).group(1), 16)
    size = int(re.search(r'\.text\s+([0-9a-f]+)', d).group(1), 16)
    end = int(re.search(r'([0-9a-f]+) <L_exit>', d).group(1), 16)
    assert pc + 5 * 16384 <= size and end <= pc + 5 * 16384, (pc, end, size)
    r = subprocess.run([sys.executable, 'cdna_unwritten_srd_check.py', outp], capture_output=True, text=True)
    assert r.returncode == 0, r.stdout + r.stderr
```

```python
import sys, struct
from stream import Stream, lint, lds_races, lint_async

KN = 'standalone__seq2seq_rnn_t_joint__speech_kernel'
K = 1024
OOB = 0x80000000
WS_H = 0
WS_F = 8 << 20
WS_W2F = 12 << 20
WS_WFF = 14 << 20
WS_WOF = WS_WFF + 128 * K
WS_EB = WS_WFF + 256 * K
WS_GB = WS_EB + 16 * K
WS_EBF = WS_GB + 16 * K
WS_W1F = 18 << 20
WS_HFL = 15 << 20
WS_FFL = WS_HFL + 256 * K
WS_DIAG = 16 << 20
WS_SIZE = 19 << 20
L_SLOT = [0, 60 * K, 92 * K]
L_ST = 28 * K
L_XB = 90 * K
L_X = [124 * K, 141 * K]
L_X2 = 43 * K
L_IMG = [124 * K, 107 * K, 90 * K, 141 * K]
L_EB = 61 * K
L_J = [0, 8 * K, 16 * K, 77 * K, 124 * K, 132 * K, 107 * K, 115 * K]
NJ = len(L_J)
ZT = [2, 0, 3, 1, 0, 2, 4, 3, 7, 4, 6, 5, 0, 6, 4, 7, 2]
T0 = sum(ZT[l] << (4 * l) for l in range(16))
T1 = sum(ZT[l + 1] << (4 * l) for l in range(16))
JOIN = 15


def fbits(x):
    return '0x%08x' % struct.unpack('<I', struct.pack('<f', x))[0]


GC1 = -2 * 0.7978845608028654 * 1.4426950408889634
GC2 = GC1 * 0.044715
TC = 2 * 1.4426950408889634


def vr(b, n=4):
    return f'v[{b}:{b + n - 1}]'


S_X, S_W1, S_W2, S_G, S_WF, S_WG, S_WO, S_OUT, S_DBG, S_WS = 4, 6, 8, 10, 12, 14, 16, 18, 20, 22
sWAVE, sW4, sM, sNQ, sM2, sN8, sG, sHW1K = 's24', 's25', 's26', 's27', 's28', 's29', 's30', 's31'
SA, SW1, SWS, SB, SD = 32, 36, 40, 44, 92


def srd(n):
    return f's[{n}:{n + 3}]'


def mk_srd(s, n, base, nrec, add=None):
    if add is None:
        s.e(f's_mov_b32 s{n}, s{base}', f's_mov_b32 s{n + 1}, s{base + 1}')
    else:
        s.e(f's_add_u32 s{n}, s{base}, {add}', f's_addc_u32 s{n + 1}, s{base + 1}, 0')
    s.e(f's_mov_b32 s{n + 2}, {nrec}', f's_mov_b32 s{n + 3}, 0x20000')


DOC = """;
; One persistent workgroup per CU (256 workgroups, 8 waves): waves 0-3 run the MFMA stream, waves 4-7 ("helpers") stage
; operands, run the activations and handle the hand-offs.  The code is generated (fully unrolled, barrier-delimited intervals).
;          ds_read; rows are interleaved (t = 8*l + block) so one x fragment serves up to 8 taps; the first half of the
;          weight sets is shared by both batches, then batch 0 finishes, then batch 1 walks the rest backwards (the lag
;          hides the hand-off latency, the turn-around reuses the sets that are still in registers / LDS).
;   conv2  128 rows x 32 channels per batch, K split over wave pairs; w2 comes re-laid-out (fragment order) from d_ws.
;   joint  16 rows x 8 u per batch: helpers compute fe = f @ w_f, j = tanh(fe + ge) = 1 - 2 / (1 + 2^(c*fe) * 2^(c*ge)),
;          c = 2*log2(e) (direct 2^(c*fe + c*ge) whenever either factor could leave the normal range), MFMA waves j @ w_o.
; Hand-offs through d_ws: write-through (sc1) stores; h tiles are announced by flags (reset in this launch, validity counted
; in d_debug), f tiles carry their own readiness (reset to all ones in this launch).  Every wait is bounded.
"""


class Opt:
    diag = 0
    prio = 0
    cst = -1
    pf = 2
    pfx = 1
    pf0 = 3
    pfn = 10
    fr0 = 10
    pfd = 7
    pa = 0
    hopcap = {2: 1, 6: 2, 10: 3, 12: 1, 30: 2, 31: 1, 36: 1, 37: 2, 38: 2, 39: 2, 42: 2, 43: 1}
    s32 = 1
    fnow = 30
    jcp = 1
    fplain = 1
    tw1 = (0, 2, 5, 9)
    xf = ' nt sc1'
    hf = ' sc1'
    hs = ' sc1'
    w2f = ' sc1'
    w2g = ' sc1'
    wf = ' sc1'
    of = ' nt sc1'
    of2 = ''
    ofk = 16
    join = 15
    tc = 3
    pfs = 1
    wf14 = 12
    st0 = 1
    stn = 1
    wfn = 4
    arrn = 3
    M = 8
    rev = 1
    rev2 = 1
    redir = 1
    lazy = 1
    defer = 0
    skip = 0
    idle = 0
    idle_at = (10,)
    xb = -1
    ext = 10
    extv = 56
    pack = 1
    tf = 0
    tw = 0
    to = 37
    th = 0
    tskip = (17, 31, 32)
    otouch = 0
    bl = 1
    jprio = 3
    jb = (0, 3, 5, 7, 8, 9, 10, 11, 12, 13, 14)
    f1a = 5
    f1b = 7
    joff0 = 8
    arrm = 0
    arr = 7
    cntp = 13
    gep = 35
    h0p = 30
    h1p = 38
    f0p = 43
    f1p = 3
    qm = 3
    qd = 2.0
    qj = 40
    qj0 = 48
    span = 0
    probe = 0
    f0w = 40
    f1c = 22
    joff = 14
    serp = 1
    warm = 1
    busy = set([1, 17, 19, 20, 21, 33, 34, 35, 36, 41, 42] + list(range(45, 70)))
    cw = (24, 26, 27)
    slp = 6


class Plan:
    def __init__(p, M, rev=0):
        p.M = M
        tail = list(range(M, 16))
        p.order = [(b, r) for r in range(M) for b in range(2)] + [(0, r) for r in tail] + [(1, r) for r in (tail[::-1] if rev else tail)]
        p.wn, p.fload, p.WL, p.wslot = [], [], [], []
        for sg, (b, r) in enumerate(p.order):
            if sg == 0 or r != p.order[sg - 1][1]:
                occ = {p.wslot[n]: n for n in range(len(p.WL))}
                hit = [n for n in occ.values() if p.WL[n] == r]
                if rev and hit:
                    p.fload.append(hit[0])
                else:
                    n = len(p.WL)
                    if not rev or n < 16:
                        slot = L_SLOT[(n + (1 if rev else M)) % 3]
                    else:
                        slot = p.wslot[(15, 14, 13, 16, 17)[n - 16]]
                    p.WL.append(r)
                    p.wslot.append(slot)
                    p.fload.append(n)
            p.wn.append(len(p.fload) - 1)
        p.wfirst = [p.wn.index(p.fload.index(n)) for n in range(len(p.WL))]
        p.wlast = [max(p.wn.index(f_) for f_, n_ in enumerate(p.fload) if n_ == n) for n in range(len(p.WL))]
        p.cyc = [2, p.wn[30] & 1, p.wn[31] & 1]
        p.IL = []
        for b, r in p.order:
            if (b, r >> 1) not in p.IL:
                p.IL.append((b, r >> 1))
        p.img = [p.IL.index((b, r >> 1)) for b, r in p.order]
        p.ifirst = [p.img.index(i) for i in range(16)]
        ilast = [31 - p.img[::-1].index(i) for i in range(16)]
        p.ibuf = [L_X[i & 1] for i in range(16)] if M == 0 else [(L_X[1], L_X[0], L_X2)[i % 3] for i in range(M + 1)] + [L_X[(i - M) & 1] for i in range(M + 1, 16)]
        assert M in (0, 8) and p.ibuf[14:] == L_X
        p.eA = p.order.index((0, 15))
        p.win = {}
        p.npi = 3 if M else 2
        for i in range(p.npi, 16):
            prev = max(k for k in range(i) if p.ibuf[k] == p.ibuf[i])
            w = ilast[prev] + 1 if i <= M else p.ifirst[i] - 2
            assert ilast[prev] + 1 <= w <= p.ifirst[i] - 2 or (i <= M and w <= p.ifirst[i] - 1), (i, w)
            p.win.setdefault(w, []).append(('x', i))
        for w, it in ([(0, ('w', 1)), (1, ('x', 2)), (1, ('w', 2))] if M else [(0, ('w', 2)), (0, ('x', 1))]):
            p.win.setdefault(w, []).append(it)
        for n in range(3, len(p.WL)):
            prev = max(k for k in range(n) if p.wslot[k] == p.wslot[n])
            w = p.wlast[prev] + 1 + (1 if M and n == 3 else 0)
            assert w <= p.wfirst[n] - 2
            p.win.setdefault(w, []).append(('w', n))

    def wset(p, n):
        r = p.WL[n]
        return dict(c64=r >> 2, p=(r >> 1) & 1, kh=r & 1, T=8 - ((r >> 1) & 1))


PL = None


def sub(sig):
    if sig < 32:
        b, r = PL.order[sig]
        c64, p, kh = r >> 2, (r >> 1) & 1, r & 1
        return dict(ph=1, b=b, c64=c64, p=p, kh=kh, T=8 - p, first=r == 0, last=sig in (PL.eA, 31),
                    xbuf=PL.ibuf[PL.img[sig]], bank=PL.wn[sig] & 1, wk=PL.wn[sig], acc=216 if (PL.M and b == 0) else 24)
    g = sig - 32
    b, r = divmod(g, 8)
    first, last, bank = r == 0, r == 7, PL.cyc[g % 3]
    if b and PL.rev2:
        r = 7 - r
        bank = PL.cyc[(15 - g) % 3]
    c64, p = r >> 1, r & 1
    return dict(ph=2, b=b, c64=c64, p=p, kh=None, T=8 - p, first=first, last=last,
                xbuf=L_IMG[g & 3], bank=bank, wk=sig, acc=24)


def cwin(o, win):
    return win >= 30 or win in o.cw


def w1_off(n, j):
    d = PL.wset(n)
    return (2 * j + d['p']) * 131072 + (64 * d['c64'] + 32 * d['kh']) * 512


def x_base(s_, b):
    if b:
        s_.e(f's_add_u32 s{SA}, s{S_X}, 8192000', f's_addc_u32 s{SA + 1}, s{S_X + 1}, 0')
    else:
        s_.e(f's_mov_b32 s{SA}, s{S_X}', f's_mov_b32 s{SA + 1}, s{S_X + 1}')


H_XV, H_HV, H_WD = 1, 11, 21
E_SP, E_GAM, E_S = 240, 241, 242


def img_addr(e, dst, lreg, rowbase, shift, t):
    e(f's_lshl_b32 s74, {lreg}, 2', 's_lshr_b64 s[76:77], s[68:69], s74', 's_and_b32 s76, s76, 7',
      f's_lshl_b32 s74, {lreg}, 4', f's_add_u32 s74, s74, {rowbase}', 's_sub_u32 s74, s74, 7')
    e(f'v_lshl_add_u32 v{t}, v{E_S}, 1, s74', f'v_xor_b32 v{t + 1}, s76, v{E_GAM}', f'v_lshlrev_b32 v{t + 1}, 4, v{t + 1}',
      f'v_lshl_add_u32 v{dst}, v{t}, {shift}, v{t + 1}')


def gen_entry(o):
    p = Stream('P')
    e = p.e
    e('s_cmp_ge_u32 s2, 256', 's_cbranch_scc1 L_exit')
    if o.span:
        e('s_memrealtime s[94:95]')
    e('s_load_dwordx4 s[4:7], s[0:1], 0', 's_load_dwordx8 s[8:15], s[0:1], 16', 's_load_dwordx8 s[16:23], s[0:1], 48')
    e('v_lshrrev_b32 v1, 6, v0', 's_and_b32 s70, s2, 7', 's_lshr_b32 s71, s2, 3', f'v_readfirstlane_b32 {sWAVE}, v1', 'v_and_b32 v0, 63, v0')
    if o.serp:
        e('s_bitcmp1_b32 s2, 0', 's_cselect_b32 s72, 0, 31', 's_xor_b32 s71, s71, s72')
    e('s_lshl_b32 s72, s70, 3', 's_lshr_b32 s73, s71, 2', f's_add_u32 {sM}, s72, s73', f's_and_b32 {sNQ}, s71, 3')
    e(f'v_lshrrev_b32 v{E_SP}, 3, v0', f'v_and_b32 v{E_GAM}, 7, v0', f's_and_b32 {sW4}, {sWAVE}, 3', f's_lshl_b32 {sHW1K}, {sW4}, 10')
    e(f's_mov_b32 s68, {T0 & 0xffffffff}', f's_mov_b32 s69, {T0 >> 32}', f's_and_b32 s78, {sW4}, 1', f'v_xor_b32 v{E_S}, s78, v{E_SP}')
    e(f's_lshr_b32 s79, {sWAVE}, 2', 's_xor_b32 s79, s79, 1', 's_lshl_b32 s75, s79, 3', f's_add_u32 s75, s75, {sW4}', f's_lshl_b32 s67, {sM}, 8')
    img_addr(e, H_XV, 's75', 's67', 9, 243)
    e('s_add_u32 s66, s75, 4')
    img_addr(e, H_XV + 1, 's66', 's67', 9, 243)
    e(f'v_and_b32 v243, 2, v{E_SP}', 's_lshl_b32 s78, s78, 2', 'v_or_b32 v243, s78, v243', f'v_xor_b32 v243, v243, v{E_GAM}',
      f's_lshl_b32 s73, {sW4}, 12', f's_lshl_b32 s74, {sNQ}, 7', 's_add_u32 s73, s73, s74',
      f'v_lshlrev_b32 v244, 9, v{E_SP}', 'v_lshl_add_u32 v244, v243, 4, v244', f'v_add_u32 v{H_WD}, s73, v244')
    e(f'v_lshlrev_b32 v245, 1, v{E_SP}', f'v_add_u32 v245, {256 - 7}, v245', f'v_xor_b32 v246, {ZT[16]}, v{E_GAM}', 'v_lshlrev_b32 v246, 4, v246',
      'v_add_u32 v243, s67, v245', f'v_lshl_add_u32 v{H_XV + 4}, v243, 9, v246', f's_lshl_b32 s74, {sWAVE}, 3', 's_mov_b64 s[76:77], 0xff', 's_lshl_b64 s[76:77], s[76:77], s74')
    e('s_lshl_b32 s75, s75, 10', 's_lshl_b32 s65, s79, 14', f's_add_u32 s65, s65, {sHW1K}', 's_lshl_b32 s64, s79, 20')
    e('s_waitcnt lgkmcnt(0)')
    mk_srd(p, SA, S_X, 8192000)
    mk_srd(p, SW1, S_W1, 1966080)
    def img(buf, tag):
        for i in range(2):
            e(f's_add_u32 m0, s75, {buf + 4096 * i}', 's_nop 0')
            p.vmem(f'buffer_load_dwordx4 v{H_XV + i}, {srd(SA)}, 0 offen lds', tag, ('w', buf, 17408) if i == 0 else None)
        e(f's_mov_b32 m0, {buf + 16384}', 's_mov_b64 exec, s[76:77]')
        p.vmem(f'buffer_load_dwordx4 v{H_XV + 4}, {srd(SA)}, 0 offen lds', tag)
        e('s_mov_b64 exec, -1')

    def wset(n, tag):
        for j in range(4):
            e(f's_add_u32 m0, s65, {PL.wslot[n] + j * 4096}', f's_add_u32 s66, s64, {w1_off(n, j)}')
            p.vmem(f'buffer_load_dwordx4 v{H_WD}, {srd(SW1)}, s66 offen lds', tag, ('w', PL.wslot[n], 32768) if j == 3 else None)
    img(PL.ibuf[0], ('P0', ('dl', -1)))
    wset(0, ('P0', ('dl', -1)))
    if PL.M:
        x_base(p, 1)
        img(PL.ibuf[1], ('P0b', ('dl', 0)))
    else:
        wset(1, ('P0b', ('dl', 0)))
    e('s_lshl_b32 s72, s70, 2', 's_lshr_b32 s73, s71, 3', f's_add_u32 {sM2}, s72, s73', f's_and_b32 {sN8}, s71, 7')
    e('s_lshl_b32 s72, s70, 5', f's_add_u32 {sG}, s72, s71')
    mk_srd(p, SWS, S_WS, WS_SIZE)
    e('s_getpc_b64 s[80:81]', 'L_pc:', 's_lshl_b32 s72, s71, 3', f's_add_u32 s72, s72, {sWAVE}', 's_lshl_b32 s72, s72, 6',
      's_add_u32 s80, s80, s72', 's_addc_u32 s81, s81, 0')
    for i in range(o.tc):
        e(f's_load_dword s82, s[80:81], {i * 16384}')
    if o.pf == 2:
        e(f's_and_b32 s72, {sM}, 7', 's_lshl_b32 s72, s72, 18', f's_lshl_b32 s73, {sWAVE}, 11', 's_add_u32 s72, s72, s73', f's_lshl_b32 s73, {sNQ}, 7', 's_add_u32 s72, s72, s73',
          f's_add_u32 s62, s{S_W1}, s72', f's_addc_u32 s63, s{S_W1 + 1}, 0')
        for i in range(15 - o.tc):
            e(f's_load_dword s82, s[62:63], {(i >> 3) * 16384 + ((i >> 1) & 3) * 512 + (i & 1) * 64}')
    if o.pf:
        e('s_lshl_b32 s72, s2, 3', f's_add_u32 s72, s72, {sWAVE}', 's_lshr_b32 s73, s72, 7', 's_min_u32 s73, s73, 14', 's_lshl_b32 s73, s73, 17', 's_and_b32 s72, s72, 127',
          's_lshl_b32 s72, s72, 8', 's_add_u32 s72, s72, s73', f's_add_u32 s64, s{S_W1}, s72', f's_addc_u32 s65, s{S_W1 + 1}, 0')
    if o.pf == 1:
        for c_ in range(3):
            for i in range(4):
                e(f's_load_dword s82, s[64:65], {c_ * 32768 + i * 64}')
    e(f's_cmp_lt_u32 {sWAVE}, 4', 's_cbranch_scc1 L_compute')
    return p


def flag_addr(e, dst, t):
    e(f's_lshl_b32 s68, {sM}, 2', f's_add_u32 s68, s68, {sNQ}', 's_lshl_b32 s68, s68, 5', f's_add_u32 s68, s68, {sW4}', 's_lshl_b32 s68, s68, 2', f's_add_u32 s68, s68, {WS_HFL}')
    e(f's_lshl_b32 s69, {sM2}, 3', f's_add_u32 s69, s69, {sN8}', 's_lshl_b32 s69, s69, 2', f's_add_u32 s69, s69, {sW4}', 's_lshl_b32 s69, s69, 7', f's_add_u32 s69, s69, {WS_FFL}')
    e(f'v_mov_b32 v{t}, s68', f'v_mov_b32 v{t + 1}, s69', 'v_cmp_gt_u32 vcc, 2, v0', f'v_and_b32 v{t + 2}, 1, v0', 's_nop 0',
      f'v_cndmask_b32 v{t}, v{t + 1}, v{t}, vcc', f'v_lshl_add_u32 v{dst}, v{t + 2}, 17, v{t}')


V_D2, V_WO, V_JLO, V_JHI, V_OUT = 1, 2, 3, 4, 5
V_XA2 = 8
V_XA1 = 12
V_WLO, V_WHI, V_D1, V_W2 = 20, 21, 22, 23
V_ACC = 24
V_Z = 56
V_Y = 88
C_XV = [248, 249, 250, 251, 252, 253, 254, 255, 116, 117]
C_WD = 118
V_WB = [120, 152, 184]
V_SP = 216
V_PK = V_WB[2] + 16


def wo_reg(tau, ka):
    if tau < 3:
        return (V_SP, V_WB[sub(45)['bank']], V_WB[sub(46)['bank']])[tau] + 4 * ka
    return (12, 16, 20, 248, 252, V_WB[2], V_WB[2] + 4, V_WB[2] + 8)[ka]


def xreg(s_):
    return V_Z + 4 * s_ if s_ < 8 else V_Y + 4 * (s_ - 8)


def gen_compute(o, p):
    s = Stream('C')
    s.vm = list(p.vm)
    s.ev = [dict(e_) for e_ in p.ev]
    s.open = {id(e_['tag']): e_ for e_ in s.ev}
    ool = Stream('Cool')
    if o.ext:
        s.ext = (o.extv, o.ext, lambda t_: t_[0] in ('W', 'O'))
    e, x = s.e, ool.e
    if o.prio:
        e('s_setprio 2')
    t = 224
    e(f'v_and_b32 v{t}, 15, v0', f'v_lshrrev_b32 v{t + 1}, 4, v0', f'v_lshlrev_b32 v{V_JLO}, 4, v0')
    l16, kq = f'v{t}', f'v{t + 1}'
    e(f'v_mov_b32 v{C_XV[2]}, v{H_XV}', f'v_mov_b32 v{C_XV[3]}, v{H_XV + 1}', f'v_mov_b32 v{C_XV[4]}, v{H_XV + 4}', f'v_mov_b32 v{C_WD}, v{H_WD}')
    img_addr(e, C_XV[0], sW4, 's67', 9, t + 8)
    e(f's_add_u32 s73, {sW4}, 4')
    img_addr(e, C_XV[1], 's73', 's67', 9, t + 8)
    for i in range(5):
        e(f'v_add_u32 v{C_XV[5 + i]}, 512, v{C_XV[i]}')
    e(f's_lshl_b32 s73, {sW4}, 4', 's_mov_b64 s[76:77], 0xffff', 's_lshl_b64 s[62:63], s[76:77], s73')
    e(f's_sub_u32 s61, {sM2}, {sM}', 's_lshl_b32 s61, s61, 15')
    mk_srd(s, SB, S_DBG, 256)
    e(f'v_or_b32 v{t + 8}, {sW4}, v0', f'v_cmp_eq_u32 vcc, 0, v{t + 8}', f'v_mov_b32 v{t + 9}, {OOB}', f'v_mov_b32 v{V_SP + 1}, 1', f'v_cndmask_b32 v{V_SP}, v{t + 9}, v{t + 8}, vcc')
    e(f'v_lshlrev_b32 v{t + 2}, 2, {l16}')
    e(f's_mov_b32 s48, {T0 & 0xffffffff}', f's_mov_b32 s49, {T0 >> 32}', f's_mov_b32 s50, {T1 & 0xffffffff}', f's_mov_b32 s51, {T1 >> 32}')
    e(f'v_lshrrev_b64 v[{t + 4}:{t + 5}], v{t + 2}, s[48:49]', f'v_lshrrev_b64 v[{t + 6}:{t + 7}], v{t + 2}, s[50:51]')
    e(f'v_and_b32 v{t + 4}, 7, v{t + 4}', f'v_and_b32 v{t + 6}, 7, v{t + 6}')
    e(f's_lshr_b32 s52, {sW4}, 1', f's_and_b32 s53, {sW4}, 1')
    e('s_lshl_b32 s54, s52, 2')
    for sh in range(2):
        z = f'v{t + 4 + 2 * sh}'
        e(f'v_add_u32 v{t + 8}, {sh}, {l16}', f'v_and_b32 v{t + 9}, 1, v{t + 8}', f'v_lshlrev_b32 v{t + 8}, 10, v{t + 8}',
          f'v_add_u32 v{t + 8}, {L_XB}, v{t + 8}')
        for ee in range(2):
            e(f'v_xor_b32 v{t + 10}, {ee}, v{t + 9}', f'v_lshl_add_u32 v{t + 10}, v{t + 10}, 7, v{t + 8}')
            for kh in range(2):
                e(f'v_or_b32 v{t + 11}, {4 * kh}, {kq}', f'v_xor_b32 v{t + 11}, v{t + 11}, {z}',
                  f'v_lshl_add_u32 v{V_XA1 + sh * 4 + ee * 2 + kh}, v{t + 11}, 4, v{t + 10}')
            e(f'v_or_b32 v{t + 11}, s54, {kq}', f'v_xor_b32 v{t + 11}, v{t + 11}, {z}',
              f'v_lshl_add_u32 v{V_XA2 + sh * 2 + ee}, v{t + 11}, 4, v{t + 10}')
    e(f'v_lshrrev_b32 v{t + 8}, 2, {l16}', f'v_and_b32 v{t + 9}, 3, {l16}')
    e(f'v_and_b32 v{t + 10}, 2, v{t + 8}', f'v_and_b32 v{t + 11}, 1, {kq}', f'v_lshl_add_u32 v{t + 10}, v{t + 11}, 2, v{t + 10}')
    e(f's_lshl_b32 s55, {sW4}, 1', f'v_lshrrev_b32 v{t + 11}, 1, v{t + 9}', f'v_add_u32 v{t + 11}, s55, v{t + 11}',
      f'v_xor_b32 v{t + 11}, v{t + 11}, v{t + 10}')
    e(f'v_lshlrev_b32 v{t + 12}, 10, {kq}', f'v_lshl_add_u32 v{t + 12}, v{t + 8}, 7, v{t + 12}', f'v_lshl_add_u32 v{t + 12}, v{t + 11}, 4, v{t + 12}',
      f'v_and_b32 v{t + 9}, 1, v{t + 9}', f'v_lshl_add_u32 v{V_WLO}, v{t + 9}, 3, v{t + 12}', f'v_add_u32 v{V_WHI}, {L_SLOT[1]}, v{V_WLO}')
    if PL.M:
        for i in range(8):
            e(f'v_subrev_u32 v{V_WB[2] + i}, {L_XB - L_X2}, v{V_XA1 + i}')
    e(f's_lshl_b32 s55, {sW4}, 2', f'v_add_u32 v{t + 8}, s55, {kq}', f'v_xor_b32 v{t + 8}, v{t + 8}, {l16}',
      f'v_lshlrev_b32 v{t + 9}, 8, {l16}', f'v_lshl_add_u32 v{V_D1}, v{t + 8}, 4, v{t + 9}')
    e('s_lshl_b32 s55, s53, 2', f'v_add_u32 v{t + 8}, s55, {kq}', f'v_and_b32 v{t + 9}, 7, {l16}', f'v_xor_b32 v{t + 8}, v{t + 8}, v{t + 9}',
      f'v_lshlrev_b32 v{t + 9}, 7, {l16}', f'v_lshl_add_u32 v{t + 8}, v{t + 8}, 4, v{t + 9}', 's_mul_i32 s55, s52, 16640', f'v_add_u32 v{V_D2}, s55, v{t + 8}')
    e(f'v_add_u32 v{V_JHI}, {77 * K}, v{V_JLO}')
    e(f's_lshl_b32 s55, {sN8}, 1', 's_add_u32 s55, s55, s53', 's_lshl_b32 s55, s55, 3', 's_add_u32 s55, s55, s52', 's_lshl_b32 s55, s55, 14',
      f's_add_u32 s55, s55, {WS_W2F}', f'v_add_u32 v{V_W2}, s55, v{V_JLO}')
    e(f's_lshl_b32 s55, {sW4}, 15', f's_add_u32 s55, s55, {WS_WOF}', f'v_add_u32 v{V_WO}, s55, v{V_JLO}')
    e(f's_lshl_b32 s55, {sM2}, 19', f's_lshl_b32 s56, {sW4}, 7', 's_add_u32 s55, s55, s56', f's_lshl_b32 s56, {sN8}, 12', 's_add_u32 s55, s55, s56')
    e(f'v_lshlrev_b32 v{t + 8}, 17, {kq}', f'v_lshl_add_u32 v{t + 8}, {l16}, 3, v{t + 8}', f'v_add_u32 v{V_OUT}, s55, v{t + 8}')
    for r in range(4):
        e(f's_mov_b32 s{56 + r}, {r * 32768}')

    def rd_x(sig, s_):
        d = sub(sig)
        sh, sp = divmod(s_, 8)
        ee = sp & 1
        a = V_XA1 + sh * 4 + ee * 2 + d['kh'] if d['ph'] == 1 else V_XA2 + sh * 2 + ee
        base = L_XB
        if d['xbuf'] == L_X2:
            a, base = a - V_XA1 + V_WB[2], L_X2
        s.lds(f'ds_read_b128 {vr(xreg(s_))}, v{a} offset:{d["xbuf"] - base + (sp - ee) * 128}', ('X', sig, s_), ('r', d['xbuf'], 17408))

    def rd_w(k, j, h):
        slot = PL.wslot[PL.fload[k]]
        a, off = (V_WLO, 0) if slot == 0 else (V_WHI, slot - L_SLOT[1])
        r = V_WB[k & 1] + 4 * j + 2 * h
        s.lds(f'ds_read_b64_tr_b16 {vr(r, 2)}, v{a} offset:{off + j * 4096 + h * 512}', ('W', k, j), ('r', slot + j * 4096, 4096))

    def ld_w2_pre(k, j):
        d = sub(k)
        return (lambda: e(f's_mov_b32 s48, {(d["c64"] * 32 + d["p"] * 8 + (j & 4)) * 1024}')) if j % 4 == 0 else None

    def ld_w2(k, j):
        d = sub(k)
        s.vmem(f'buffer_load_dwordx4 {vr(V_WB[d["bank"]] + 4 * j)}, v{V_W2}, {srd(SWS)}, s48 offen offset:{(j % 4) * 1024}{o.w2f if k < 40 else o.w2g}', ('W', k, j))

    def ld_wo_pre(tau, ka):
        return (lambda: e(f's_mov_b32 s49, {(tau * 8 + (ka & 4)) * 1024}')) if ka % 4 == 0 else None

    def ld_wo(tau, ka, so='s49'):
        s.vmem(f'buffer_load_dwordx4 {vr(wo_reg(tau, ka))}, v{V_WO}, {srd(SWS)}, {so} offen offset:{(ka % 4) * 1024} sc1', ('O', tau, ka))

    twins = []

    def dump(sig, b, src=None):
        src = src or sub(sig)['acc']
        a, off = (V_D1, L_ST + (7 - b) * 4096) if sub(sig)['ph'] == 1 else (V_D2, L_ST + b * 2080)
        s.lds(f'ds_write_b128 v{a}, {vr(src + 4 * b)} offset:{off}', ('D', sig, b), ('w', off, 4096 if sub(sig)['ph'] == 1 else 2048))
        if sub(sig)['ph'] == 2:
            s.ev.append(s.ev[-1].copy())
            e2, e1 = s.ev[-1], s.ev[-2]
            e2['lo'], e2['hi'] = off + 16640, off + 16640 + 2048
            twins.append((e1, e2))

    def jreg(k, ka):
        return (V_Z if k % 2 == 0 else V_Y) + 4 * ka

    def rd_j(k, ka):
        sl = L_J[k % NJ]
        a, off = (V_JLO, sl) if sl < 60 * K else (V_JHI, sl - 77 * K)
        s.lds(f'ds_read_b128 {vr(jreg(k, ka))}, v{a} offset:{off + ka * 1024}', ('A', k, ka), ('r', sl + ka * 1024, 1024))

    def dma_img(buf, p_, soff, flags, tag, pre):
        def item(i):
            def a():
                if i == 0 and pre:
                    pre()
                e(f's_add_u32 m0, {sHW1K}, {buf + 4096 * i}' if i < 4 else f's_mov_b32 m0, {buf + 16384}')
                if soff and i == 0:
                    e(f's_mov_b32 s52, {soff}')

            def b():
                if i == 4:
                    e('s_mov_b64 exec, s[62:63]')
                s.vmem(f'buffer_load_dwordx4 v{C_XV[5 * p_ + i]}, {srd(SA)}, {"s52" if soff else "0"} offen{flags} lds', tag, ('w', buf + 4096 * i, 4096 if i < 4 else 1024))
                if i == 4:
                    e('s_mov_b64 exec, -1')
            return a, b
        return [item(i) for i in range(5)]

    def dma_x(i):
        b, st = PL.IL[i]
        return dma_img(PL.ibuf[i], st & 1, (st >> 1) * 128, o.xf, ('dma', PL.ifirst[i] - 1), lambda: x_base(s, b))

    def dma_h(g):
        d = sub(32 + g)
        off = WS_H + (d['b'] * 4 + d['c64']) * (1 << 20)
        pre = (lambda: mk_srd(s, SA, S_WS, 1024000, add=off)) if g % 2 == 0 else None
        return dma_img(d['xbuf'], d['p'], 0, o.hf, ('img', g), pre)

    def dma_w(n):
        def item(j):
            return (lambda: e(f's_add_u32 m0, {sHW1K}, {PL.wslot[n] + j * 4096}', f's_mov_b32 s51, {w1_off(n, j)}'),
                    lambda: s.vmem(f'buffer_load_dwordx4 v{C_WD}, {srd(SW1)}, s51 offen{o.wf} lds', ('dma', PL.wfirst[n] - 1), ('w', PL.wslot[n] + j * 4096, 4096)))
        return [item(j) for j in range(PL.wset(n)['T'])]

    def window(win):
        dm = []
        for kind, i in PL.win.get(win, []):
            dm += dma_x(i) if kind == 'x' else dma_w(i)
        imgs = []
        if win == 30 and o.h0p == 30:
            imgs = []
        elif win == 31 and o.h0p == 30:
            imgs = [0, 1]
        elif 30 <= win <= 45:
            imgs = [win - 30] if (win - 30 < 8 or win > o.h1p + 1) else ([] if win <= o.h1p else list(range(8, win - 29)))
        for g in imgs:
            dm += dma_h(g)
        return dm

    def bslot(sig):
        T = sub(sig)['T']
        return 5 * T + o.bl if (sub(sig)['last'] and sub(sig)['ph'] == 2) else 4 * T - 1

    def win_slots(win):
        dm = window(win)
        if not dm or not cwin(o, win):
            return []
        T0_, T1_ = sub(win - 1)['T'], sub(win)['T']
        lo = bslot(win - 1) + 1
        slots = [(win - 1, i) for i in range(lo, 8 * T0_)] + [(win, i) for i in range(0, bslot(win) + 1)]
        span = len(slots) - 6 if win < 31 else (3 * T0_ - 2 if len(dm) <= 5 else len(slots) - 10)
        out = []
        for n_, (a, b) in enumerate(dm):
            i = (n_ * span) // len(dm)
            out.append((slots[i], lo if slots[i][0] == win - 1 else 0, [(1, a), (2, b)]))
        return out
    dsl = {}
    for win in range(1, 46):
        for (sg, i), lo, ab in win_slots(win):
            dsl.setdefault(sg, []).append((i, lo, ab))

    o.cnames = []
    cp = []

    def cflush():
        for i, r in cp:
            e(f'v_writelane_b32 v{(6, 7, 0)[i // 64]}, s{r}, {i % 64}')
        cp.clear()

    def cstamp(name):
        r = 96 + 2 * len(cp)
        e(f's_memtime s[{r}:{r + 1}]')
        cp.append((len(o.cnames), r))
        o.cnames.append(name)

    def bar(name):
        if o.diag:
            e('s_waitcnt lgkmcnt(%d)' % min(len(s.lg), 15))
            cflush()
            cstamp('a' + name)
        s.barrier(name)
        if o.diag:
            cstamp('r' + name)

    e('s_cmp_eq_u32 s2, 255', 's_cbranch_scc1 L_c_ge')
    x('L_c_ge:', 's_waitcnt vmcnt(0) lgkmcnt(0)', 's_barrier', 's_branch L_c_join')
    e('s_waitcnt lgkmcnt(0)')
    s.wait(vm=lambda t_: t_[0] == 'P0')
    if o.idle and 99 in o.idle_at:
        e(f's_sleep {o.idle}')
    bar('P0')
    for j in range(8):
        rd_w(0, j, 0)
        rd_w(0, j, 1)
        rd_x(0, j)
    carry = []
    for sig in range(48):
        d = sub(sig)
        T = d['T']
        s.c(f'--- sigma {sig} {d}')
        pos = {}
        load = {}

        def add(b, j, f, c_=1):
            pos.setdefault((b, j), []).append(f)
            load[b * T + j] = load.get(b * T + j, 0) + c_
        addi = lambda i, f, c_=1: add(i // T, i % T, f, c_)
        flex = []
        for i, s_ in enumerate(range(8, T + 7)):
            addi(3 * i, lambda s_=s_: rd_x(sig, s_))
        nz = (lambda k_: rd_x(sig + 1, k_)) if sig < 47 else (lambda k_: rd_j(0, k_))
        if sig + 1 < 32 and PL.wn[sig + 1] != PL.wn[sig]:
            i = 4 * T
            for j in range(8):
                if j < sub(sig + 1)['T']:
                    addi(i, lambda j=j: rd_w(PL.wn[sig + 1], j, 0))
                    addi(i + 1, lambda j=j: rd_w(PL.wn[sig + 1], j, 1))
                    i += 2
                addi(max(i, j * T + 1), lambda j=j: nz(j))
                i += 1
        else:
            for k_, (b, j) in enumerate([(4, 0), (4, 2), (4, 4), (5, 0), (5, 2), (5, 4), (6, 2), (7, 1)] if not (d['last'] and d['ph'] == 2) else
                                        [(5, 4), (5, 5), (5, 6), (6, 0), (6, 1), (6, 2), (6, 4), (7, 1)]):
                add(b, j, lambda k_=k_: nz(k_))

        def bankload(k, j, i, lo):
            if k < 48:
                if j >= sub(k)['T'] or (PL.rev2 and k in (40, 41, 42)):
                    return
                pre, f = ld_w2_pre(k, j), (lambda: ld_w2(k, j))
            else:
                pre, f = ld_wo_pre(k - 47, j), (lambda: ld_wo(k - 47, j))
            flex.append((i, lo, ([(1, pre)] if pre else []) + [(2, f)]))
        if o.s32 and sig in (29, 30):
            for j in range(4):
                bankload(32, 4 * (sig - 29) + j, 6 * j + 2 + (4 * T if sig == 29 else 0), 0)
        if not o.s32 and sig in (28, 29):
            for j in range(4):
                bankload(32, 4 * (sig - 28) + j, 6 * j + 3, 0)
        if sig >= 31:
            for j in range(2, 8):
                bankload(sig + 2, j, (j - 2) * (5 if T == 8 else 4) + 1, 0)
        if 30 <= sig < 47:
            for j in range(2):
                bankload(sig + 3, j, 7 * T + 1 + 3 * j, 7 * T + j)
        tau3 = lambda ka, i, lo: flex.append((i, lo, [(1, lambda: e(f's_mov_b32 s50, {(24 + (ka & 4)) * 1024}')), (2, lambda: ld_wo(3, ka, 's50'))]))
        if sig == 46:
            for ka in range(5):
                tau3(ka, 4 * T + 1 + 4 * ka, 0)
        if sig == 47:
            for ka in range(5, 8):
                flex.append((7 * T + 2 * (ka - 5), 7 * T + ka - 5, [(2, lambda ka=ka: ld_wo(3, ka, 's50'))]))
        w0 = 25 if PL.M else 23
        if sig in (w0, w0 + 2, w0 + 4):
            for i_, ka in enumerate(range(3 * (sig - w0) // 2, min(8, 3 * (sig - w0) // 2 + 3))):
                bankload(47, ka, (2 + i_) * T - 5, 0) if False else flex.append(((1 + i_) * T + 1, 0, ([(1, ld_wo_pre(0, ka))] if ka % 4 == 0 else []) + [(2, lambda ka=ka: ld_wo(0, ka))]))
        for i, lo, ab in dsl.get(sig, []):
            flex.append((i, lo, ab))
        if sig == 29:
            ops = []
            for i in range(5):
                r_ = C_XV[i]
                ops += [f'v_and_b32 v119, 0x1ff, v{r_}', f'v_ashrrev_i32 v{r_}, 9, v{r_}', f'v_lshl_add_u32 v{r_}, v{r_}, 7, v119', f'v_add_u32 v{r_}, s61, v{r_}',
                        f'v_add_u32 v{C_XV[5 + i]}, 128, v{r_}']
            for i, op in enumerate(ops):
                addi(2 + i, lambda op=op: e(op))
        if o.otouch and sig in (o.otouch, o.otouch + 2):
            def ot():
                mk_srd(s, SB, S_OUT, 32768000)
                e(f's_mov_b32 s50, {16384000 if sig > o.otouch else 0}', 's_mov_b64 exec, 1')
                s.vmem(f'buffer_load_dword v119, v{V_OUT}, {srd(SB)}, s50 offen', ('T',))
                e('s_mov_b64 exec, -1')
            add(3, 2, ot)
        if sig == 46:
            add(1, 0, lambda: mk_srd(s, SA, S_OUT, 16384000))
            add(2, 0, lambda: mk_srd(s, SW1, S_OUT, 16384000, add=16384000))
        redir = o.redir and sig == 15
        lazy = PL.M and sig == PL.eA
        if d['last']:
            if d['ph'] == 1:
                for b, (c_, j) in (((0, (3, 0)), (1, (3, 2))) if sig < 31 else ((0, (2, 2)), (1, (2, T - 1)))):
                    add(c_, j, lambda b=b: (e('s_nop 0'), dump(sig, b)))
            else:
                add(2, 1, lambda: dump(sig, 0))
                add(3, 1, lambda: dump(sig, 1))
            for b in range(2, 3 if redir else (2 if lazy and o.lazy else 7)):
                add(b + 1, T - 1, lambda b=b: (e('s_nop 0'), dump(sig, b)))
        if sig > 0 and sub(sig - 1)['last']:
            if PL.M and sig == PL.eA + 1:
                if o.lazy:
                    for b, (c_, j) in zip(range(2, 6), ((2, 2), (2, 4), (2, 6), (3, 0))):
                        add(c_, j, lambda b=b: dump(sig - 1, b))
            elif not (o.redir and sig == 16):
                add(0, T - 1, lambda: dump(sig - 1, 7))
        if PL.M and sig == PL.eA + 2:
            for b, (c_, j) in ((6, (2, 3)), (7, (2, 6))) if o.lazy else ((7, (2, 4)),):
                add(c_, j, lambda b=b: dump(PL.eA, b))
        if o.redir and sig == 17:
            for b, (c_, j) in zip(range(3, 8), ((2, 1), (2, 3), (2, 5), (2, 7), (3, 1))):
                add(c_, j, lambda b=b: dump(15, b, V_WB[2]))
        for i in [8 * T - 1, bslot(sig)] + [b * T + T - 2 for b in range(1, 8)]:
            load[i] = load.get(i, 0) + 1
        last = -1
        flex += carry
        carry = []
        for i, lo, parts in sorted(flex, key=lambda it: it[0]):
            i = max(i, lo, last + 1)
            if i > 8 * T - len(parts) or carry:
                assert sig < 47
                carry.append((len(carry) - 100, 0, parts))
                continue
            for n_, (c_, f) in enumerate(parts):
                k_, top = i, 8 * T - (len(parts) - n_)
                if o.pack:
                    while k_ < top and k_ < i + 6 and load.get(k_, 0) + c_ > 2:
                        k_ += 1
                    if load.get(k_, 0) + c_ > 2:
                        k_ = i
                addi(k_, f, c_)
                last, i = k_, k_ + 1
        if o.xb >= 0 and sig == o.f0p:
            addi(o.xb, lambda: bar('X'))
        for b in range(8):
            if o.cst >= 0 and sig in (o.cst, o.cst + 1):
                r_ = 64 + 2 * (8 * (sig - o.cst) + b)
                e(f's_memtime s[{r_}:{r_ + 1}]')
            for j in range(T):
                if d['ph'] == 1:
                    s.wait(lg=[('W', d['wk'], j), ('X', sig, b + j)])
                else:
                    s.wait(vm=[('W', sig, j)], lg=[('X', sig, b + j)])
                acc = vr(d['acc'] + 4 * b)
                cin = '0' if (d['first'] and j == 0) else acc
                dst = vr(V_WB[2] + 4 * b) if (redir and b >= 3 and j == T - 1) else acc
                if o.skip and j in (2, 4) and (T == 8 or j == 2 or b % 2):
                    if o.skip == 2:
                        e('s_nop 3')
                else:
                    e(f'v_mfma_f32_16x16x32_bf16 {dst}, {vr(V_WB[d["bank"]] + 4 * j)}, {vr(xreg(b + j))}, {cin}')
                s.nmfma += 1
                if b * T + j != bslot(sig):
                    for f in pos.get((b, j), []):
                        f()
                    continue
                for f in pos.get((b, j), []):
                    f()
                if sig == 0:
                    vmp = lambda t_: t_[0] == 'P0b'
                else:
                    vmp = lambda t_: (t_[0] == 'dma' and t_[1] <= sig) or t_ == ('img', sig - 31)
                need = (1 if d['ph'] == 1 else 3) if d['last'] else 7
                s.wait(vm=vmp, lg=lambda t_: t_[0] != 'D' or t_[2] <= need)
                if o.idle and sig in o.idle_at:
                    e(f's_sleep {o.idle}')
                bar(f'B{sig}')
                if sig == JOIN:
                    e('L_c_join:')
                if sig == o.arr - 1 and o.arrm:
                    if o.arrm == 1:
                        s.vmem(f'buffer_atomic_add v{V_SP + 1}, v{V_SP}, {srd(SB)}, 0 offen sc1', ('arr',))
                    else:
                        s.vmem(f'buffer_store_byte v{V_SP + 1}, v{V_SP}, {srd(SB)}, s2 offen sc1', ('arr',))
    e('s_nop 7')
    dump(47, 7)
    if o.jcp:
        e('s_setprio 2')

    def epi(k, r):
        a0 = V_ACC + 16 * (k % 2)
        return [lambda: e(f'v_cvt_pk_bf16_f32 v{V_PK + 2 * r}, v{a0 + r}, v{a0 + 4 + r}'),
                lambda: e(f'v_cvt_pk_bf16_f32 v{V_PK + 2 * r + 1}, v{a0 + 8 + r}, v{a0 + 12 + r}'),
                lambda: s.vmem(f'buffer_store_dwordx2 {vr(V_PK + 2 * r, 2)}, v{V_OUT}, {srd(SW1 if k // 8 else SA)}, s{56 + r} offen offset:{(k % 8) * 512}{o.of if k < o.ofk else o.of2}', ('S', k, r))]
    for k in range(16):
        s.c(f'--- joint step {k}')
        if k in o.jb:
            if o.idle and 48 + k in o.idle_at:
                e(f's_sleep {o.idle}')
            s.wait(lg=lambda t_: True)
            bar(f'J{k}')
        pos = {}
        if k < 15:
            for ka in range(8):
                pos.setdefault(2 * ka, []).append(lambda ka=ka: rd_j(k + 1, ka))
        if k > 0:
            fl = [f for r in range(4) for f in epi(k - 1, r)]
            for i, f in enumerate(fl):
                pos.setdefault(9 + (3 * i) // 2, []).append(f)
        for tau in range(4):
            if o.cst >= 48 and 0 <= k - (o.cst - 48) < 4:
                r_ = 64 + 2 * (4 * (k - (o.cst - 48)) + tau)
                e(f's_memtime s[{r_}:{r_ + 1}]')
            for ka in range(8):
                s.wait(vm=[('O', tau, ka)], lg=[('A', k, ka)])
                acc = vr(V_ACC + 16 * (k % 2) + 4 * tau)
                e(f'v_mfma_f32_16x16x32_bf16 {acc}, {vr(jreg(k, ka))}, {vr(wo_reg(tau, ka))}, {"0" if ka == 0 else acc}')
                s.nmfma += 1
                for f in pos.get(tau * 8 + ka, []):
                    f()
    e('s_nop 7')
    for r in range(4):
        for f in epi(15, r):
            f()
    if o.span:
        e('s_waitcnt vmcnt(0)', 's_memrealtime s[48:49]', 's_waitcnt lgkmcnt(0)', 'v_mov_b32 v2, s94', 'v_mov_b32 v3, s48', f's_lshl_b32 s48, s2, 2', f's_add_u32 s48, s48, {sW4}',
          's_lshl_b32 s48, s48, 3', f's_add_u32 s48, s48, {WS_DIAG}', 'v_mov_b32 v1, 0', 's_mov_b64 exec, 1', f'buffer_store_dwordx2 v[2:3], v1, {srd(SWS)}, s48 offen')
    if o.span == 2:
        mk_srd(s, SB, S_DBG, 256)
        e('s_not_b32 s50, s94', 'v_mov_b32 v2, s50', 's_sub_u32 s51, s48, s94', 's_nop 0')
        e(f'buffer_atomic_umax v2, v1, {srd(SB)}, 0 offen offset:8 sc1', f'buffer_atomic_umax v3, v1, {srd(SB)}, 0 offen offset:12 sc1',
          'v_sub_u32 v4, v3, v2', 'v_not_b32 v2, v2', 'v_sub_u32 v4, v3, v2', f'buffer_atomic_umax v4, v1, {srd(SB)}, 0 offen offset:16 sc1', f'buffer_atomic_umax v2, v1, {srd(SB)}, 0 offen offset:20 sc1')
    if o.diag:
        e('s_memtime s[48:49]', 's_waitcnt vmcnt(0)', 's_memtime s[50:51]', 's_waitcnt lgkmcnt(0)', 'v_mov_b32 v1, 0', 's_nop 1')
        cflush()
        if o.cst >= 0:
            for i in range(16):
                e(f'v_writelane_b32 v1, s{64 + 2 * i}, {i}')
        e('v_writelane_b32 v1, s48, 16', 'v_writelane_b32 v1, s50, 17')
        e(f's_lshl_b32 s48, s2, 2', f's_add_u32 s48, s48, {sW4}', 's_lshl_b32 s48, s48, 11', f's_add_u32 s48, s48, {WS_DIAG + 768}', f'v_lshrrev_b32 v2, 2, v{V_JLO}')
        for i, r in enumerate((1, 6, 7, 0)):
            e(f'buffer_store_dword v{r}, v2, {srd(SWS)}, s48 offen offset:{i * 256}')
    e('s_endpgm')
    for e1, e2 in twins:
        e2['done'] = e1['done']
    return s, ool


H_S1, H_HS, H_S2, H_L16, H_FLAG, H_HP, H_FP, H_C2, H_EB, H_TMP, H_ONE, H_JHI, H_ZERO, H_CP = 22, 26, 27, 31, 32, 33, 34, 35, 36, 37, 38, 39, 40, 41
H_STAMP = 42
H_PV = 45
H_JH2 = 46
H_ARR = 47
H_PIN = 16
H_ONES = 12
H_D, H_T, H_B, H_EA, H_WF = 48, 80, 96, 112, 128
H_EAB = [112, 2]
H_MX = 18
sGC1, sSLOW, sGEF, sSPIN = 's49', ('s52', 's73'), 's53', 's54'
sHPM = 's[56:57]'
sEX16 = 's[58:59]'
sRET = 's[60:61]'
sPM = 's[62:63]'
sFOFF = 's65'
sPD, sPT = 's64', 's48'
sBU = 's66'
sARS = 's79'
sFL = 's72'
SPIN_LIMIT = 1 << 15


def gen_helper(o, p):
    s = Stream('H')
    s.vm = list(p.vm)
    s.ev = [dict(e_, kind='r') for e_ in p.ev]
    s.open = {id(e_['tag']): e_ for e_ in s.ev}
    o.hentry = list(s.ev)
    s.ev = []
    e = s.e
    ool = Stream('Hool')
    x = ool.e
    nstamp = [0]
    cur = ['P0']
    pend = []

    def flush_stamps():
        if pend:
            s.drain(vm=False)
            for i, r in pend:
                e(f'v_writelane_b32 v{H_STAMP + i // 64}, s{r}, {i % 64}')
            pend.clear()

    def stamp(name, real=False):
        if o.diag and nstamp[0] < 192:
            i = nstamp[0]
            o.names.append(name)
            if len(pend) >= 4:
                flush_stamps()
            r = 84 + 2 * len(pend)
            e(f's_memrealtime s[{r}:{r + 1}]' if real else f's_memtime s[{r}:{r + 1}]')
            pend.append((i, r))
            nstamp[0] += 1

    def bar(name, vmp=None, lgp=None):
        s.wait(vm=vmp or (lambda t_: t_[0] != cur[0]), lg=lgp or (lambda t_: True))
        s.barrier(name)

    def vm(line, kind, mem=None):
        s.vmem(line, (cur[0], kind), mem)

    o.names = []
    stamp('rt0', True)
    stamp('t0')

    def dma_img(buf, av, soff, flags, kind, pre, idx=range(5)):
        def one(i):
            if i == 0 and pre:
                pre()
            if i < 4:
                e(f's_add_u32 m0, {sHW1K}, {buf + 4096 * i}')
                e(f's_mov_b32 s68, {soff}' if soff else 's_nop 0')
            else:
                e(f's_mov_b32 m0, {buf + 16384}', f's_mov_b64 exec, {sEX16}')
                if soff:
                    e(f's_mov_b32 s68, {soff}')
            vm(f'buffer_load_dwordx4 v{av + i}, {srd(SA)}, {"s68" if soff else "0"} offen{flags} lds', kind, ('w', buf + 4096 * i, 4096 if i < 4 else 1024))
            if i == 4:
                e('s_mov_b64 exec, -1')
        return [lambda i=i: one(i) for i in idx]

    def dma_x(i):
        b, st = PL.IL[i]
        return dma_img(PL.ibuf[i], H_XV + 5 * (st & 1), (st >> 1) * 128, o.xf, ('dl', PL.ifirst[i] - 1), lambda: x_base(s, b))

    def dma_w(n):
        def one(j):
            e(f's_add_u32 m0, {sHW1K}, {PL.wslot[n] + j * 4096}', f's_mov_b32 s68, {w1_off(n, j)}')
            vm(f'buffer_load_dwordx4 v{H_WD}, {srd(SW1)}, s68 offen{o.wf} lds', ('dl', PL.wfirst[n] - 1), ('w', PL.wslot[n] + j * 4096, 4096))
        return [lambda j=j: one(j) for j in range(PL.wset(n)['T'])]

    def now(fs):
        for f in fs:
            f()

    def pf_x(st, half):
        b, c64, p_ = st >> 3, (st >> 1) & 3, st & 1
        for i in (range(0, 5) if half == 0 else range(5, 9)):
            for hh in range(2):
                e(f's_load_dword s78, s[{74 + 2 * b}:{75 + 2 * b}], {i * 1024 + p_ * 512 + c64 * 128 + hh * 64}')

    t = 224
    sp, gam = f'v{E_SP}', f'v{E_GAM}'
    e(f's_lshl_b32 s73, {sW4}, 4', 's_mov_b64 s[76:77], 0xffff', f's_lshl_b64 {sEX16}, s[76:77], s73')
    cur[0] = 'P1'
    e('s_mov_b64 s[60:61], s[64:65]')
    e(f's_mov_b32 s68, {T0 & 0xffffffff}', f's_mov_b32 s69, {T0 >> 32}')
    for i in range(2, 4):
        e(f's_add_u32 s73, {sW4}, {4 * i}')
        img_addr(e, H_XV + i, 's73', 's67', 9, t + 3)
    for i in range(5):
        e(f'v_add_u32 v{H_XV + 5 + i}, 512, v{H_XV + i}')

    e(f's_lshl_b32 s68, {sNQ}, 2', f's_add_u32 s68, s68, {sW4}', 's_mul_i32 s68, s68, 18', 's_add_u32 s68, s68, s67', 's_sub_u32 s68, s68, 7',
      's_max_i32 s68, s68, 0', 's_min_i32 s68, s68, 15982', 's_lshl_b32 s68, s68, 9', f's_add_u32 s74, s{S_X}, s68', f's_addc_u32 s75, s{S_X + 1}, 0',
      's_add_u32 s76, s74, 8192000', 's_addc_u32 s77, s75, 0')
    l16, kq = f'v{t + 6}', f'v{t + 7}'
    e(f'v_and_b32 {l16}, 15, v0', f'v_lshrrev_b32 {kq}, 4, v0', f'v_lshlrev_b32 v{H_L16}, 4, v0')
    e(f'v_mov_b32 v{H_C2}, {fbits(GC2)}', f's_mov_b32 {sGC1}, {fbits(GC1)}', 's_mov_b32 s50, 0x05040100', 's_mov_b32 s51, 0x07060302')
    e(f'v_mov_b32 v{H_ONE}, 1', f'v_mov_b32 v{H_ZERO}, 0')
    flag_addr(e, H_FLAG, t + 8)
    mk_srd(s, SD, S_DBG, 256)
    cur[0] = 'P2'
    e(f's_lshl_b32 s68, s2, 2', f's_add_u32 s68, s68, {sW4}', f'v_lshlrev_b32 v{t + 8}, 3, {l16}')
    mk_srd(s, SB, S_W2, 1966080)
    e('s_cmp_lt_u32 s68, 480', 's_cbranch_scc1 L_prep_w2', 's_cmp_lt_u32 s68, 544', 's_cbranch_scc1 L_prep_fo')
    e(f's_mov_b32 {sPD}, {OOB}', f's_mov_b32 {sPT}, 0', f'v_mov_b32 v{t + 9}, {OOB}', 's_mov_b32 s70, 0', 's_mov_b32 s71, 0', 's_mov_b32 s72, 0', 's_mov_b32 s73, 0')
    e('L_prep_done:')
    x('L_prep_w2:')
    x('s_lshr_b32 s69, s68, 5', 's_lshr_b32 s70, s68, 2', 's_and_b32 s70, s70, 7', 's_and_b32 s55, s68, 3')
    x('s_lshl_b32 s72, s55, 5', 's_add_u32 s72, s72, s70', 's_lshl_b32 s72, s72, 4', 's_and_b32 s73, s69, 1', 's_lshl_b32 s73, s73, 3', 's_add_u32 s72, s72, s73',
      's_lshr_b32 s73, s69, 1', 's_add_u32 s72, s72, s73', 's_lshl_b32 s72, s72, 10', f's_add_u32 {sPD}, s72, {WS_W2F}', f's_mov_b32 {sPT}, 131072')
    x('s_lshl_b32 s72, s69, 17', 's_lshl_b32 s73, s70, 14', 's_add_u32 s72, s72, s73', 's_lshl_b32 s73, s55, 7', 's_add_u32 s70, s72, s73')
    x(f'v_lshl_add_u32 v{t + 9}, {kq}, 12, v{t + 8}', 's_mov_b32 s71, 512', 's_mov_b32 s72, 2048', 's_branch L_prep_done')
    x('L_prep_fo:')
    x('s_cmp_lt_u32 s68, 512', f's_cselect_b32 s{SB}, s{S_WF}, s{S_WO}', f's_cselect_b32 s{SB + 1}, s{S_WF + 1}, s{S_WO + 1}', f's_mov_b32 s{SB + 2}, 131072')
    x('s_sub_u32 s69, s68, 480', 's_and_b32 s70, s69, 7', 's_lshr_b32 s55, s69, 3')
    x('s_lshl_b32 s72, s55, 5', 's_add_u32 s72, s72, s70', 's_lshl_b32 s72, s72, 10', f's_add_u32 {sPD}, s72, {WS_WFF}', f's_mov_b32 {sPT}, 8192')
    x('s_lshr_b32 s72, s70, 1', 's_lshl_b32 s72, s72, 15', 's_and_b32 s73, s70, 1', 's_lshl_b32 s73, s73, 10', 's_add_u32 s72, s72, s73',
      's_and_b32 s73, s55, 3', 's_lshl_b32 s73, s73, 7', 's_add_u32 s70, s72, s73')
    x(f'v_lshl_add_u32 v{t + 9}, {kq}, 13, v{t + 8}', 's_mov_b32 s71, 2048', 's_mov_b32 s72, 512', 's_branch L_prep_done')
    e(f'v_mov_b32 v{H_PIN}, v{t + 9}', 's_mov_b32 s55, s70', 's_mov_b32 s65, s71', 's_mov_b32 s66, s72')

    def prep_a():
        for jj in range(8):
            if jj == 4:
                e('s_add_u32 s55, s55, s66')
            e('s_mov_b32 s73, s55' if jj % 4 == 0 else 's_add_u32 s73, s73, s65')
            vm(f'buffer_load_dwordx2 {vr(H_D + 2 * jj, 2)}, v{H_PIN}, {srd(SB)}, s73 offen', 'pin')
    e(f'v_or_b32 v{t + 8}, {sW4}, v0', f'v_cmp_eq_u32 vcc, 0, v{t + 8}', f'v_mov_b32 v{t + 9}, {OOB}', 's_nop 0', f'v_cndmask_b32 v{H_ARR}, v{t + 9}, v{t + 8}, vcc')
    for i in range(4):
        e(f'v_mov_b32 v{H_ONES + i}, -1')

    def resets(st_, tr):
        def fl():
            st_.e('s_mov_b64 exec, 3')
            tr(f'buffer_store_dword v{H_ZERO}, v{H_FLAG}, {srd(SWS)}, 0 offen sc1')
            st_.e('s_mov_b64 exec, -1')

        def ft(i):
            st_.e(f's_lshl_b32 s68, {sN8}, 8', f's_lshl_b32 s69, {sM2}, 3', 's_add_u32 s68, s68, s69', f's_add_u32 s68, s68, {sW4}', 's_lshl_b32 s68, s68, 10',
                  f's_add_u32 s68, s68, {WS_F + (i >> 1) * 2048 * K + (i & 1) * 4096}')
            tr(f'buffer_store_dwordx4 {vr(H_ONES)}, v{H_L16}, {srd(SWS)}, s68 offen sc1')
        return [fl] + [lambda i=i: ft(i) for i in range(4)]

    def arrive(st_, tr):
        tr(f'buffer_atomic_add v{H_ONE}, v{H_ARR}, {srd(SD)}, 0 offen sc1')

    def prep_b(tau):
        s.wait(vm=lambda t_: t_[1] == 'pin')
        for m_ in range(4):
            e(f'v_perm_b32 v{H_T + 4 * tau + m_}, v{H_D + 4 * m_ + 2 + (tau >> 1)}, v{H_D + 4 * m_ + (tau >> 1)}, {"s51" if tau & 1 else "s50"}')
        vm(f'buffer_store_dwordx4 {vr(H_T + 4 * tau)}, v{H_L16}, {srd(SWS)}, {sPD} offen sc1', 'pst')
        e(f's_add_u32 {sPD}, {sPD}, {sPT}')
    c8, row8 = gam, sp
    e(f's_and_b32 s70, {sW4}, 1', 's_lshl_b32 s71, s70, 3', f's_lshr_b32 s72, {sW4}, 1')
    for hh in range(2):
        e(f'v_lshlrev_b32 v{t + 9}, 1, {c8}', f'v_or_b32 v{t + 9}, {hh}, v{t + 9}', f'v_or_b32 v{t + 10}, s71, {row8}',
          f'v_xor_b32 v{t + 9}, v{t + 9}, v{t + 10}', f'v_lshlrev_b32 v{t + 10}, 8, v{t + 10}', f'v_lshl_add_u32 v{t + 9}, v{t + 9}, 4, v{t + 10}',
          's_xor_b32 s68, s72, 1', 's_lshl_b32 s68, s68, 12', f'v_add_u32 v{H_S1 + hh}, s68, v{t + 9}')
    e(f's_lshl_b32 s68, {sM}, 14', 's_lshl_b32 s69, s72, 7', 's_add_u32 s68, s68, s69', 's_lshl_b32 s69, s70, 13', 's_add_u32 s68, s68, s69',
      f'v_lshlrev_b32 v{t + 9}, 10, {row8}', f'v_lshl_add_u32 v{t + 9}, {c8}, 4, v{t + 9}', f'v_add_u32 v{H_HS}, s68, v{t + 9}')
    e(f's_mul_i32 s68, {sW4}, 2080', f'v_and_b32 v{t + 12}, 7, {l16}', f'v_lshl_add_u32 v{t + 11}, {l16}, 7, s68')
    for nh in range(2):
        e(f'v_or_b32 v{t + 13}, {4 * nh}, {kq}', f'v_xor_b32 v{t + 13}, v{t + 13}, v{t + 12}', f'v_lshl_add_u32 v{H_S2 + nh}, v{t + 13}, 4, v{t + 11}')
    e(f's_cmp_eq_u32 {sW4}, 0', f's_cselect_b64 {sPM}, -1, 0', f's_cselect_b32 s71, 0, {OOB}', f'v_mov_b32 v{H_CP}, s71' if o.arrm < 2 else f'v_lshl_add_u32 v{H_CP}, v0, 2, s71')
    e(f's_lshl_b32 s68, {sM2}, 1', 's_sub_u32 s68, s68, 1', f'v_add_u32 v{t + 9}, s68, {kq}', f'v_cmp_gt_u32 vcc, 64, v{t + 9}',
      f'v_lshlrev_b32 v{t + 9}, 9, v{t + 9}', f'v_lshrrev_b32 v{t + 10}, 2, {l16}', f'v_lshl_add_u32 v{t + 9}, v{t + 10}, 7, v{t + 9}', f'v_and_b32 v{t + 10}, 3, {l16}',
      f'v_lshl_add_u32 v{t + 9}, v{t + 10}, 2, v{t + 9}', f's_add_u32 s68, s71, {WS_HFL}', f'v_add_u32 v{H_HP}, s68, v{t + 9}',
      f's_and_b64 {sHPM}, vcc, {sPM}')
    e(f's_lshl_b32 s68, {sW4}, 8', f's_add_u32 s68, s68, {L_EB}', f'v_lshl_add_u32 v{H_EB}, {kq}, 6, s68')
    e(f's_lshl_b32 s68, {sW4}, 11', f'v_add_u32 v{H_JHI}, s68, v{H_L16}')
    e(f'v_add_u32 v{H_JH2}, {77 * K}, v{H_JHI}')
    e('s_lshr_b32 s68, s2, 3', f's_mul_i32 s68, s68, {o.arrn}', f's_lshr_b32 {sARS}, s68, 5')
    e('s_cmp_eq_u32 s2, 255', 's_cbranch_scc1 L_h_ge')

    x('L_h_ge:')
    mk_srd(ool, SB, S_G, 8192)
    x(f'v_lshlrev_b32 v{H_TMP}, 9, {l16}', f'v_lshl_add_u32 v{H_TMP}, {kq}, 4, v{H_TMP}')
    for ks in range(8):
        x(f'buffer_load_dwordx4 {vr(H_D + 4 * ks)}, v{H_TMP}, {srd(SB)}, 0 offen offset:{ks * 64}')
    x(f'v_lshlrev_b32 v{H_TMP}, 3, {l16}', f'v_lshl_add_u32 v{H_TMP}, {kq}, 12, v{H_TMP}')
    mk_srd(ool, SB, S_WG, 131072)
    x(f's_lshl_b32 s69, {sW4}, 7')
    for ks in range(8):
        x(f's_add_u32 s68, s69, {ks * 16384}')
        for jj in range(8):
            x(f'buffer_load_dwordx2 {vr(H_WF + 16 * ks + 2 * jj, 2)}, v{H_TMP}, {srd(SB)}, s68 offen offset:{jj * 512}')
    now(resets(ool, x))
    x('s_waitcnt vmcnt(0)', 's_barrier')
    arrive(ool, x)
    for ks in range(8):
        src = H_WF + 16 * ks
        for tau in range(4):
            for m_ in range(4):
                x(f'v_perm_b32 v{H_T + 4 * tau + m_}, v{src + 4 * m_ + 2 + (tau >> 1)}, v{src + 4 * m_ + (tau >> 1)}, {"s51" if tau & 1 else "s50"}')
        x('s_nop 1')
        for tau in range(4):
            acc = vr(H_B + 4 * tau)
            x(f'v_mfma_f32_16x16x32_bf16 {acc}, {vr(H_T + 4 * tau)}, {vr(H_D + 4 * ks)}, {"0" if ks == 0 else acc}')
    x('s_nop 7', f's_mov_b32 s68, {fbits(TC)}')
    for i_ in range(16):
        x(f'v_mul_f32 v{H_B + i_}, s68, v{H_B + i_}')
    for i_ in range(16):
        x(f'v_exp_f32 v{H_EA + i_}, v{H_B + i_}')
    x(f'v_max3_f32 v{H_T}, |v{H_B}|, |v{H_B + 1}|, 0')
    for i_ in range(2, 16, 2):
        x(f'v_max3_f32 v{H_T}, |v{H_B + i_}|, |v{H_B + i_ + 1}|, v{H_T}')
    x(f'v_cmp_lt_f32 vcc, {fbits(126.0)}, v{H_T}')
    x(f'v_and_b32 v{H_T + 1}, 15, v0', f'v_lshrrev_b32 v{H_T + 2}, 4, v0', f'v_lshlrev_b32 v{H_T + 1}, 10, v{H_T + 1}',
      f'v_lshl_add_u32 v{H_T + 1}, v{H_T + 2}, 6, v{H_T + 1}', f's_lshl_b32 s68, {sW4}, 8', f's_add_u32 s68, s68, {WS_EB}', f's_add_u32 s69, s68, {WS_GB - WS_EB}')
    for tau in range(4):
        x(f'buffer_store_dwordx4 {vr(H_EA + 4 * tau)}, v{H_T + 1}, {srd(SWS)}, s68 offen offset:{tau * 16} sc1')
        x(f'buffer_store_dwordx4 {vr(H_B + 4 * tau)}, v{H_T + 1}, {srd(SWS)}, s69 offen offset:{tau * 16} sc1')
    x('s_cmp_lg_u64 vcc, 0', 's_cselect_b32 s70, 1, 0', f'v_mov_b32 v{H_T + 3}, s70', f's_lshl_b32 s68, {sW4}, 2', f's_add_u32 s68, s68, {WS_EBF}',
      's_mov_b64 exec, 1', f'buffer_store_dword v{H_T + 3}, v{H_ZERO}, {srd(SWS)}, s68 offen sc1')
    x('s_waitcnt vmcnt(0)', f'buffer_atomic_add v{H_ONE}, v{H_ZERO}, {srd(SD)}, 0 offen offset:128 sc1', 's_mov_b64 exec, -1')
    x('L_ge_tail:')

    npoll = [0]

    def poll_issue(kind, b):
        if kind in ('cnt', 'ge'):
            line = f'buffer_load_dword v{H_PV}, v{H_CP}, {srd(SD)}, 0 offen offset:{128 if kind == "ge" else 0} sc1'
        else:
            e(f's_mov_b32 s67, {b * 131072}')
            line = f'buffer_load_dword v{H_PV}, v{H_HP if kind == "h" else H_FP}, {srd(SWS)}, s67 offen sc1'
        vm(line, 'poll')
        return kind, line

    def poll_check(kind, line):
        n = npoll[0]
        npoll[0] += 1
        s.wait(vm=lambda t_: t_[1] == 'poll')
        e(f's_mov_b32 {sSPIN}, 0', f'L_poll{n}:')
        e({'cnt': f'v_cmp_le_u32 vcc, 0x100, v{H_PV}' if o.arrm < 2 else f'v_cmp_eq_u32 vcc, 0x01010101, v{H_PV}', 'ge': f'v_cmp_le_u32 vcc, 4, v{H_PV}'}.get(kind, f'v_cmp_eq_u32 vcc, 1, v{H_PV}'))
        e('s_nop 1', f's_andn2_b64 s[68:69], {sHPM if kind == "h" else sPM}, vcc', f's_cbranch_scc1 L_spin{n}', f'L_pok{n}:')
        stamp(f'x_pok_{kind}{n}')
        if o.diag:
            o.names.append(f's_spin_{kind}{n}')
            e(f'v_writelane_b32 v{H_STAMP + nstamp[0] // 64}, {sSPIN}, {nstamp[0] % 64}')
            nstamp[0] += 1
        x(f'L_spin{n}:', f's_add_u32 {sSPIN}, {sSPIN}, 1', f's_cmp_gt_u32 {sSPIN}, {SPIN_LIMIT}', f's_cbranch_scc1 L_pok{n}', f's_cmp_eq_u32 {sSPIN}, 1',
          f's_cbranch_scc1 L_again{n}', f's_sleep {16 if kind in ("cnt", "ge") else o.slp}', f'L_again{n}:', line, 's_waitcnt vmcnt(0)', f's_branch L_poll{n}')

    Q = []

    def q(cost, *lines):
        Q.append((cost, lambda: e(*lines)))

    def qf(f, cost=0.0):
        Q.append((cost, f))

    done = set()

    def mark(name):
        f = lambda: done.add(name)
        f.jmark = name[1]
        qf(f)

    def run_q(budget, dm=()):
        dm = list(dm)
        avail = min(budget, sum(c_ for c_, _ in Q))
        gap = avail / (len(dm) + 1) if dm else 0
        used, nxt = 0.0, 0.0
        while True:
            while dm and used >= nxt:
                dm.pop(0)()
                nxt += gap
            if not (Q and (used < budget or Q[0][0] == 0)):
                break
            c_, f = Q.pop(0)
            f()
            used += c_
        now(dm)
        return used

    def gelu8(v0_, t0):
        for i in range(8):
            q(.5, f'v_mul_f32 v{t0 + i}, v{v0_ + i}, v{v0_ + i}')
        for i in range(8):
            q(.5, f'v_fma_f32 v{t0 + i}, v{t0 + i}, v{H_C2}, {sGC1}')
        for i in range(8):
            q(.5, f'v_mul_f32 v{t0 + i}, v{t0 + i}, v{v0_ + i}')
        for i in range(8):
            q(1, f'v_exp_f32 v{t0 + i}, v{t0 + i}')
        for i in range(8):
            q(.5, f'v_add_f32 v{t0 + i}, 1.0, v{t0 + i}')
        for i in range(8):
            q(1, f'v_rcp_f32 v{t0 + i}, v{t0 + i}')
        for i in range(8):
            q(.5, f'v_mul_f32 v{v0_ + i}, v{v0_ + i}, v{t0 + i}')

    def pack8(dst, v0_):
        for i in range(4):
            q(.5, f'v_cvt_pk_bf16_f32 v{dst + i}, v{v0_ + 2 * i}, v{v0_ + 2 * i + 1}')

    def epi1_read(b, us):
        for u_ in us:
            for hh in range(2):
                s.lds(f'ds_read_b128 {vr(H_D + 8 * u_ + 4 * hh)}, v{H_S1 + hh} offset:{L_ST + (3 - u_) * 8192}', ('e', u_), ('r', L_ST + (3 - u_) * 8192, 8192))
        if 0 in us:
            e(f's_add_u32 s68, {sNQ}, {4 * b}', 's_lshl_b32 s68, s68, 20')
            mk_srd(s, SB, S_WS, 1 << 20, add='s68')

    held = []

    def epi1_unit(u_, defer):
        qf(lambda: s.wait(lg=[('e', u_)]))
        gelu8(H_D + 8 * u_, H_T)
        pack8(H_B + 4 * u_, H_D + 8 * u_)
        st_ = lambda: vm(f'buffer_store_dwordx4 {vr(H_B + 4 * u_)}, v{H_HS}, {srd(SB)}, 0 offen offset:{u_ * 256}{o.hs}', 'st')
        qf((lambda: held.append(st_)) if defer else st_)

    def epi2_read(b, gg):
        for kh in range(2):
            for nh in range(2):
                s.lds(f'ds_read_b128 {vr(H_D + 16 * gg + 8 * kh + 4 * nh)}, v{H_S2 + nh} offset:{L_ST + kh * 16640 + gg * 8320}', ('e', gg), ('r', L_ST + kh * 16640 + gg * 8320, 8288))
        if gg == 0:
            e(f's_add_u32 s68, {sN8}, {8 * b}', 's_lshl_b32 s68, s68, 8', f's_lshl_b32 s69, {sM2}, 3', 's_add_u32 s68, s68, s69',
              f's_add_u32 s68, s68, {sW4}', 's_lshl_b32 s68, s68, 10', f's_add_u32 {sFOFF}, s68, {WS_F}')
        else:
            e(f's_add_u32 {sFOFF}, {sFOFF}, 4096')

    def epi2_unit(gg):
        qf(lambda: s.wait(lg=[('e', gg)]))
        v_ = H_D + 16 * gg
        for i in range(8):
            q(.5, f'v_add_f32 v{v_ + i}, v{v_ + i}, v{v_ + 8 + i}')
        gelu8(v_, H_EAB[1])
        pack8(v_ + 8, v_)
        for i in range(4):
            q(.5, f'v_min_u32 v{v_ + 8 + i}, -2, v{v_ + 8 + i}')
        qf(lambda: vm(f'buffer_store_dwordx4 {vr(v_ + 8)}, v{H_L16}, {srd(SWS)}, {sFOFF} offen sc1', 'st'))

    def flag_set(k):
        stamp(f'x_preflag{k}')
        s.wait(vm=lambda t_: t_[1] == 'st')
        stamp(f'x_flag{k}')
        e(f's_mov_b64 exec, {1 << k}')
        vm(f'buffer_store_dword v{H_ONE}, v{H_FLAG}, {srd(SWS)}, 0 offen sc1', 'flag')
        e('s_mov_b64 exec, -1')
        done.add(f'flag{k}')

    def ld_wf(i, st_=None):
        if st_:
            st_.e(f's_lshl_b32 s68, {sW4}, 15', f's_add_u32 s68, s68, {WS_WFF + i * 1024}', f'buffer_load_dwordx4 {vr(H_WF + 4 * i)}, v{H_L16}, {srd(SWS)}, s68 offen sc1')
            return
        e(f's_lshl_b32 s68, {sW4}, 15', f's_add_u32 s68, s68, {WS_WFF + i * 1024}')
        vm(f'buffer_load_dwordx4 {vr(H_WF + 4 * i)}, v{H_L16}, {srd(SWS)}, s68 offen sc1', 'wf')

    def dma_eb():
        def one(i):
            e(f's_lshl_b32 s68, {sW4}, 12', f's_add_u32 m0, s68, {L_EB + i * 1024}', f's_add_u32 s68, s68, {WS_EB + i * 1024}')
            vm(f'buffer_load_dwordx4 v{H_L16}, {srd(SWS)}, s68 offen sc1 lds', 'eb', ('w', L_EB, 16384))

        def fl():
            e(f's_lshl_b32 s68, {sW4}, 2', f's_add_u32 s68, s68, {WS_EBF}')
            vm(f'buffer_load_dword v{H_TMP}, v{H_ZERO}, {srd(SWS)}, s68 offen sc1', 'ebf')
        return [lambda i=i: one(i) for i in range(4)] + [fl]

    def get_ebf():
        s.wait(vm=lambda t_: t_[1] == 'ebf')
        e(f'v_readfirstlane_b32 {sGEF}, v{H_TMP}')

    def ld_f(b, st_=None):
        (st_ or s).e(f's_lshl_b32 s69, {sG}, 10')
        for ka in range(8):
            (st_ or s).e(f's_add_u32 s68, s69, {WS_F + (b * 8 + ka) * 256 * 1024}')
            line = f'buffer_load_dwordx4 {vr(H_D + 4 * ka)}, v{H_L16}, {srd(SWS)}, s68 offen' + (' sc1' if st_ or not o.fplain else '')
            if st_:
                st_.e(line)
            else:
                vm(line, 'f')

    PR = [80, 81, 82, 83, 74, 75, 76, 77]

    def probe_issue(st_, b):
        st_.e(f's_lshl_b32 s68, {sG}, 10', f's_add_u32 s68, s68, {WS_F + (b * 8 + 4) * 256 * K}', f's_add_u32 s70, s{S_WS}, s68', f's_addc_u32 s71, s{S_WS + 1}, 0')
        for ka in range(8):
            st_.e(f's_load_dword s{PR[ka]}, s[70:71], {(ka - 4) * 256 * K + 1020} glc')

    def probe_test(st_):
        st_.e('s_waitcnt lgkmcnt(0)')
        for ka in range(1, 8):
            st_.e(f's_max_u32 s{PR[0]}, s{PR[0]}, s{PR[ka]}')
        st_.e(f's_cmp_eq_u32 s{PR[0]}, -1')

    def f_try(b):
        probe_test(s)
        s.lg = []
        e(f's_cselect_b32 {sFL}, 0, 1', f's_cbranch_scc1 L_ftry{b}')
        ld_f(b, s)
        e(f'L_ftry{b}:')

    def f_force(b):
        e(f's_cmp_eq_u32 {sFL}, 0', f's_cbranch_scc1 L_fwait{b}', f'L_fgot{b}:')
        x(f'L_fwait{b}:', f's_mov_b32 {sSPIN}, 0', f'L_fw{b}:')
        probe_issue(ool, b)
        probe_test(ool)
        x(f's_cbranch_scc0 L_fwd{b}', f's_add_u32 {sSPIN}, {sSPIN}, 1', f's_cmp_gt_u32 {sSPIN}, {SPIN_LIMIT}', f's_cbranch_scc1 L_fwd{b}', 's_sleep 2', f's_branch L_fw{b}', f'L_fwd{b}:')
        ld_f(b, ool)
        x(f's_branch L_fgot{b}')

    def chk_f(b):
        if o.probe:
            s.drain(lg=False)
        s.wait(vm=lambda t_: t_[1] in ('f', 'wf'))
        e(f's_mov_b32 {sSPIN}, 0', f'L_fchk{b}:')
        e(f'v_max3_u32 v{H_MX}, v{H_D}, v{H_D + 1}, v{H_D + 2}')
        for i in range(3, 31, 2):
            e(f'v_max3_u32 v{H_MX}, v{H_D + i}, v{H_D + i + 1}, v{H_MX}')
        e(f'v_max_u32 v{H_MX}, v{H_D + 31}, v{H_MX}', f'v_cmp_eq_u32 vcc, -1, v{H_MX}', 's_nop 1', 's_cmp_lg_u64 vcc, 0', f's_cbranch_scc1 L_fspin{b}', f'L_fok{b}:')
        stamp(f'x_fok{b}')
        if o.diag:
            o.names.append(f's_spin_f{b}')
            e(f'v_writelane_b32 v{H_STAMP + nstamp[0] // 64}, {sSPIN}, {nstamp[0] % 64}')
            nstamp[0] += 1
        x(f'L_fspin{b}:', f's_add_u32 {sSPIN}, {sSPIN}, 1', f's_cmp_gt_u32 {sSPIN}, {SPIN_LIMIT}', f's_cbranch_scc1 L_fok{b}', f's_sleep {o.slp}')
        ld_f(b, ool)
        x('s_waitcnt vmcnt(0)', f's_branch L_fchk{b}')

    def fe(b):
        EA = H_EAB[b]
        qf(lambda: chk_f(b), 9)
        for tau in range(4):
            for ka in range(8):
                acc = vr(EA + 4 * tau)
                q(1, f'v_mfma_f32_16x16x32_bf16 {acc}, {vr(H_WF + 32 * tau + 4 * ka)}, {vr(H_D + 4 * ka)}, {"0" if ka == 0 else acc}')
        q(0, 's_nop 7', f's_mov_b32 s55, {fbits(TC)}')
        for i in range(16):
            q(.5, f'v_mul_f32 v{EA + i}, s55, v{EA + i}')
        q(.5, f'v_max3_f32 v{H_MX}, |v{EA}|, |v{EA + 1}|, 0')
        for i in range(2, 16, 2):
            q(.5, f'v_max3_f32 v{H_MX}, |v{EA + i}|, |v{EA + i + 1}|, v{H_MX}')
        q(16, f'v_cmp_lt_f32 vcc, {fbits(126.0)}, v{H_MX}', 's_nop 1', 's_cmp_lg_u64 vcc, 0', f's_cselect_b32 {sSLOW[b]}, 1, {sGEF}',
          f's_cmp_lg_u32 {sSLOW[b]}, 0', f's_cbranch_scc1 L_noexp{b}', *[f'v_exp_f32 v{EA + i}, v{EA + i}' for i in range(16)], f'L_noexp{b}:')

    def eb_read(k):
        for i in range(4):
            s.lds(f'ds_read_b128 {vr(H_B + 4 * i)}, v{H_EB} offset:{k * 1024 + i * 16}', ('eb', k), ('r', L_EB + k * 1024, 1024))

    def jstep(k, nxt):
        def head():
            s.wait(lg=[('eb', k)])
            e(f's_cmp_lg_u32 {sSLOW[k // 8]}, 0', f's_cbranch_scc1 L_js{k}')
            for i in range(16):
                e(f'v_fma_f32 v{H_T + i}, v{H_EAB[k // 8] + i}, v{H_B + i}, 1.0')
            e(f'L_jb{k}:')
            if nxt:
                eb_read(k + 1)
        qf(head, 8)
        x(f'L_js{k}:', f's_mov_b32 {sBU}, {WS_GB - L_EB + k * 1024}', f's_call_b64 {sRET}, L_slow{k // 8}', f's_branch L_jb{k}')
        sl = L_J[k % NJ]
        a, off = (H_JHI, sl) if sl < 60 * K else (H_JH2, sl - 77 * K)
        for hf in range(2):
            for i in range(8 * hf, 8 * hf + 8):
                q(1, f'v_rcp_f32 v{H_T + i}, v{H_T + i}')
            for i in range(8 * hf, 8 * hf + 8):
                q(.5, f'v_fma_f32 v{H_T + i}, v{H_T + i}, -2.0, 1.0')
            pack8(H_T + 8 * hf, H_T + 8 * hf)
            qf(lambda hf=hf: s.lds(f'ds_write_b128 v{a}, {vr(H_T + 8 * hf)} offset:{off + hf * 1024}', ('jw', k), ('w', sl, 8192)))
        mark(('j', k))

    for b in range(2):
        x(f'L_slow{b}:', 's_waitcnt lgkmcnt(0)')
        for i in range(4):
            x(f'buffer_load_dwordx4 {vr(H_B + 4 * i)}, v{H_EB}, {srd(SWS)}, {sBU} offen offset:{i * 16} sc1')
        x('s_waitcnt vmcnt(0)')
        for i in range(16):
            x(f'v_add_f32 v{H_T + i}, v{H_EAB[b] + i}, v{H_B + i}')
        for i in range(16):
            x(f'v_exp_f32 v{H_T + i}, v{H_T + i}')
        for i in range(16):
            x(f'v_add_f32 v{H_T + i}, 1.0, v{H_T + i}')
        x(f's_setpc_b64 {sRET}')

    def t_base(kind, arg):
        if kind == 'w2':
            e(f's_and_b32 s68, {sM2}, 3', 's_lshl_b32 s68, s68, 2', f's_add_u32 s68, s68, {sW4}', 's_lshl_b32 s68, s68, 10', f's_lshl_b32 s69, {sN8}, 18',
              's_add_u32 s68, s68, s69', f's_add_u32 s68, s68, {WS_W2F}')
        elif kind == 'wfo':
            e(f's_and_b32 s68, {sG}, 31', 's_lshl_b32 s68, s68, 2', f's_add_u32 s68, s68, {sW4}', 's_lshl_b32 s68, s68, 10', f's_add_u32 s68, s68, {arg}')
        else:
            d = sub(32 + arg)
            e(f's_lshl_b32 s68, {sN8}, 2', f's_add_u32 s68, s68, {sW4}', 's_mul_i32 s68, s68, 17', 's_lshr_b32 s68, s68, 2', 's_lshl_b32 s68, s68, 1',
              f's_lshl_b32 s69, {sM2}, 8', 's_add_u32 s68, s68, s69', f's_sub_u32 s68, s68, {7 - d["p"]}', 's_max_i32 s68, s68, 0', 's_lshl_b32 s68, s68, 7',
              f's_add_u32 s68, s68, {WS_H + (d["b"] * 4 + d["c64"]) * (1 << 20)}')
        e(f's_add_u32 s70, s{S_WS}, s68', f's_addc_u32 s71, s{S_WS + 1}, 0')

    def t_item(kind, arg, offs):
        def f():
            t_base(kind, arg)
            for x_ in offs:
                e(f's_load_dword s78, s[70:71], {x_}')
        return f
    TQ = {}

    def t_plan():
        k = o.cntp + 1
        def put(k_, it):
            TQ.setdefault(k_, []).append(it)
        if o.tf:
            put(k, t_item('wfo', WS_WFF, [i * 64 for i in range(16)]))
            k += 1
        if o.tw:
            for c32 in range(o.tw):
                for tau in range(2):
                    while k in o.tskip:
                        k += 1
                    put(k, t_item('w2', 0, [tau * 131072 + c32 * 16384 + i * 64 for i in range(16)]))
                    k += 1
        if o.to:
            put(o.to, t_item('wfo', WS_WOF, [i * 64 for i in range(16)]))
        if o.th:
            for g, k_ in ((2, 29), (3, 30), (4, 31), (5, 33), (6, 34), (7, 35), (11, 39), (12, 41), (13, 42), (14, 43)):
                if g < 8 or k_ > o.h1p:
                    put(k_, t_item('h', g, [r_ * 256 + hh * 64 for r_ in range(5) for hh in range(2)]))
    t_plan()

    e('s_branch L_hmain', ';SPLIT', 'L_hmain:', ';HOP')
    bar('P0', lambda t_: t_[0] == 'P0', lambda t_: False)
    wf_next = [0]
    early = resets(s, lambda l_: vm(l_, 'rst'))[:1] + [lambda tau=tau: prep_b(tau) for tau in range(4)]
    frst = resets(s, lambda l_: vm(l_, 'st'))[1:]
    last_early = [0]
    PF = [(PL.ifirst[k_] + i // 5, f's_load_dword s78, s[{74 + 2 * b_}:{75 + 2 * b_}], {i * 1024 + (st & 1) * 512 + (st >> 1) * 128 + hh * 64}')
          for k_, (b_, st) in enumerate(PL.IL) if k_ >= o.pf0 + (1 if PL.M else 0) for i in range(9) for hh in range(2)]
    pend_flag = []

    def late_flag(dm, at):
        if pend_flag and pend_flag[0][1] != cur[0]:
            assert not frst
            k_ = pend_flag.pop(0)[0]
            dm.insert(len(dm) if k_ == 0 else 0, lambda: flag_set(k_))
    polls = {o.cntp: ('cnt', 0), o.h0p: ('h', 0), o.h1p: ('h', 1), o.gep: ('ge', 0)}
    assert len(polls) == 4 and o.gep < 36

    for sig in range(48):
        cur[0] = f'B{sig}'
        s.c(f'--- interval {sig}')
        now(held)
        held.clear()
        P = poll_issue(*polls[sig]) if sig in polls else None
        if sig == o.f0p + 1:
            assert not Q
            if o.probe:
                e(f's_mov_b32 {sFL}, 0')
                f_force(0)
                q(o.f0w, 's_nop 0')
            fe(0)
            qf(lambda: eb_read(0))
            for k in range(8):
                jstep(k, True)
        if sig >= o.st0:
            for _ in range(o.stn):
                if early:
                    early.pop(0)()
        if sig >= o.fr0 and frst:
            frst.pop(0)()
        if sig == o.arr - 1:
            assert not early and last_early[0] < sig
        if early:
            last_early[0] = sig + 1
        if sig in (PL.eA + 1, 32):
            epi1_read(sig // 32, [0])
            epi1_unit(0, sig < 32 and o.defer)
        if PL.M and sig == PL.eA + 2:
            epi1_read(0, [1, 2])
            epi1_unit(1, o.defer)
            epi1_unit(2, o.defer)
        if sig in (PL.eA + 3 if PL.M else 18 if o.redir else 17, 33):
            us = [3] if (PL.M and sig < 32) else [1, 2, 3]
            epi1_read(sig // 32, us)
            for u_ in us:
                epi1_unit(u_, sig < 32 and o.defer)
            if sig < 32 and o.defer:
                qf(lambda: held.append(lambda: pend_flag.append((0, cur[0]))))
            else:
                qf(lambda k_=sig // 32: pend_flag.append((k_, cur[0])))
        if sig == 40:
            epi2_read(0, 0)
            epi2_unit(0)
        if sig == 41:
            qf(lambda: epi2_read(0, 1))
            epi2_unit(1)
            qf(lambda: stamp('x_fst0'))
        dm = []
        if not cwin(o, sig):
            for kind, i in PL.win.get(sig, []):
                dm += dma_x(i) if kind == 'x' else dma_w(i)
        for _ in range(o.wf14 if sig == 14 else o.wfn if sig < 28 else 6):
            if sig > o.cntp + 2 * o.tf and (sig % 2 == 1 or sig in (14, 30) or (PL.M and sig == 28)) and sig not in polls and not (PL.M and PL.eA < sig < PL.eA + 5) and wf_next[0] < 32:
                dm.append(lambda i=wf_next[0]: ld_wf(i))
                wf_next[0] += 1
        if 36 <= sig <= 38:
            dm += dma_eb()[2 * (sig - 36):2 * (sig - 36) + 2]
        if sig == 40:
            get_ebf()
        T_ = 4 * sub(sig)['T'] + (4 * sub(sig - 1)['T'] if sig else 0)
        nd = len(dm)
        late_flag(dm, 0)
        used = run_q(T_ - o.qm - nd * o.qd, dm)
        if pend_flag and T_ - nd * o.qd - used >= o.fnow:
            flag_set(pend_flag.pop(0)[0])
        if sig == o.pa:
            prep_a()
        if sig == o.f0p and not o.probe:
            assert not Q
            if o.xb >= 0:
                s.barrier('X')
            ld_f(0)
        if o.arr <= sig < o.arr + o.arrn and o.arrm == 0:
            assert o.arr + o.arrn - 1 <= JOIN and o.fr0 + 3 <= JOIN and o.arrm == 0
            e(f's_cmp_eq_u32 {sARS}, {sig - o.arr}', 's_cselect_b32 s68, 0, 0x40000000')
            vm(f'buffer_atomic_add v{H_ONE}, v{H_ARR}, {srd(SD)}, s68 offen sc1', 'arr')
        e(';HOP')
        if sig == 0:
            for i in range(o.tc, 5):
                e(f's_load_dword s82, s[80:81], {i * 16384}', f's_load_dword s82, s[80:81], {i * 16384 - 256}')
        tch = {0: 3} if o.pf == 1 else dict(zip(o.tw1, range(4))) if o.pf == 2 else {}
        if sig in tch:
            for i in range(4):
                e(f's_load_dword s82, s[60:61], {tch[sig] * 32768 + i * 64}', f's_load_dword s82, s[60:61], {tch[sig] * 32768 - 1024 + i * 64}')
        if o.pfx and sig >= o.pfs and sig not in tch and sig not in ((PL.eA, PL.eA + 1, PL.eA + 2) if PL.M else (15, 17) if o.redir else (15, 16)):
            n_ = 0
            while PF and n_ < o.pfn and PF[0][0] <= sig + o.pfd:
                if n_ == 0:
                    s.wait(lg=lambda t_: True)
                e(PF.pop(0)[1])
                n_ += 1
        if sig in TQ:
            s.wait(lg=lambda t_: True)
            now(TQ[sig])
        if P:
            if P[0] == 'h':
                assert f'flag{polls[sig][1]}' in done
            poll_check(*P)
        lgp = lambda t_: t_[0] == 'e' or (t_[0] == 'jw' and t_[1] <= 0 and sig == 47)
        if sig == 47:
            assert ('j', 0) in done
        vmp = lambda t_: (t_[1][0] == 'dl' and t_[1][1] <= sig) or (sig == o.arr - 1 and t_[1] in ('pst', 'rst')) or (sig == 40 and t_[1] == 'eb')
        bar(f'B{sig}', vmp, lgp)
        if o.diag == 2 and sig % 4 == 3:
            stamp(f'c_{sig}')
            stamp(f'r_{sig}', True)
        if sig == JOIN:
            e('L_h_join:')
            tail = Stream('tail')
            if o.cntp <= JOIN:
                tail.e(f's_mov_b32 {sSPIN}, 0', 'L_gec:', f'buffer_load_dword v{H_PV}, v{H_ZERO}, {srd(SD)}, 0 offen sc1', 's_waitcnt vmcnt(0)',
                       f'v_cmp_le_u32 vcc, 0x100, v{H_PV}', 's_nop 1', 's_cmp_lg_u64 vcc, 0', 's_cbranch_scc1 L_ged', f's_add_u32 {sSPIN}, {sSPIN}, 1',
                       f's_cmp_gt_u32 {sSPIN}, {SPIN_LIMIT}', 's_cbranch_scc1 L_ged', 's_sleep 16', 's_branch L_gec', 'L_ged:')
                for i in range(wf_next[0]):
                    ld_wf(i, tail)
            tail.e('s_branch L_h_join')
            i_ = ool.l.index('L_ge_tail:')
            ool.l[i_:i_ + 1] = tail.l
    assert wf_next[0] == 32
    for n_, k in enumerate(o.jb):
        cur[0] = f'J{k}'
        nxt = o.jb[n_ + 1] if n_ + 1 < len(o.jb) else 15
        s.c(f'--- joint interval {k}')
        if k == 0 and o.jprio:
            e('s_setprio 3')
        if n_ <= 1:
            print(f'j steps done before window {n_}:', sorted(d_[1] for d_ in done if d_[0] == 'j'), file=sys.stderr)
            cut = 0 if n_ == 0 else next((i + 1 for i, it in enumerate(Q) if it[1].__name__ == 'u0end'), 0)
            rest = Q[cut:]
            del Q[cut:]
            qf(lambda n_=n_: epi2_read(1, n_))
            epi2_unit(n_)
            if n_ == 0:
                def u0end():
                    pass
                qf(u0end)
            else:
                qf(lambda: (stamp('x_fst1'), done.add('fst1')))
                if o.jprio in (1, 3):
                    q(0, 's_setprio 0')
            Q.extend(rest)
            if n_ == 1:
                def after(jn):
                    return next(i + 1 for i, it in enumerate(Q) if getattr(it[1], 'jmark', None) == jn)
                if o.probe:
                    i_ = after(o.f1a)
                    Q.insert(i_ + o.f1c, (0, lambda: f_try(1)))
                    Q.insert(i_, (0, lambda: probe_issue(s, 1)))
                else:
                    Q.insert(after(o.f1a), (0, lambda: ld_f(1)))
                cut = after(o.f1b)
                rest = Q[cut:]
                del Q[cut:]
                if o.probe:
                    qf(lambda: f_force(1))
                if o.jprio == 3:
                    q(0, 's_setprio 3')
                fe(1)
                Q.extend(rest)
                for k_ in range(8, 16):
                    jstep(k_, k_ < 15)
                    if k_ == 8 and o.jprio == 3:
                        q(0, 's_setprio 0')
        if n_ == 0:
            run_q(o.qj0)
        while ('j', nxt) not in done:
            run_q(1)
        if n_:
            run_q(o.joff if k >= 7 else o.joff0)
        bar(f'J{k}', lambda t_: False, lambda t_: t_[0] == 'e' or (t_[0] == 'jw' and t_[1] <= nxt))
        if o.diag == 2 and k in (0, 7, 11):
            stamp(f'c_J{k}')
            stamp(f'r_J{k}', True)
    assert not Q
    if o.diag:
        flush_stamps()
        stamp('end')
        stamp('rt1', True)
        flush_stamps()
        e(f's_lshl_b32 s68, s2, 2', f's_add_u32 s68, s68, {sW4}', 's_lshl_b32 s68, s68, 11', f's_add_u32 s68, s68, {WS_DIAG}', f'v_lshlrev_b32 v{H_TMP}, 2, v0')
        for i in range(3):
            e(f'buffer_store_dword v{H_STAMP + i}, v{H_TMP}, {srd(SWS)}, s68 offen offset:{i * 256}')
    e('s_endpgm')
    return s, ool


def sizes_of(lines):
    import subprocess, re, os
    body = [l for l in lines]
    labels = set(re.findall(r'\bL[\w]+', '\n'.join(l.split(';')[0] for l in body)))
    defined = set(l.strip()[:-1] for l in body if l.strip().endswith(':'))
    txt = '.amdgcn_target "amdgcn-amd-amdhsa--gfx950"\n.text\n' + '\n'.join(body) + '\n' + ''.join(f'{l}:\n' for l in labels - defined) + 's_endpgm\n'
    open('_sz.s', 'w').write(txt)
    subprocess.run(['clang', '-x', 'assembler', '-target', 'amdgcn-amd-amdhsa', '-mcpu=gfx950', '-c', '_sz.s', '-o', '_sz.o'], check=True)
    d = subprocess.run(['llvm-objdump', '-d', '--mcpu=gfx950', '_sz.o'], capture_output=True, text=True).stdout
    ad = [int(m, 16) for m in re.findall(r'// ([0-9A-F]{12}):', d)]
    out, k = [], 0
    for l in body:
        t = l.split(';')[0].strip()
        if not t or t.endswith(':'):
            out.append(0)
        else:
            out.append(ad[k + 1] - ad[k])
            k += 1
    assert k == len(ad) - 1
    return out


def warm_pages(o, cl, cool, hl):
    isbar = lambda l: l.strip().startswith('s_barrier') and not l.strip().endswith('; X')
    base = cl + cool + hl
    sz = sizes_of(base)
    nc, h0 = len(cl), len(cl) + len(cool)
    hops = {}
    for it in range(30):
        out, pc, page, nb, sites, masked = [], 0, 1, 0, [], False
        for i, l in enumerate(base):
            if i == h0:
                nb = 0
            if i >= h0 and l.strip() == ';HOP':
                for pg in hops.get(nb, []):
                    out += ['    s_mov_b64 exec, 0', f'    s_branch L_pg{pg}', f'L_pb{pg}:', '    s_mov_b64 exec, -1']
                    pc += 12
            if sz[i] and pc >= page * 4096 and not masked:
                if i < nc or (i >= h0 and nb in o.busy):
                    out += [f'L_pg{page}:', f'    s_cbranch_execz L_pb{page}']
                    sites.append((page, nb, i >= h0))
                    pc += 4
                page += 1
            out.append(l)
            if l.strip().startswith('s_mov_b64 exec'):
                masked = not l.strip().endswith('-1')
            pc += sz[i]
            if isbar(l):
                nb += 1
        new = {}
        busy = o.busy
        cap = {sg + 1: c_ for sg, c_ in o.hopcap.items()} if PL.M else None
        for pg, b, own in sites:
            k = max(b - (3 if own else 2), 0)
            if cap:
                while k > 0 and len(new.get(k, [])) >= cap.get(k, 0):
                    k -= 1
            else:
                while k > 0 and (k in busy or (k < 31 and k % 2) or len(new.get(k, [])) >= (1 if k < 31 else 2)):
                    k -= 1
            new.setdefault(k, []).append(pg)
        if new == hops:
            print('pages', sites, 'hops', hops, file=sys.stderr)
            return out
        if it >= 5 and sorted(p_ for v_ in new.values() for p_ in v_) == sorted(p_ for v_ in hops.values() for p_ in v_):
            return out
        hops = new
    raise RuntimeError('no fixpoint')


def gen(o):
    global PL, JOIN
    JOIN = o.join
    PL = Plan(o.M, o.rev)
    PL.rev2 = o.rev2
    assert sub(47)['bank'] == 2
    if o.M:
        o.redir = 0
        o.busy = set([1] + list(range(PL.eA + 2, PL.eA + 7)) + [33, 34, 35, 36, 41, 42] + list(range(45, 70)))
    p = gen_entry(o)
    c, cool = gen_compute(o, p)
    h, ool = gen_helper(o, p)
    assert c.nbar == h.nbar, (c.nbar, h.nbar)
    errs = lint(p.l + c.l, 'C') + lint(p.l + h.l, 'H') + lint(ool.l, 'ool') + lint(cool.l, 'cool')
    for ec, eh in zip(c.ev, o.hentry):
        ec['done'] = max(ec['done'], eh['done'])
    races = lds_races([c, h])
    errs += races[:20] + lint_async(p.l + c.l, 'C')[:20] + lint_async(p.l + h.l, 'H')[:20]
    for x in errs:
        print('LINT', x, file=sys.stderr)
    hdr = open('standalone__seq2seq_rnn_t_joint__speech.s.ref').read().split('\n')
    hdr = [l for l in hdr if l.startswith(';') and '@launch' not in l]
    out = '\n'.join(hdr[:11]) + '\n'
    out += '; @launch grid=(256,1,1) block=(512,1,1) lds=163840\n'
    out += DOC
    out += f'''.amdgcn_target "amdgcn-amd-amdhsa--gfx950"
.text
.globl {KN}
.p2align 8
.type {KN},@function
{KN}:
'''
    cut = next(i for i, l in enumerate(h.l) if l.strip() == ';SPLIT')
    h1, h2 = h.l[:cut], h.l[cut + 1:]
    body = warm_pages(o, c.l, cool.l, h2) if o.warm else c.l + cool.l + h2
    out += p.text() + '\n'.join(h1) + '\n.p2align 12\nL_compute:\n' + '\n'.join(body) + '\n' + ool.text() + 'L_exit:\n    s_endpgm\n.p2align 8\n' + '    s_endpgm\n' * 2048
    out += f'''.section .rodata,"a"
.p2align 6
.amdhsa_kernel {KN}
  .amdhsa_next_free_vgpr 256
  .amdhsa_next_free_sgpr {102 if o.diag else 96}
  .amdhsa_accum_offset 256
  .amdhsa_group_segment_fixed_size 0
  .amdhsa_kernarg_size 80
  .amdhsa_user_sgpr_count 2
  .amdhsa_user_sgpr_kernarg_segment_ptr 1
  .amdhsa_system_sgpr_workgroup_id_x 1
.end_amdhsa_kernel
'''
    print(f'mfma={c.nmfma} barriers={c.nbar} lines C={len(c.l)} H={len(h.l)} ool={len(ool.l)} lint={len(errs)}', file=sys.stderr)
    return out


if __name__ == '__main__':
    o = Opt()
    outp = sys.argv[1]
    for a in sys.argv[2:]:
        k, v = a.split('=')
        assert hasattr(o, k), k
        if k in ('xf', 'wf', 'of', 'of2', 'hf', 'hs', 'w2f', 'w2g'):
            setattr(o, k, v.replace('_', ' '))
            continue
        setattr(o, k, tuple(int(y) for y in v.split(',') if y) if k in ('cw', 'jb', 'idle_at', 'tw1') else float(v) if '.' in v else int(v))
    txt = gen(o)
    if o.diag:
        txt += '; STAMPS ' + ' '.join(o.names) + '\n; CSTAMPS ' + ' '.join(o.cnames) + '\n'
    open(outp, 'w').write(txt)
    import subprocess, re
    subprocess.run(['clang', '-x', 'assembler', '-target', 'amdgcn-amd-amdhsa', '-mcpu=gfx950', '-c', outp, '-o', '_fin.o'], check=True)
    d = subprocess.run(['llvm-objdump', '-d', '-h', '_fin.o'], capture_output=True, text=True).stdout
    pc = int(re.search(r'([0-9a-f]+) <L_pc>', d).group(1), 16)
    size = int(re.search(r'\.text\s+([0-9a-f]+)', d).group(1), 16)
    end = int(re.search(r'([0-9a-f]+) <L_exit>', d).group(1), 16)
    assert pc + 5 * 16384 <= size and end <= pc + 5 * 16384, (pc, end, size)
    r = subprocess.run([sys.executable, 'cdna_unwritten_srd_check.py', outp], capture_output=True, text=True)
    assert r.returncode == 0, r.stdout + r.stderr
```

```python
import sys, struct
from stream import Stream, lint, lds_races, lint_async

KN = 'standalone__seq2seq_rnn_t_joint__speech_kernel'
K = 1024
OOB = 0x80000000
WS_H = 0
WS_F = 8 << 20
WS_W2F = 12 << 20
WS_WFF = 14 << 20
WS_WOF = WS_WFF + 128 * K
WS_EB = WS_WFF + 256 * K
WS_GB = WS_EB + 16 * K
WS_EBF = WS_GB + 16 * K
WS_W1F = 18 << 20
WS_HFL = 15 << 20
WS_FFL = WS_HFL + 256 * K
WS_DIAG = 16 << 20
WS_SIZE = 19 << 20
L_SLOT = [0, 60 * K, 92 * K]
L_ST = 28 * K
L_XB = 90 * K
L_X = [124 * K, 141 * K]
L_X2 = 43 * K
L_IMG = [124 * K, 107 * K, 90 * K, 141 * K]
L_EB = 61 * K
L_J = [0, 8 * K, 16 * K, 77 * K, 124 * K, 132 * K, 107 * K, 115 * K]
NJ = len(L_J)
ZT = [2, 0, 3, 1, 0, 2, 4, 3, 7, 4, 6, 5, 0, 6, 4, 7, 2]
T0 = sum(ZT[l] << (4 * l) for l in range(16))
T1 = sum(ZT[l + 1] << (4 * l) for l in range(16))
JOIN = 15


def fbits(x):
    return '0x%08x' % struct.unpack('<I', struct.pack('<f', x))[0]


GC1 = -2 * 0.7978845608028654 * 1.4426950408889634
GC2 = GC1 * 0.044715
TC = 2 * 1.4426950408889634


def vr(b, n=4):
    return f'v[{b}:{b + n - 1}]'


S_X, S_W1, S_W2, S_G, S_WF, S_WG, S_WO, S_OUT, S_DBG, S_WS = 4, 6, 8, 10, 12, 14, 16, 18, 20, 22
sWAVE, sW4, sM, sNQ, sM2, sN8, sG, sHW1K = 's24', 's25', 's26', 's27', 's28', 's29', 's30', 's31'
SA, SW1, SWS, SB, SD = 32, 36, 40, 44, 92


def srd(n):
    return f's[{n}:{n + 3}]'


def mk_srd(s, n, base, nrec, add=None):
    if add is None:
        s.e(f's_mov_b32 s{n}, s{base}', f's_mov_b32 s{n + 1}, s{base + 1}')
    else:
        s.e(f's_add_u32 s{n}, s{base}, {add}', f's_addc_u32 s{n + 1}, s{base + 1}, 0')
    s.e(f's_mov_b32 s{n + 2}, {nrec}', f's_mov_b32 s{n + 3}, 0x20000')


DOC = """;
; One persistent workgroup per CU (256 workgroups, 8 waves): waves 0-3 run the MFMA stream, waves 4-7 ("helpers") stage
; operands, run the activations and handle the hand-offs.  The code is generated (fully unrolled, barrier-delimited intervals).
;          ds_read; rows are interleaved (t = 8*l + block) so one x fragment serves up to 8 taps; the first half of the
;          weight sets is shared by both batches, then batch 0 finishes, then batch 1 walks the rest backwards (the lag
;          hides the hand-off latency, the turn-around reuses the sets that are still in registers / LDS).
;   conv2  128 rows x 32 channels per batch, K split over wave pairs; w2 comes re-laid-out (fragment order) from d_ws.
;   joint  16 rows x 8 u per batch: helpers compute fe = f @ w_f, j = tanh(fe + ge) = 1 - 2 / (1 + 2^(c*fe) * 2^(c*ge)),
;          c = 2*log2(e) (direct 2^(c*fe + c*ge) whenever either factor could leave the normal range), MFMA waves j @ w_o.
; Hand-offs through d_ws: write-through (sc1) stores; h tiles are announced by flags (reset in this launch, validity counted
; in d_debug), f tiles carry their own readiness (reset to all ones in this launch).  Every wait is bounded.
"""


class Opt:
    diag = 0
    prio = 0
    cst = -1
    pf = 2
    pfx = 1
    pf0 = 3
    pfn = 10
    fr0 = 10
    pfd = 7
    pa = 0
    f0x = 0
    eprio = 0
    hopcap = {2: 1, 6: 2, 10: 3, 12: 1, 30: 2, 31: 1, 36: 1, 37: 2, 38: 2, 39: 2, 42: 2, 43: 1}
    s32 = 1
    fnow = 30
    jcp = 1
    fplain = 1
    tw1 = (0, 2, 5, 9)
    xf = ' nt sc1'
    hf = ' sc1'
    hs = ' sc1'
    w2f = ' sc1'
    w2g = ' sc1'
    wf = ' sc1'
    of = ' nt sc1'
    of2 = ''
    ofk = 16
    join = 15
    tc = 3
    pfs = 1
    wf14 = 12
    st0 = 1
    stn = 1
    wfn = 4
    arrn = 3
    M = 8
    rev = 1
    rev2 = 1
    redir = 1
    lazy = 1
    defer = 0
    skip = 0
    idle = 0
    idle_at = (10,)
    xb = -1
    ext = 10
    extv = 56
    pack = 1
    tf = 0
    tw = 0
    to = 37
    th = 0
    tskip = (17, 31, 32)
    otouch = 0
    bl = 1
    jprio = 3
    jb = (0, 3, 5, 7, 8, 9, 10, 11, 12, 13, 14)
    f1a = 5
    f1b = 7
    joff0 = 8
    arrm = 0
    arr = 7
    cntp = 13
    gep = 35
    h0p = 30
    h1p = 38
    f0p = 43
    f1p = 3
    qm = 3
    qd = 2.0
    qj = 40
    qj0 = 48
    span = 0
    probe = 0
    f0w = 40
    f1c = 22
    joff = 14
    serp = 1
    warm = 1
    busy = set([1, 17, 19, 20, 21, 33, 34, 35, 36, 41, 42] + list(range(45, 70)))
    cw = (24, 26, 27)
    slp = 6


class Plan:
    def __init__(p, M, rev=0):
        p.M = M
        tail = list(range(M, 16))
        p.order = [(b, r) for r in range(M) for b in range(2)] + [(0, r) for r in tail] + [(1, r) for r in (tail[::-1] if rev else tail)]
        p.wn, p.fload, p.WL, p.wslot = [], [], [], []
        for sg, (b, r) in enumerate(p.order):
            if sg == 0 or r != p.order[sg - 1][1]:
                occ = {p.wslot[n]: n for n in range(len(p.WL))}
                hit = [n for n in occ.values() if p.WL[n] == r]
                if rev and hit:
                    p.fload.append(hit[0])
                else:
                    n = len(p.WL)
                    if not rev or n < 16:
                        slot = L_SLOT[(n + (1 if rev else M)) % 3]
                    else:
                        slot = p.wslot[(15, 14, 13, 16, 17)[n - 16]]
                    p.WL.append(r)
                    p.wslot.append(slot)
                    p.fload.append(n)
            p.wn.append(len(p.fload) - 1)
        p.wfirst = [p.wn.index(p.fload.index(n)) for n in range(len(p.WL))]
        p.wlast = [max(p.wn.index(f_) for f_, n_ in enumerate(p.fload) if n_ == n) for n in range(len(p.WL))]
        p.cyc = [2, p.wn[30] & 1, p.wn[31] & 1]
        p.IL = []
        for b, r in p.order:
            if (b, r >> 1) not in p.IL:
                p.IL.append((b, r >> 1))
        p.img = [p.IL.index((b, r >> 1)) for b, r in p.order]
        p.ifirst = [p.img.index(i) for i in range(16)]
        ilast = [31 - p.img[::-1].index(i) for i in range(16)]
        p.ibuf = [L_X[i & 1] for i in range(16)] if M == 0 else [(L_X[1], L_X[0], L_X2)[i % 3] for i in range(M + 1)] + [L_X[(i - M) & 1] for i in range(M + 1, 16)]
        assert M in (0, 8) and p.ibuf[14:] == L_X
        p.eA = p.order.index((0, 15))
        p.win = {}
        p.npi = 3 if M else 2
        for i in range(p.npi, 16):
            prev = max(k for k in range(i) if p.ibuf[k] == p.ibuf[i])
            w = ilast[prev] + 1 if i <= M else p.ifirst[i] - 2
            assert ilast[prev] + 1 <= w <= p.ifirst[i] - 2 or (i <= M and w <= p.ifirst[i] - 1), (i, w)
            p.win.setdefault(w, []).append(('x', i))
        for w, it in ([(0, ('w', 1)), (1, ('x', 2)), (1, ('w', 2))] if M else [(0, ('w', 2)), (0, ('x', 1))]):
            p.win.setdefault(w, []).append(it)
        for n in range(3, len(p.WL)):
            prev = max(k for k in range(n) if p.wslot[k] == p.wslot[n])
            w = p.wlast[prev] + 1 + (1 if M and n == 3 else 0)
            assert w <= p.wfirst[n] - 2
            p.win.setdefault(w, []).append(('w', n))

    def wset(p, n):
        r = p.WL[n]
        return dict(c64=r >> 2, p=(r >> 1) & 1, kh=r & 1, T=8 - ((r >> 1) & 1))


PL = None


def sub(sig):
    if sig < 32:
        b, r = PL.order[sig]
        c64, p, kh = r >> 2, (r >> 1) & 1, r & 1
        return dict(ph=1, b=b, c64=c64, p=p, kh=kh, T=8 - p, first=r == 0, last=sig in (PL.eA, 31),
                    xbuf=PL.ibuf[PL.img[sig]], bank=PL.wn[sig] & 1, wk=PL.wn[sig], acc=216 if (PL.M and b == 0) else 24)
    g = sig - 32
    b, r = divmod(g, 8)
    first, last, bank = r == 0, r == 7, PL.cyc[g % 3]
    if b and PL.rev2:
        r = 7 - r
        bank = PL.cyc[(15 - g) % 3]
    c64, p = r >> 1, r & 1
    return dict(ph=2, b=b, c64=c64, p=p, kh=None, T=8 - p, first=first, last=last,
                xbuf=L_IMG[g & 3], bank=bank, wk=sig, acc=24)


def cwin(o, win):
    return win >= 30 or win in o.cw


def w1_off(n, j):
    d = PL.wset(n)
    return (2 * j + d['p']) * 131072 + (64 * d['c64'] + 32 * d['kh']) * 512


def x_base(s_, b):
    if b:
        s_.e(f's_add_u32 s{SA}, s{S_X}, 8192000', f's_addc_u32 s{SA + 1}, s{S_X + 1}, 0')
    else:
        s_.e(f's_mov_b32 s{SA}, s{S_X}', f's_mov_b32 s{SA + 1}, s{S_X + 1}')


H_XV, H_HV, H_WD = 1, 11, 21
E_SP, E_GAM, E_S = 240, 241, 242


def img_addr(e, dst, lreg, rowbase, shift, t):
    e(f's_lshl_b32 s74, {lreg}, 2', 's_lshr_b64 s[76:77], s[68:69], s74', 's_and_b32 s76, s76, 7',
      f's_lshl_b32 s74, {lreg}, 4', f's_add_u32 s74, s74, {rowbase}', 's_sub_u32 s74, s74, 7')
    e(f'v_lshl_add_u32 v{t}, v{E_S}, 1, s74', f'v_xor_b32 v{t + 1}, s76, v{E_GAM}', f'v_lshlrev_b32 v{t + 1}, 4, v{t + 1}',
      f'v_lshl_add_u32 v{dst}, v{t}, {shift}, v{t + 1}')


def gen_entry(o):
    p = Stream('P')
    e = p.e
    e('s_cmp_ge_u32 s2, 256', 's_cbranch_scc1 L_exit')
    if o.span:
        e('s_memrealtime s[94:95]')
    e('s_load_dwordx4 s[4:7], s[0:1], 0', 's_load_dwordx8 s[8:15], s[0:1], 16', 's_load_dwordx8 s[16:23], s[0:1], 48')
    e('v_lshrrev_b32 v1, 6, v0', 's_and_b32 s70, s2, 7', 's_lshr_b32 s71, s2, 3', f'v_readfirstlane_b32 {sWAVE}, v1', 'v_and_b32 v0, 63, v0')
    if o.serp:
        e('s_bitcmp1_b32 s2, 0', 's_cselect_b32 s72, 0, 31', 's_xor_b32 s71, s71, s72')
    e('s_lshl_b32 s72, s70, 3', 's_lshr_b32 s73, s71, 2', f's_add_u32 {sM}, s72, s73', f's_and_b32 {sNQ}, s71, 3')
    e(f'v_lshrrev_b32 v{E_SP}, 3, v0', f'v_and_b32 v{E_GAM}, 7, v0', f's_and_b32 {sW4}, {sWAVE}, 3', f's_lshl_b32 {sHW1K}, {sW4}, 10')
    e(f's_mov_b32 s68, {T0 & 0xffffffff}', f's_mov_b32 s69, {T0 >> 32}', f's_and_b32 s78, {sW4}, 1', f'v_xor_b32 v{E_S}, s78, v{E_SP}')
    e(f's_lshr_b32 s79, {sWAVE}, 2', 's_xor_b32 s79, s79, 1', 's_lshl_b32 s75, s79, 3', f's_add_u32 s75, s75, {sW4}', f's_lshl_b32 s67, {sM}, 8')
    img_addr(e, H_XV, 's75', 's67', 9, 243)
    e('s_add_u32 s66, s75, 4')
    img_addr(e, H_XV + 1, 's66', 's67', 9, 243)
    e(f'v_and_b32 v243, 2, v{E_SP}', 's_lshl_b32 s78, s78, 2', 'v_or_b32 v243, s78, v243', f'v_xor_b32 v243, v243, v{E_GAM}',
      f's_lshl_b32 s73, {sW4}, 12', f's_lshl_b32 s74, {sNQ}, 7', 's_add_u32 s73, s73, s74',
      f'v_lshlrev_b32 v244, 9, v{E_SP}', 'v_lshl_add_u32 v244, v243, 4, v244', f'v_add_u32 v{H_WD}, s73, v244')
    e(f'v_lshlrev_b32 v245, 1, v{E_SP}', f'v_add_u32 v245, {256 - 7}, v245', f'v_xor_b32 v246, {ZT[16]}, v{E_GAM}', 'v_lshlrev_b32 v246, 4, v246',
      'v_add_u32 v243, s67, v245', f'v_lshl_add_u32 v{H_XV + 4}, v243, 9, v246', f's_lshl_b32 s74, {sWAVE}, 3', 's_mov_b64 s[76:77], 0xff', 's_lshl_b64 s[76:77], s[76:77], s74')
    e('s_lshl_b32 s75, s75, 10', 's_lshl_b32 s65, s79, 14', f's_add_u32 s65, s65, {sHW1K}', 's_lshl_b32 s64, s79, 20')
    e('s_waitcnt lgkmcnt(0)')
    mk_srd(p, SA, S_X, 8192000)
    mk_srd(p, SW1, S_W1, 1966080)
    def img(buf, tag):
        for i in range(2):
            e(f's_add_u32 m0, s75, {buf + 4096 * i}', 's_nop 0')
            p.vmem(f'buffer_load_dwordx4 v{H_XV + i}, {srd(SA)}, 0 offen lds', tag, ('w', buf, 17408) if i == 0 else None)
        e(f's_mov_b32 m0, {buf + 16384}', 's_mov_b64 exec, s[76:77]')
        p.vmem(f'buffer_load_dwordx4 v{H_XV + 4}, {srd(SA)}, 0 offen lds', tag)
        e('s_mov_b64 exec, -1')

    def wset(n, tag):
        for j in range(4):
            e(f's_add_u32 m0, s65, {PL.wslot[n] + j * 4096}', f's_add_u32 s66, s64, {w1_off(n, j)}')
            p.vmem(f'buffer_load_dwordx4 v{H_WD}, {srd(SW1)}, s66 offen lds', tag, ('w', PL.wslot[n], 32768) if j == 3 else None)
    img(PL.ibuf[0], ('P0', ('dl', -1)))
    wset(0, ('P0', ('dl', -1)))
    if PL.M:
        x_base(p, 1)
        img(PL.ibuf[1], ('P0b', ('dl', 0)))
    else:
        wset(1, ('P0b', ('dl', 0)))
    e('s_lshl_b32 s72, s70, 2', 's_lshr_b32 s73, s71, 3', f's_add_u32 {sM2}, s72, s73', f's_and_b32 {sN8}, s71, 7')
    e('s_lshl_b32 s72, s70, 5', f's_add_u32 {sG}, s72, s71')
    mk_srd(p, SWS, S_WS, WS_SIZE)
    e('s_getpc_b64 s[80:81]', 'L_pc:', 's_lshl_b32 s72, s71, 3', f's_add_u32 s72, s72, {sWAVE}', 's_lshl_b32 s72, s72, 6',
      's_add_u32 s80, s80, s72', 's_addc_u32 s81, s81, 0')
    for i in range(o.tc):
        e(f's_load_dword s82, s[80:81], {i * 16384}')
    if o.pf == 2:
        e(f's_and_b32 s72, {sM}, 7', 's_lshl_b32 s72, s72, 18', f's_lshl_b32 s73, {sWAVE}, 11', 's_add_u32 s72, s72, s73', f's_lshl_b32 s73, {sNQ}, 7', 's_add_u32 s72, s72, s73',
          f's_add_u32 s62, s{S_W1}, s72', f's_addc_u32 s63, s{S_W1 + 1}, 0')
        for i in range(15 - o.tc):
            e(f's_load_dword s82, s[62:63], {(i >> 3) * 16384 + ((i >> 1) & 3) * 512 + (i & 1) * 64}')
    if o.pf:
        e('s_lshl_b32 s72, s2, 3', f's_add_u32 s72, s72, {sWAVE}', 's_lshr_b32 s73, s72, 7', 's_min_u32 s73, s73, 14', 's_lshl_b32 s73, s73, 17', 's_and_b32 s72, s72, 127',
          's_lshl_b32 s72, s72, 8', 's_add_u32 s72, s72, s73', f's_add_u32 s64, s{S_W1}, s72', f's_addc_u32 s65, s{S_W1 + 1}, 0')
    if o.pf == 1:
        for c_ in range(3):
            for i in range(4):
                e(f's_load_dword s82, s[64:65], {c_ * 32768 + i * 64}')
    e(f's_cmp_lt_u32 {sWAVE}, 4', 's_cbranch_scc1 L_compute')
    return p


def flag_addr(e, dst, t):
    e(f's_lshl_b32 s68, {sM}, 2', f's_add_u32 s68, s68, {sNQ}', 's_lshl_b32 s68, s68, 5', f's_add_u32 s68, s68, {sW4}', 's_lshl_b32 s68, s68, 2', f's_add_u32 s68, s68, {WS_HFL}')
    e(f's_lshl_b32 s69, {sM2}, 3', f's_add_u32 s69, s69, {sN8}', 's_lshl_b32 s69, s69, 2', f's_add_u32 s69, s69, {sW4}', 's_lshl_b32 s69, s69, 7', f's_add_u32 s69, s69, {WS_FFL}')
    e(f'v_mov_b32 v{t}, s68', f'v_mov_b32 v{t + 1}, s69', 'v_cmp_gt_u32 vcc, 2, v0', f'v_and_b32 v{t + 2}, 1, v0', 's_nop 0',
      f'v_cndmask_b32 v{t}, v{t + 1}, v{t}, vcc', f'v_lshl_add_u32 v{dst}, v{t + 2}, 17, v{t}')


V_D2, V_WO, V_JLO, V_JHI, V_OUT = 1, 2, 3, 4, 5
V_XA2 = 8
V_XA1 = 12
V_WLO, V_WHI, V_D1, V_W2 = 20, 21, 22, 23
V_ACC = 24
V_Z = 56
V_Y = 88
C_XV = [248, 249, 250, 251, 252, 253, 254, 255, 116, 117]
C_WD = 118
V_WB = [120, 152, 184]
V_SP = 216
V_PK = V_WB[2] + 16


def wo_reg(tau, ka):
    if tau < 3:
        return (V_SP, V_WB[sub(45)['bank']], V_WB[sub(46)['bank']])[tau] + 4 * ka
    return (12, 16, 20, 248, 252, V_WB[2], V_WB[2] + 4, V_WB[2] + 8)[ka]


def xreg(s_):
    return V_Z + 4 * s_ if s_ < 8 else V_Y + 4 * (s_ - 8)


def gen_compute(o, p):
    s = Stream('C')
    s.vm = list(p.vm)
    s.ev = [dict(e_) for e_ in p.ev]
    s.open = {id(e_['tag']): e_ for e_ in s.ev}
    ool = Stream('Cool')
    if o.ext:
        s.ext = (o.extv, o.ext, lambda t_: t_[0] in ('W', 'O'))
    e, x = s.e, ool.e
    if o.prio:
        e('s_setprio 2')
    t = 224
    e(f'v_and_b32 v{t}, 15, v0', f'v_lshrrev_b32 v{t + 1}, 4, v0', f'v_lshlrev_b32 v{V_JLO}, 4, v0')
    l16, kq = f'v{t}', f'v{t + 1}'
    e(f'v_mov_b32 v{C_XV[2]}, v{H_XV}', f'v_mov_b32 v{C_XV[3]}, v{H_XV + 1}', f'v_mov_b32 v{C_XV[4]}, v{H_XV + 4}', f'v_mov_b32 v{C_WD}, v{H_WD}')
    img_addr(e, C_XV[0], sW4, 's67', 9, t + 8)
    e(f's_add_u32 s73, {sW4}, 4')
    img_addr(e, C_XV[1], 's73', 's67', 9, t + 8)
    for i in range(5):
        e(f'v_add_u32 v{C_XV[5 + i]}, 512, v{C_XV[i]}')
    e(f's_lshl_b32 s73, {sW4}, 4', 's_mov_b64 s[76:77], 0xffff', 's_lshl_b64 s[62:63], s[76:77], s73')
    e(f's_sub_u32 s61, {sM2}, {sM}', 's_lshl_b32 s61, s61, 15')
    mk_srd(s, SB, S_DBG, 256)
    e(f'v_or_b32 v{t + 8}, {sW4}, v0', f'v_cmp_eq_u32 vcc, 0, v{t + 8}', f'v_mov_b32 v{t + 9}, {OOB}', f'v_mov_b32 v{V_SP + 1}, 1', f'v_cndmask_b32 v{V_SP}, v{t + 9}, v{t + 8}, vcc')
    e(f'v_lshlrev_b32 v{t + 2}, 2, {l16}')
    e(f's_mov_b32 s48, {T0 & 0xffffffff}', f's_mov_b32 s49, {T0 >> 32}', f's_mov_b32 s50, {T1 & 0xffffffff}', f's_mov_b32 s51, {T1 >> 32}')
    e(f'v_lshrrev_b64 v[{t + 4}:{t + 5}], v{t + 2}, s[48:49]', f'v_lshrrev_b64 v[{t + 6}:{t + 7}], v{t + 2}, s[50:51]')
    e(f'v_and_b32 v{t + 4}, 7, v{t + 4}', f'v_and_b32 v{t + 6}, 7, v{t + 6}')
    e(f's_lshr_b32 s52, {sW4}, 1', f's_and_b32 s53, {sW4}, 1')
    e('s_lshl_b32 s54, s52, 2')
    for sh in range(2):
        z = f'v{t + 4 + 2 * sh}'
        e(f'v_add_u32 v{t + 8}, {sh}, {l16}', f'v_and_b32 v{t + 9}, 1, v{t + 8}', f'v_lshlrev_b32 v{t + 8}, 10, v{t + 8}',
          f'v_add_u32 v{t + 8}, {L_XB}, v{t + 8}')
        for ee in range(2):
            e(f'v_xor_b32 v{t + 10}, {ee}, v{t + 9}', f'v_lshl_add_u32 v{t + 10}, v{t + 10}, 7, v{t + 8}')
            for kh in range(2):
                e(f'v_or_b32 v{t + 11}, {4 * kh}, {kq}', f'v_xor_b32 v{t + 11}, v{t + 11}, {z}',
                  f'v_lshl_add_u32 v{V_XA1 + sh * 4 + ee * 2 + kh}, v{t + 11}, 4, v{t + 10}')
            e(f'v_or_b32 v{t + 11}, s54, {kq}', f'v_xor_b32 v{t + 11}, v{t + 11}, {z}',
              f'v_lshl_add_u32 v{V_XA2 + sh * 2 + ee}, v{t + 11}, 4, v{t + 10}')
    e(f'v_lshrrev_b32 v{t + 8}, 2, {l16}', f'v_and_b32 v{t + 9}, 3, {l16}')
    e(f'v_and_b32 v{t + 10}, 2, v{t + 8}', f'v_and_b32 v{t + 11}, 1, {kq}', f'v_lshl_add_u32 v{t + 10}, v{t + 11}, 2, v{t + 10}')
    e(f's_lshl_b32 s55, {sW4}, 1', f'v_lshrrev_b32 v{t + 11}, 1, v{t + 9}', f'v_add_u32 v{t + 11}, s55, v{t + 11}',
      f'v_xor_b32 v{t + 11}, v{t + 11}, v{t + 10}')
    e(f'v_lshlrev_b32 v{t + 12}, 10, {kq}', f'v_lshl_add_u32 v{t + 12}, v{t + 8}, 7, v{t + 12}', f'v_lshl_add_u32 v{t + 12}, v{t + 11}, 4, v{t + 12}',
      f'v_and_b32 v{t + 9}, 1, v{t + 9}', f'v_lshl_add_u32 v{V_WLO}, v{t + 9}, 3, v{t + 12}', f'v_add_u32 v{V_WHI}, {L_SLOT[1]}, v{V_WLO}')
    if PL.M:
        for i in range(8):
            e(f'v_subrev_u32 v{V_WB[2] + i}, {L_XB - L_X2}, v{V_XA1 + i}')
    e(f's_lshl_b32 s55, {sW4}, 2', f'v_add_u32 v{t + 8}, s55, {kq}', f'v_xor_b32 v{t + 8}, v{t + 8}, {l16}',
      f'v_lshlrev_b32 v{t + 9}, 8, {l16}', f'v_lshl_add_u32 v{V_D1}, v{t + 8}, 4, v{t + 9}')
    e('s_lshl_b32 s55, s53, 2', f'v_add_u32 v{t + 8}, s55, {kq}', f'v_and_b32 v{t + 9}, 7, {l16}', f'v_xor_b32 v{t + 8}, v{t + 8}, v{t + 9}',
      f'v_lshlrev_b32 v{t + 9}, 7, {l16}', f'v_lshl_add_u32 v{t + 8}, v{t + 8}, 4, v{t + 9}', 's_mul_i32 s55, s52, 16640', f'v_add_u32 v{V_D2}, s55, v{t + 8}')
    e(f'v_add_u32 v{V_JHI}, {77 * K}, v{V_JLO}')
    e(f's_lshl_b32 s55, {sN8}, 1', 's_add_u32 s55, s55, s53', 's_lshl_b32 s55, s55, 3', 's_add_u32 s55, s55, s52', 's_lshl_b32 s55, s55, 14',
      f's_add_u32 s55, s55, {WS_W2F}', f'v_add_u32 v{V_W2}, s55, v{V_JLO}')
    e(f's_lshl_b32 s55, {sW4}, 15', f's_add_u32 s55, s55, {WS_WOF}', f'v_add_u32 v{V_WO}, s55, v{V_JLO}')
    e(f's_lshl_b32 s55, {sM2}, 19', f's_lshl_b32 s56, {sW4}, 7', 's_add_u32 s55, s55, s56', f's_lshl_b32 s56, {sN8}, 12', 's_add_u32 s55, s55, s56')
    e(f'v_lshlrev_b32 v{t + 8}, 17, {kq}', f'v_lshl_add_u32 v{t + 8}, {l16}, 3, v{t + 8}', f'v_add_u32 v{V_OUT}, s55, v{t + 8}')
    for r in range(4):
        e(f's_mov_b32 s{56 + r}, {r * 32768}')

    def rd_x(sig, s_):
        d = sub(sig)
        sh, sp = divmod(s_, 8)
        ee = sp & 1
        a = V_XA1 + sh * 4 + ee * 2 + d['kh'] if d['ph'] == 1 else V_XA2 + sh * 2 + ee
        base = L_XB
        if d['xbuf'] == L_X2:
            a, base = a - V_XA1 + V_WB[2], L_X2
        s.lds(f'ds_read_b128 {vr(xreg(s_))}, v{a} offset:{d["xbuf"] - base + (sp - ee) * 128}', ('X', sig, s_), ('r', d['xbuf'], 17408))

    def rd_w(k, j, h):
        slot = PL.wslot[PL.fload[k]]
        a, off = (V_WLO, 0) if slot == 0 else (V_WHI, slot - L_SLOT[1])
        r = V_WB[k & 1] + 4 * j + 2 * h
        s.lds(f'ds_read_b64_tr_b16 {vr(r, 2)}, v{a} offset:{off + j * 4096 + h * 512}', ('W', k, j), ('r', slot + j * 4096, 4096))

    def ld_w2_pre(k, j):
        d = sub(k)
        return (lambda: e(f's_mov_b32 s48, {(d["c64"] * 32 + d["p"] * 8 + (j & 4)) * 1024}')) if j % 4 == 0 else None

    def ld_w2(k, j):
        d = sub(k)
        s.vmem(f'buffer_load_dwordx4 {vr(V_WB[d["bank"]] + 4 * j)}, v{V_W2}, {srd(SWS)}, s48 offen offset:{(j % 4) * 1024}{o.w2f if k < 40 else o.w2g}', ('W', k, j))

    def ld_wo_pre(tau, ka):
        return (lambda: e(f's_mov_b32 s49, {(tau * 8 + (ka & 4)) * 1024}')) if ka % 4 == 0 else None

    def ld_wo(tau, ka, so='s49'):
        s.vmem(f'buffer_load_dwordx4 {vr(wo_reg(tau, ka))}, v{V_WO}, {srd(SWS)}, {so} offen offset:{(ka % 4) * 1024} sc1', ('O', tau, ka))

    twins = []

    def dump(sig, b, src=None):
        src = src or sub(sig)['acc']
        a, off = (V_D1, L_ST + (7 - b) * 4096) if sub(sig)['ph'] == 1 else (V_D2, L_ST + b * 2080)
        s.lds(f'ds_write_b128 v{a}, {vr(src + 4 * b)} offset:{off}', ('D', sig, b), ('w', off, 4096 if sub(sig)['ph'] == 1 else 2048))
        if sub(sig)['ph'] == 2:
            s.ev.append(s.ev[-1].copy())
            e2, e1 = s.ev[-1], s.ev[-2]
            e2['lo'], e2['hi'] = off + 16640, off + 16640 + 2048
            twins.append((e1, e2))

    def jreg(k, ka):
        return (V_Z if k % 2 == 0 else V_Y) + 4 * ka

    def rd_j(k, ka):
        sl = L_J[k % NJ]
        a, off = (V_JLO, sl) if sl < 60 * K else (V_JHI, sl - 77 * K)
        s.lds(f'ds_read_b128 {vr(jreg(k, ka))}, v{a} offset:{off + ka * 1024}', ('A', k, ka), ('r', sl + ka * 1024, 1024))

    def dma_img(buf, p_, soff, flags, tag, pre):
        def item(i):
            def a():
                if i == 0 and pre:
                    pre()
                e(f's_add_u32 m0, {sHW1K}, {buf + 4096 * i}' if i < 4 else f's_mov_b32 m0, {buf + 16384}')
                if soff and i == 0:
                    e(f's_mov_b32 s52, {soff}')

            def b():
                if i == 4:
                    e('s_mov_b64 exec, s[62:63]')
                s.vmem(f'buffer_load_dwordx4 v{C_XV[5 * p_ + i]}, {srd(SA)}, {"s52" if soff else "0"} offen{flags} lds', tag, ('w', buf + 4096 * i, 4096 if i < 4 else 1024))
                if i == 4:
                    e('s_mov_b64 exec, -1')
            return a, b
        return [item(i) for i in range(5)]

    def dma_x(i):
        b, st = PL.IL[i]
        return dma_img(PL.ibuf[i], st & 1, (st >> 1) * 128, o.xf, ('dma', PL.ifirst[i] - 1), lambda: x_base(s, b))

    def dma_h(g):
        d = sub(32 + g)
        off = WS_H + (d['b'] * 4 + d['c64']) * (1 << 20)
        pre = (lambda: mk_srd(s, SA, S_WS, 1024000, add=off)) if g % 2 == 0 else None
        return dma_img(d['xbuf'], d['p'], 0, o.hf, ('img', g), pre)

    def dma_w(n):
        def item(j):
            return (lambda: e(f's_add_u32 m0, {sHW1K}, {PL.wslot[n] + j * 4096}', f's_mov_b32 s51, {w1_off(n, j)}'),
                    lambda: s.vmem(f'buffer_load_dwordx4 v{C_WD}, {srd(SW1)}, s51 offen{o.wf} lds', ('dma', PL.wfirst[n] - 1), ('w', PL.wslot[n] + j * 4096, 4096)))
        return [item(j) for j in range(PL.wset(n)['T'])]

    def window(win):
        dm = []
        for kind, i in PL.win.get(win, []):
            dm += dma_x(i) if kind == 'x' else dma_w(i)
        imgs = []
        if win == 30 and o.h0p == 30:
            imgs = []
        elif win == 31 and o.h0p == 30:
            imgs = [0, 1]
        elif 30 <= win <= 45:
            imgs = [win - 30] if (win - 30 < 8 or win > o.h1p + 1) else ([] if win <= o.h1p else list(range(8, win - 29)))
        for g in imgs:
            dm += dma_h(g)
        return dm

    def bslot(sig):
        T = sub(sig)['T']
        return 5 * T + o.bl if (sub(sig)['last'] and sub(sig)['ph'] == 2) else 4 * T - 1

    def win_slots(win):
        dm = window(win)
        if not dm or not cwin(o, win):
            return []
        T0_, T1_ = sub(win - 1)['T'], sub(win)['T']
        lo = bslot(win - 1) + 1
        slots = [(win - 1, i) for i in range(lo, 8 * T0_)] + [(win, i) for i in range(0, bslot(win) + 1)]
        span = len(slots) - 6 if win < 31 else (3 * T0_ - 2 if len(dm) <= 5 else len(slots) - 10)
        out = []
        for n_, (a, b) in enumerate(dm):
            i = (n_ * span) // len(dm)
            out.append((slots[i], lo if slots[i][0] == win - 1 else 0, [(1, a), (2, b)]))
        return out
    dsl = {}
    for win in range(1, 46):
        for (sg, i), lo, ab in win_slots(win):
            dsl.setdefault(sg, []).append((i, lo, ab))

    o.cnames = []
    cp = []

    def cflush():
        for i, r in cp:
            e(f'v_writelane_b32 v{(6, 7, 0)[i // 64]}, s{r}, {i % 64}')
        cp.clear()

    def cstamp(name):
        r = 96 + 2 * len(cp)
        e(f's_memtime s[{r}:{r + 1}]')
        cp.append((len(o.cnames), r))
        o.cnames.append(name)

    def bar(name):
        if o.diag:
            e('s_waitcnt lgkmcnt(%d)' % min(len(s.lg), 15))
            cflush()
            cstamp('a' + name)
        s.barrier(name)
        if o.diag:
            cstamp('r' + name)

    e('s_cmp_eq_u32 s2, 255', 's_cbranch_scc1 L_c_ge')
    x('L_c_ge:', 's_waitcnt vmcnt(0) lgkmcnt(0)', 's_barrier', 's_branch L_c_join')
    e('s_waitcnt lgkmcnt(0)')
    s.wait(vm=lambda t_: t_[0] == 'P0')
    if o.idle and 99 in o.idle_at:
        e(f's_sleep {o.idle}')
    bar('P0')
    for j in range(8):
        rd_w(0, j, 0)
        rd_w(0, j, 1)
        rd_x(0, j)
    carry = []
    for sig in range(48):
        d = sub(sig)
        T = d['T']
        s.c(f'--- sigma {sig} {d}')
        pos = {}
        load = {}

        def add(b, j, f, c_=1):
            pos.setdefault((b, j), []).append(f)
            load[b * T + j] = load.get(b * T + j, 0) + c_
        addi = lambda i, f, c_=1: add(i // T, i % T, f, c_)
        flex = []
        for i, s_ in enumerate(range(8, T + 7)):
            addi(3 * i, lambda s_=s_: rd_x(sig, s_))
        nz = (lambda k_: rd_x(sig + 1, k_)) if sig < 47 else (lambda k_: rd_j(0, k_))
        if sig + 1 < 32 and PL.wn[sig + 1] != PL.wn[sig]:
            i = 4 * T
            for j in range(8):
                if j < sub(sig + 1)['T']:
                    addi(i, lambda j=j: rd_w(PL.wn[sig + 1], j, 0))
                    addi(i + 1, lambda j=j: rd_w(PL.wn[sig + 1], j, 1))
                    i += 2
                addi(max(i, j * T + 1), lambda j=j: nz(j))
                i += 1
        else:
            for k_, (b, j) in enumerate([(4, 0), (4, 2), (4, 4), (5, 0), (5, 2), (5, 4), (6, 2), (7, 1)] if not (d['last'] and d['ph'] == 2) else
                                        [(5, 4), (5, 5), (5, 6), (6, 0), (6, 1), (6, 2), (6, 4), (7, 1)]):
                add(b, j, lambda k_=k_: nz(k_))

        def bankload(k, j, i, lo):
            if k < 48:
                if j >= sub(k)['T'] or (PL.rev2 and k in (40, 41, 42)):
                    return
                pre, f = ld_w2_pre(k, j), (lambda: ld_w2(k, j))
            else:
                pre, f = ld_wo_pre(k - 47, j), (lambda: ld_wo(k - 47, j))
            flex.append((i, lo, ([(1, pre)] if pre else []) + [(2, f)]))
        if o.s32 and sig in (29, 30):
            for j in range(4):
                bankload(32, 4 * (sig - 29) + j, 6 * j + 2 + (4 * T if sig == 29 else 0), 0)
        if not o.s32 and sig in (28, 29):
            for j in range(4):
                bankload(32, 4 * (sig - 28) + j, 6 * j + 3, 0)
        if sig >= 31:
            for j in range(2, 8):
                bankload(sig + 2, j, (j - 2) * (5 if T == 8 else 4) + 1, 0)
        if 30 <= sig < 47:
            for j in range(2):
                bankload(sig + 3, j, 7 * T + 1 + 3 * j, 7 * T + j)
        tau3 = lambda ka, i, lo: flex.append((i, lo, [(1, lambda: e(f's_mov_b32 s50, {(24 + (ka & 4)) * 1024}')), (2, lambda: ld_wo(3, ka, 's50'))]))
        if sig == 46:
            for ka in range(5):
                tau3(ka, 4 * T + 1 + 4 * ka, 0)
        if sig == 47:
            for ka in range(5, 8):
                flex.append((7 * T + 2 * (ka - 5), 7 * T + ka - 5, [(2, lambda ka=ka: ld_wo(3, ka, 's50'))]))
        w0 = 25 if PL.M else 23
        if sig in (w0, w0 + 2, w0 + 4):
            for i_, ka in enumerate(range(3 * (sig - w0) // 2, min(8, 3 * (sig - w0) // 2 + 3))):
                bankload(47, ka, (2 + i_) * T - 5, 0) if False else flex.append(((1 + i_) * T + 1, 0, ([(1, ld_wo_pre(0, ka))] if ka % 4 == 0 else []) + [(2, lambda ka=ka: ld_wo(0, ka))]))
        for i, lo, ab in dsl.get(sig, []):
            flex.append((i, lo, ab))
        if sig == 29:
            ops = []
            for i in range(5):
                r_ = C_XV[i]
                ops += [f'v_and_b32 v119, 0x1ff, v{r_}', f'v_ashrrev_i32 v{r_}, 9, v{r_}', f'v_lshl_add_u32 v{r_}, v{r_}, 7, v119', f'v_add_u32 v{r_}, s61, v{r_}',
                        f'v_add_u32 v{C_XV[5 + i]}, 128, v{r_}']
            for i, op in enumerate(ops):
                addi(2 + i, lambda op=op: e(op))
        if o.otouch and sig in (o.otouch, o.otouch + 2):
            def ot():
                mk_srd(s, SB, S_OUT, 32768000)
                e(f's_mov_b32 s50, {16384000 if sig > o.otouch else 0}', 's_mov_b64 exec, 1')
                s.vmem(f'buffer_load_dword v119, v{V_OUT}, {srd(SB)}, s50 offen', ('T',))
                e('s_mov_b64 exec, -1')
            add(3, 2, ot)
        if sig == 46:
            add(1, 0, lambda: mk_srd(s, SA, S_OUT, 16384000))
            add(2, 0, lambda: mk_srd(s, SW1, S_OUT, 16384000, add=16384000))
        redir = o.redir and sig == 15
        lazy = PL.M and sig == PL.eA
        if d['last']:
            if d['ph'] == 1:
                for b, (c_, j) in (((0, (3, 0)), (1, (3, 2))) if sig < 31 else ((0, (2, 2)), (1, (2, T - 1)))):
                    add(c_, j, lambda b=b: (e('s_nop 0'), dump(sig, b)))
            else:
                add(2, 1, lambda: dump(sig, 0))
                add(3, 1, lambda: dump(sig, 1))
            for b in range(2, 3 if redir else (2 if lazy and o.lazy else 7)):
                add(b + 1, T - 1, lambda b=b: (e('s_nop 0'), dump(sig, b)))
        if sig > 0 and sub(sig - 1)['last']:
            if PL.M and sig == PL.eA + 1:
                if o.lazy:
                    for b, (c_, j) in zip(range(2, 6), ((2, 2), (2, 4), (2, 6), (3, 0))):
                        add(c_, j, lambda b=b: dump(sig - 1, b))
            elif not (o.redir and sig == 16):
                add(0, T - 1, lambda: dump(sig - 1, 7))
        if PL.M and sig == PL.eA + 2:
            for b, (c_, j) in ((6, (2, 3)), (7, (2, 6))) if o.lazy else ((7, (2, 4)),):
                add(c_, j, lambda b=b: dump(PL.eA, b))
        if o.redir and sig == 17:
            for b, (c_, j) in zip(range(3, 8), ((2, 1), (2, 3), (2, 5), (2, 7), (3, 1))):
                add(c_, j, lambda b=b: dump(15, b, V_WB[2]))
        for i in [8 * T - 1, bslot(sig)] + [b * T + T - 2 for b in range(1, 8)]:
            load[i] = load.get(i, 0) + 1
        last = -1
        flex += carry
        carry = []
        for i, lo, parts in sorted(flex, key=lambda it: it[0]):
            i = max(i, lo, last + 1)
            if i > 8 * T - len(parts) or carry:
                assert sig < 47
                carry.append((len(carry) - 100, 0, parts))
                continue
            for n_, (c_, f) in enumerate(parts):
                k_, top = i, 8 * T - (len(parts) - n_)
                if o.pack:
                    while k_ < top and k_ < i + 6 and load.get(k_, 0) + c_ > 2:
                        k_ += 1
                    if load.get(k_, 0) + c_ > 2:
                        k_ = i
                addi(k_, f, c_)
                last, i = k_, k_ + 1
        if o.xb >= 0 and sig == o.f0p:
            addi(o.xb, lambda: bar('X'))
        for b in range(8):
            if o.cst >= 0 and sig in (o.cst, o.cst + 1):
                r_ = 64 + 2 * (8 * (sig - o.cst) + b)
                e(f's_memtime s[{r_}:{r_ + 1}]')
            for j in range(T):
                if d['ph'] == 1:
                    s.wait(lg=[('W', d['wk'], j), ('X', sig, b + j)])
                else:
                    s.wait(vm=[('W', sig, j)], lg=[('X', sig, b + j)])
                acc = vr(d['acc'] + 4 * b)
                cin = '0' if (d['first'] and j == 0) else acc
                dst = vr(V_WB[2] + 4 * b) if (redir and b >= 3 and j == T - 1) else acc
                if o.skip and j in (2, 4) and (T == 8 or j == 2 or b % 2):
                    if o.skip == 2:
                        e('s_nop 3')
                else:
                    e(f'v_mfma_f32_16x16x32_bf16 {dst}, {vr(V_WB[d["bank"]] + 4 * j)}, {vr(xreg(b + j))}, {cin}')
                s.nmfma += 1
                if b * T + j != bslot(sig):
                    for f in pos.get((b, j), []):
                        f()
                    continue
                for f in pos.get((b, j), []):
                    f()
                if sig == 0:
                    vmp = lambda t_: t_[0] == 'P0b'
                else:
                    vmp = lambda t_: (t_[0] == 'dma' and t_[1] <= sig) or t_ == ('img', sig - 31)
                need = (1 if d['ph'] == 1 else 3) if d['last'] else 7
                s.wait(vm=vmp, lg=lambda t_: t_[0] != 'D' or t_[2] <= need)
                if o.idle and sig in o.idle_at:
                    e(f's_sleep {o.idle}')
                bar(f'B{sig}')
                if sig == JOIN:
                    e('L_c_join:')
                if sig == o.arr - 1 and o.arrm:
                    if o.arrm == 1:
                        s.vmem(f'buffer_atomic_add v{V_SP + 1}, v{V_SP}, {srd(SB)}, 0 offen sc1', ('arr',))
                    else:
                        s.vmem(f'buffer_store_byte v{V_SP + 1}, v{V_SP}, {srd(SB)}, s2 offen sc1', ('arr',))
    e('s_nop 7')
    dump(47, 7)
    if o.jcp:
        e('s_setprio 2')

    def epi(k, r):
        a0 = V_ACC + 16 * (k % 2)
        return [lambda: e(f'v_cvt_pk_bf16_f32 v{V_PK + 2 * r}, v{a0 + r}, v{a0 + 4 + r}'),
                lambda: e(f'v_cvt_pk_bf16_f32 v{V_PK + 2 * r + 1}, v{a0 + 8 + r}, v{a0 + 12 + r}'),
                lambda: s.vmem(f'buffer_store_dwordx2 {vr(V_PK + 2 * r, 2)}, v{V_OUT}, {srd(SW1 if k // 8 else SA)}, s{56 + r} offen offset:{(k % 8) * 512}{o.of if k < o.ofk else o.of2}', ('S', k, r))]
    for k in range(16):
        s.c(f'--- joint step {k}')
        if k in o.jb:
            if o.idle and 48 + k in o.idle_at:
                e(f's_sleep {o.idle}')
            s.wait(lg=lambda t_: True)
            bar(f'J{k}')
        pos = {}
        if k < 15:
            for ka in range(8):
                pos.setdefault(2 * ka, []).append(lambda ka=ka: rd_j(k + 1, ka))
        if k > 0:
            fl = [f for r in range(4) for f in epi(k - 1, r)]
            for i, f in enumerate(fl):
                pos.setdefault(9 + (3 * i) // 2, []).append(f)
        for tau in range(4):
            if o.cst >= 48 and 0 <= k - (o.cst - 48) < 4:
                r_ = 64 + 2 * (4 * (k - (o.cst - 48)) + tau)
                e(f's_memtime s[{r_}:{r_ + 1}]')
            for ka in range(8):
                s.wait(vm=[('O', tau, ka)], lg=[('A', k, ka)])
                acc = vr(V_ACC + 16 * (k % 2) + 4 * tau)
                e(f'v_mfma_f32_16x16x32_bf16 {acc}, {vr(jreg(k, ka))}, {vr(wo_reg(tau, ka))}, {"0" if ka == 0 else acc}')
                s.nmfma += 1
                for f in pos.get(tau * 8 + ka, []):
                    f()
    e('s_nop 7')
    for r in range(4):
        for f in epi(15, r):
            f()
    if o.span:
        e('s_waitcnt vmcnt(0)', 's_memrealtime s[48:49]', 's_waitcnt lgkmcnt(0)', 'v_mov_b32 v2, s94', 'v_mov_b32 v3, s48', f's_lshl_b32 s48, s2, 2', f's_add_u32 s48, s48, {sW4}',
          's_lshl_b32 s48, s48, 3', f's_add_u32 s48, s48, {WS_DIAG}', 'v_mov_b32 v1, 0', 's_mov_b64 exec, 1', f'buffer_store_dwordx2 v[2:3], v1, {srd(SWS)}, s48 offen')
    if o.span == 2:
        mk_srd(s, SB, S_DBG, 256)
        e('s_not_b32 s50, s94', 'v_mov_b32 v2, s50', 's_sub_u32 s51, s48, s94', 's_nop 0')
        e(f'buffer_atomic_umax v2, v1, {srd(SB)}, 0 offen offset:8 sc1', f'buffer_atomic_umax v3, v1, {srd(SB)}, 0 offen offset:12 sc1',
          'v_sub_u32 v4, v3, v2', 'v_not_b32 v2, v2', 'v_sub_u32 v4, v3, v2', f'buffer_atomic_umax v4, v1, {srd(SB)}, 0 offen offset:16 sc1', f'buffer_atomic_umax v2, v1, {srd(SB)}, 0 offen offset:20 sc1')
    if o.diag:
        e('s_memtime s[48:49]', 's_waitcnt vmcnt(0)', 's_memtime s[50:51]', 's_waitcnt lgkmcnt(0)', 'v_mov_b32 v1, 0', 's_nop 1')
        cflush()
        if o.cst >= 0:
            for i in range(16):
                e(f'v_writelane_b32 v1, s{64 + 2 * i}, {i}')
        e('v_writelane_b32 v1, s48, 16', 'v_writelane_b32 v1, s50, 17')
        e(f's_lshl_b32 s48, s2, 2', f's_add_u32 s48, s48, {sW4}', 's_lshl_b32 s48, s48, 11', f's_add_u32 s48, s48, {WS_DIAG + 768}', f'v_lshrrev_b32 v2, 2, v{V_JLO}')
        for i, r in enumerate((1, 6, 7, 0)):
            e(f'buffer_store_dword v{r}, v2, {srd(SWS)}, s48 offen offset:{i * 256}')
    e('s_endpgm')
    for e1, e2 in twins:
        e2['done'] = e1['done']
    return s, ool


H_S1, H_HS, H_S2, H_L16, H_FLAG, H_HP, H_FP, H_C2, H_EB, H_TMP, H_ONE, H_JHI, H_ZERO, H_CP = 22, 26, 27, 31, 32, 33, 34, 35, 36, 37, 38, 39, 40, 41
H_STAMP = 42
H_PV = 45
H_JH2 = 46
H_ARR = 47
H_PIN = 16
H_ONES = 12
H_D, H_T, H_B, H_EA, H_WF = 48, 80, 96, 112, 128
H_EAB = [112, 2]
H_MX = 18
sGC1, sSLOW, sGEF, sSPIN = 's49', ('s52', 's73'), 's53', 's54'
sHPM = 's[56:57]'
sEX16 = 's[58:59]'
sRET = 's[60:61]'
sPM = 's[62:63]'
sFOFF = 's65'
sPD, sPT = 's64', 's48'
sBU = 's66'
sARS = 's79'
sFL = 's72'
SPIN_LIMIT = 1 << 15


def gen_helper(o, p):
    s = Stream('H')
    s.vm = list(p.vm)
    s.ev = [dict(e_, kind='r') for e_ in p.ev]
    s.open = {id(e_['tag']): e_ for e_ in s.ev}
    o.hentry = list(s.ev)
    s.ev = []
    e = s.e
    ool = Stream('Hool')
    x = ool.e
    nstamp = [0]
    cur = ['P0']
    pend = []

    def flush_stamps():
        if pend:
            s.drain(vm=False)
            for i, r in pend:
                e(f'v_writelane_b32 v{H_STAMP + i // 64}, s{r}, {i % 64}')
            pend.clear()

    def stamp(name, real=False):
        if o.diag and nstamp[0] < 192:
            i = nstamp[0]
            o.names.append(name)
            if len(pend) >= 4:
                flush_stamps()
            r = 84 + 2 * len(pend)
            e(f's_memrealtime s[{r}:{r + 1}]' if real else f's_memtime s[{r}:{r + 1}]')
            pend.append((i, r))
            nstamp[0] += 1

    def bar(name, vmp=None, lgp=None):
        s.wait(vm=vmp or (lambda t_: t_[0] != cur[0]), lg=lgp or (lambda t_: True))
        s.barrier(name)

    def vm(line, kind, mem=None):
        s.vmem(line, (cur[0], kind), mem)

    o.names = []
    stamp('rt0', True)
    stamp('t0')

    def dma_img(buf, av, soff, flags, kind, pre, idx=range(5)):
        def one(i):
            if i == 0 and pre:
                pre()
            if i < 4:
                e(f's_add_u32 m0, {sHW1K}, {buf + 4096 * i}')
                e(f's_mov_b32 s68, {soff}' if soff else 's_nop 0')
            else:
                e(f's_mov_b32 m0, {buf + 16384}', f's_mov_b64 exec, {sEX16}')
                if soff:
                    e(f's_mov_b32 s68, {soff}')
            vm(f'buffer_load_dwordx4 v{av + i}, {srd(SA)}, {"s68" if soff else "0"} offen{flags} lds', kind, ('w', buf + 4096 * i, 4096 if i < 4 else 1024))
            if i == 4:
                e('s_mov_b64 exec, -1')
        return [lambda i=i: one(i) for i in idx]

    def dma_x(i):
        b, st = PL.IL[i]
        return dma_img(PL.ibuf[i], H_XV + 5 * (st & 1), (st >> 1) * 128, o.xf, ('dl', PL.ifirst[i] - 1), lambda: x_base(s, b))

    def dma_w(n):
        def one(j):
            e(f's_add_u32 m0, {sHW1K}, {PL.wslot[n] + j * 4096}', f's_mov_b32 s68, {w1_off(n, j)}')
            vm(f'buffer_load_dwordx4 v{H_WD}, {srd(SW1)}, s68 offen{o.wf} lds', ('dl', PL.wfirst[n] - 1), ('w', PL.wslot[n] + j * 4096, 4096))
        return [lambda j=j: one(j) for j in range(PL.wset(n)['T'])]

    def now(fs):
        for f in fs:
            f()

    def pf_x(st, half):
        b, c64, p_ = st >> 3, (st >> 1) & 3, st & 1
        for i in (range(0, 5) if half == 0 else range(5, 9)):
            for hh in range(2):
                e(f's_load_dword s78, s[{74 + 2 * b}:{75 + 2 * b}], {i * 1024 + p_ * 512 + c64 * 128 + hh * 64}')

    t = 224
    sp, gam = f'v{E_SP}', f'v{E_GAM}'
    e(f's_lshl_b32 s73, {sW4}, 4', 's_mov_b64 s[76:77], 0xffff', f's_lshl_b64 {sEX16}, s[76:77], s73')
    cur[0] = 'P1'
    e('s_mov_b64 s[60:61], s[64:65]')
    e(f's_mov_b32 s68, {T0 & 0xffffffff}', f's_mov_b32 s69, {T0 >> 32}')
    for i in range(2, 4):
        e(f's_add_u32 s73, {sW4}, {4 * i}')
        img_addr(e, H_XV + i, 's73', 's67', 9, t + 3)
    for i in range(5):
        e(f'v_add_u32 v{H_XV + 5 + i}, 512, v{H_XV + i}')

    e(f's_lshl_b32 s68, {sNQ}, 2', f's_add_u32 s68, s68, {sW4}', 's_mul_i32 s68, s68, 18', 's_add_u32 s68, s68, s67', 's_sub_u32 s68, s68, 7',
      's_max_i32 s68, s68, 0', 's_min_i32 s68, s68, 15982', 's_lshl_b32 s68, s68, 9', f's_add_u32 s74, s{S_X}, s68', f's_addc_u32 s75, s{S_X + 1}, 0',
      's_add_u32 s76, s74, 8192000', 's_addc_u32 s77, s75, 0')
    l16, kq = f'v{t + 6}', f'v{t + 7}'
    e(f'v_and_b32 {l16}, 15, v0', f'v_lshrrev_b32 {kq}, 4, v0', f'v_lshlrev_b32 v{H_L16}, 4, v0')
    e(f'v_mov_b32 v{H_C2}, {fbits(GC2)}', f's_mov_b32 {sGC1}, {fbits(GC1)}', 's_mov_b32 s50, 0x05040100', 's_mov_b32 s51, 0x07060302')
    e(f'v_mov_b32 v{H_ONE}, 1', f'v_mov_b32 v{H_ZERO}, 0')
    flag_addr(e, H_FLAG, t + 8)
    mk_srd(s, SD, S_DBG, 256)
    cur[0] = 'P2'
    e(f's_lshl_b32 s68, s2, 2', f's_add_u32 s68, s68, {sW4}', f'v_lshlrev_b32 v{t + 8}, 3, {l16}')
    mk_srd(s, SB, S_W2, 1966080)
    e('s_cmp_lt_u32 s68, 480', 's_cbranch_scc1 L_prep_w2', 's_cmp_lt_u32 s68, 544', 's_cbranch_scc1 L_prep_fo')
    e(f's_mov_b32 {sPD}, {OOB}', f's_mov_b32 {sPT}, 0', f'v_mov_b32 v{t + 9}, {OOB}', 's_mov_b32 s70, 0', 's_mov_b32 s71, 0', 's_mov_b32 s72, 0', 's_mov_b32 s73, 0')
    e('L_prep_done:')
    x('L_prep_w2:')
    x('s_lshr_b32 s69, s68, 5', 's_lshr_b32 s70, s68, 2', 's_and_b32 s70, s70, 7', 's_and_b32 s55, s68, 3')
    x('s_lshl_b32 s72, s55, 5', 's_add_u32 s72, s72, s70', 's_lshl_b32 s72, s72, 4', 's_and_b32 s73, s69, 1', 's_lshl_b32 s73, s73, 3', 's_add_u32 s72, s72, s73',
      's_lshr_b32 s73, s69, 1', 's_add_u32 s72, s72, s73', 's_lshl_b32 s72, s72, 10', f's_add_u32 {sPD}, s72, {WS_W2F}', f's_mov_b32 {sPT}, 131072')
    x('s_lshl_b32 s72, s69, 17', 's_lshl_b32 s73, s70, 14', 's_add_u32 s72, s72, s73', 's_lshl_b32 s73, s55, 7', 's_add_u32 s70, s72, s73')
    x(f'v_lshl_add_u32 v{t + 9}, {kq}, 12, v{t + 8}', 's_mov_b32 s71, 512', 's_mov_b32 s72, 2048', 's_branch L_prep_done')
    x('L_prep_fo:')
    x('s_cmp_lt_u32 s68, 512', f's_cselect_b32 s{SB}, s{S_WF}, s{S_WO}', f's_cselect_b32 s{SB + 1}, s{S_WF + 1}, s{S_WO + 1}', f's_mov_b32 s{SB + 2}, 131072')
    x('s_sub_u32 s69, s68, 480', 's_and_b32 s70, s69, 7', 's_lshr_b32 s55, s69, 3')
    x('s_lshl_b32 s72, s55, 5', 's_add_u32 s72, s72, s70', 's_lshl_b32 s72, s72, 10', f's_add_u32 {sPD}, s72, {WS_WFF}', f's_mov_b32 {sPT}, 8192')
    x('s_lshr_b32 s72, s70, 1', 's_lshl_b32 s72, s72, 15', 's_and_b32 s73, s70, 1', 's_lshl_b32 s73, s73, 10', 's_add_u32 s72, s72, s73',
      's_and_b32 s73, s55, 3', 's_lshl_b32 s73, s73, 7', 's_add_u32 s70, s72, s73')
    x(f'v_lshl_add_u32 v{t + 9}, {kq}, 13, v{t + 8}', 's_mov_b32 s71, 2048', 's_mov_b32 s72, 512', 's_branch L_prep_done')
    e(f'v_mov_b32 v{H_PIN}, v{t + 9}', 's_mov_b32 s55, s70', 's_mov_b32 s65, s71', 's_mov_b32 s66, s72')

    def prep_a():
        for jj in range(8):
            if jj == 4:
                e('s_add_u32 s55, s55, s66')
            e('s_mov_b32 s73, s55' if jj % 4 == 0 else 's_add_u32 s73, s73, s65')
            vm(f'buffer_load_dwordx2 {vr(H_D + 2 * jj, 2)}, v{H_PIN}, {srd(SB)}, s73 offen', 'pin')
    e(f'v_or_b32 v{t + 8}, {sW4}, v0', f'v_cmp_eq_u32 vcc, 0, v{t + 8}', f'v_mov_b32 v{t + 9}, {OOB}', 's_nop 0', f'v_cndmask_b32 v{H_ARR}, v{t + 9}, v{t + 8}, vcc')
    for i in range(4):
        e(f'v_mov_b32 v{H_ONES + i}, -1')

    def resets(st_, tr):
        def fl():
            st_.e('s_mov_b64 exec, 3')
            tr(f'buffer_store_dword v{H_ZERO}, v{H_FLAG}, {srd(SWS)}, 0 offen sc1')
            st_.e('s_mov_b64 exec, -1')

        def ft(i):
            st_.e(f's_lshl_b32 s68, {sN8}, 8', f's_lshl_b32 s69, {sM2}, 3', 's_add_u32 s68, s68, s69', f's_add_u32 s68, s68, {sW4}', 's_lshl_b32 s68, s68, 10',
                  f's_add_u32 s68, s68, {WS_F + (i >> 1) * 2048 * K + (i & 1) * 4096}')
            tr(f'buffer_store_dwordx4 {vr(H_ONES)}, v{H_L16}, {srd(SWS)}, s68 offen sc1')
        return [fl] + [lambda i=i: ft(i) for i in range(4)]

    def arrive(st_, tr):
        tr(f'buffer_atomic_add v{H_ONE}, v{H_ARR}, {srd(SD)}, 0 offen sc1')

    def prep_b(tau):
        s.wait(vm=lambda t_: t_[1] == 'pin')
        for m_ in range(4):
            e(f'v_perm_b32 v{H_T + 4 * tau + m_}, v{H_D + 4 * m_ + 2 + (tau >> 1)}, v{H_D + 4 * m_ + (tau >> 1)}, {"s51" if tau & 1 else "s50"}')
        vm(f'buffer_store_dwordx4 {vr(H_T + 4 * tau)}, v{H_L16}, {srd(SWS)}, {sPD} offen sc1', 'pst')
        e(f's_add_u32 {sPD}, {sPD}, {sPT}')
    c8, row8 = gam, sp
    e(f's_and_b32 s70, {sW4}, 1', 's_lshl_b32 s71, s70, 3', f's_lshr_b32 s72, {sW4}, 1')
    for hh in range(2):
        e(f'v_lshlrev_b32 v{t + 9}, 1, {c8}', f'v_or_b32 v{t + 9}, {hh}, v{t + 9}', f'v_or_b32 v{t + 10}, s71, {row8}',
          f'v_xor_b32 v{t + 9}, v{t + 9}, v{t + 10}', f'v_lshlrev_b32 v{t + 10}, 8, v{t + 10}', f'v_lshl_add_u32 v{t + 9}, v{t + 9}, 4, v{t + 10}',
          's_xor_b32 s68, s72, 1', 's_lshl_b32 s68, s68, 12', f'v_add_u32 v{H_S1 + hh}, s68, v{t + 9}')
    e(f's_lshl_b32 s68, {sM}, 14', 's_lshl_b32 s69, s72, 7', 's_add_u32 s68, s68, s69', 's_lshl_b32 s69, s70, 13', 's_add_u32 s68, s68, s69',
      f'v_lshlrev_b32 v{t + 9}, 10, {row8}', f'v_lshl_add_u32 v{t + 9}, {c8}, 4, v{t + 9}', f'v_add_u32 v{H_HS}, s68, v{t + 9}')
    e(f's_mul_i32 s68, {sW4}, 2080', f'v_and_b32 v{t + 12}, 7, {l16}', f'v_lshl_add_u32 v{t + 11}, {l16}, 7, s68')
    for nh in range(2):
        e(f'v_or_b32 v{t + 13}, {4 * nh}, {kq}', f'v_xor_b32 v{t + 13}, v{t + 13}, v{t + 12}', f'v_lshl_add_u32 v{H_S2 + nh}, v{t + 13}, 4, v{t + 11}')
    e(f's_cmp_eq_u32 {sW4}, 0', f's_cselect_b64 {sPM}, -1, 0', f's_cselect_b32 s71, 0, {OOB}', f'v_mov_b32 v{H_CP}, s71' if o.arrm < 2 else f'v_lshl_add_u32 v{H_CP}, v0, 2, s71')
    e(f's_lshl_b32 s68, {sM2}, 1', 's_sub_u32 s68, s68, 1', f'v_add_u32 v{t + 9}, s68, {kq}', f'v_cmp_gt_u32 vcc, 64, v{t + 9}',
      f'v_lshlrev_b32 v{t + 9}, 9, v{t + 9}', f'v_lshrrev_b32 v{t + 10}, 2, {l16}', f'v_lshl_add_u32 v{t + 9}, v{t + 10}, 7, v{t + 9}', f'v_and_b32 v{t + 10}, 3, {l16}',
      f'v_lshl_add_u32 v{t + 9}, v{t + 10}, 2, v{t + 9}', f's_add_u32 s68, s71, {WS_HFL}', f'v_add_u32 v{H_HP}, s68, v{t + 9}',
      f's_and_b64 {sHPM}, vcc, {sPM}')
    e(f's_lshl_b32 s68, {sW4}, 8', f's_add_u32 s68, s68, {L_EB}', f'v_lshl_add_u32 v{H_EB}, {kq}, 6, s68')
    e(f's_lshl_b32 s68, {sW4}, 11', f'v_add_u32 v{H_JHI}, s68, v{H_L16}')
    e(f'v_add_u32 v{H_JH2}, {77 * K}, v{H_JHI}')
    e('s_lshr_b32 s68, s2, 3', f's_mul_i32 s68, s68, {o.arrn}', f's_lshr_b32 {sARS}, s68, 5')
    e('s_cmp_eq_u32 s2, 255', 's_cbranch_scc1 L_h_ge')

    x('L_h_ge:')
    mk_srd(ool, SB, S_G, 8192)
    x(f'v_lshlrev_b32 v{H_TMP}, 9, {l16}', f'v_lshl_add_u32 v{H_TMP}, {kq}, 4, v{H_TMP}')
    for ks in range(8):
        x(f'buffer_load_dwordx4 {vr(H_D + 4 * ks)}, v{H_TMP}, {srd(SB)}, 0 offen offset:{ks * 64}')
    x(f'v_lshlrev_b32 v{H_TMP}, 3, {l16}', f'v_lshl_add_u32 v{H_TMP}, {kq}, 12, v{H_TMP}')
    mk_srd(ool, SB, S_WG, 131072)
    x(f's_lshl_b32 s69, {sW4}, 7')
    for ks in range(8):
        x(f's_add_u32 s68, s69, {ks * 16384}')
        for jj in range(8):
            x(f'buffer_load_dwordx2 {vr(H_WF + 16 * ks + 2 * jj, 2)}, v{H_TMP}, {srd(SB)}, s68 offen offset:{jj * 512}')
    now(resets(ool, x))
    x('s_waitcnt vmcnt(0)', 's_barrier')
    arrive(ool, x)
    for ks in range(8):
        src = H_WF + 16 * ks
        for tau in range(4):
            for m_ in range(4):
                x(f'v_perm_b32 v{H_T + 4 * tau + m_}, v{src + 4 * m_ + 2 + (tau >> 1)}, v{src + 4 * m_ + (tau >> 1)}, {"s51" if tau & 1 else "s50"}')
        x('s_nop 1')
        for tau in range(4):
            acc = vr(H_B + 4 * tau)
            x(f'v_mfma_f32_16x16x32_bf16 {acc}, {vr(H_T + 4 * tau)}, {vr(H_D + 4 * ks)}, {"0" if ks == 0 else acc}')
    x('s_nop 7', f's_mov_b32 s68, {fbits(TC)}')
    for i_ in range(16):
        x(f'v_mul_f32 v{H_B + i_}, s68, v{H_B + i_}')
    for i_ in range(16):
        x(f'v_exp_f32 v{H_EA + i_}, v{H_B + i_}')
    x(f'v_max3_f32 v{H_T}, |v{H_B}|, |v{H_B + 1}|, 0')
    for i_ in range(2, 16, 2):
        x(f'v_max3_f32 v{H_T}, |v{H_B + i_}|, |v{H_B + i_ + 1}|, v{H_T}')
    x(f'v_cmp_lt_f32 vcc, {fbits(126.0)}, v{H_T}')
    x(f'v_and_b32 v{H_T + 1}, 15, v0', f'v_lshrrev_b32 v{H_T + 2}, 4, v0', f'v_lshlrev_b32 v{H_T + 1}, 10, v{H_T + 1}',
      f'v_lshl_add_u32 v{H_T + 1}, v{H_T + 2}, 6, v{H_T + 1}', f's_lshl_b32 s68, {sW4}, 8', f's_add_u32 s68, s68, {WS_EB}', f's_add_u32 s69, s68, {WS_GB - WS_EB}')
    for tau in range(4):
        x(f'buffer_store_dwordx4 {vr(H_EA + 4 * tau)}, v{H_T + 1}, {srd(SWS)}, s68 offen offset:{tau * 16} sc1')
        x(f'buffer_store_dwordx4 {vr(H_B + 4 * tau)}, v{H_T + 1}, {srd(SWS)}, s69 offen offset:{tau * 16} sc1')
    x('s_cmp_lg_u64 vcc, 0', 's_cselect_b32 s70, 1, 0', f'v_mov_b32 v{H_T + 3}, s70', f's_lshl_b32 s68, {sW4}, 2', f's_add_u32 s68, s68, {WS_EBF}',
      's_mov_b64 exec, 1', f'buffer_store_dword v{H_T + 3}, v{H_ZERO}, {srd(SWS)}, s68 offen sc1')
    x('s_waitcnt vmcnt(0)', f'buffer_atomic_add v{H_ONE}, v{H_ZERO}, {srd(SD)}, 0 offen offset:128 sc1', 's_mov_b64 exec, -1')
    x('L_ge_tail:')

    npoll = [0]

    def poll_issue(kind, b):
        if kind in ('cnt', 'ge'):
            line = f'buffer_load_dword v{H_PV}, v{H_CP}, {srd(SD)}, 0 offen offset:{128 if kind == "ge" else 0} sc1'
        else:
            e(f's_mov_b32 s67, {b * 131072}')
            line = f'buffer_load_dword v{H_PV}, v{H_HP if kind == "h" else H_FP}, {srd(SWS)}, s67 offen sc1'
        vm(line, 'poll')
        return kind, line

    def poll_check(kind, line):
        n = npoll[0]
        npoll[0] += 1
        s.wait(vm=lambda t_: t_[1] == 'poll')
        e(f's_mov_b32 {sSPIN}, 0', f'L_poll{n}:')
        e({'cnt': f'v_cmp_le_u32 vcc, 0x100, v{H_PV}' if o.arrm < 2 else f'v_cmp_eq_u32 vcc, 0x01010101, v{H_PV}', 'ge': f'v_cmp_le_u32 vcc, 4, v{H_PV}'}.get(kind, f'v_cmp_eq_u32 vcc, 1, v{H_PV}'))
        e('s_nop 1', f's_andn2_b64 s[68:69], {sHPM if kind == "h" else sPM}, vcc', f's_cbranch_scc1 L_spin{n}', f'L_pok{n}:')
        stamp(f'x_pok_{kind}{n}')
        if o.diag:
            o.names.append(f's_spin_{kind}{n}')
            e(f'v_writelane_b32 v{H_STAMP + nstamp[0] // 64}, {sSPIN}, {nstamp[0] % 64}')
            nstamp[0] += 1
        x(f'L_spin{n}:', f's_add_u32 {sSPIN}, {sSPIN}, 1', f's_cmp_gt_u32 {sSPIN}, {SPIN_LIMIT}', f's_cbranch_scc1 L_pok{n}', f's_cmp_eq_u32 {sSPIN}, 1',
          f's_cbranch_scc1 L_again{n}', f's_sleep {16 if kind in ("cnt", "ge") else o.slp}', f'L_again{n}:', line, 's_waitcnt vmcnt(0)', f's_branch L_poll{n}')

    Q = []

    def q(cost, *lines):
        Q.append((cost, lambda: e(*lines)))

    def qf(f, cost=0.0):
        Q.append((cost, f))

    done = set()

    def mark(name):
        f = lambda: done.add(name)
        f.jmark = name[1]
        qf(f)

    def run_q(budget, dm=()):
        dm = list(dm)
        avail = min(budget, sum(c_ for c_, _ in Q))
        gap = avail / (len(dm) + 1) if dm else 0
        used, nxt = 0.0, 0.0
        while True:
            while dm and used >= nxt:
                dm.pop(0)()
                nxt += gap
            if not (Q and (used < budget or Q[0][0] == 0)):
                break
            c_, f = Q.pop(0)
            f()
            used += c_
        now(dm)
        return used

    def gelu8(v0_, t0):
        for i in range(8):
            q(.5, f'v_mul_f32 v{t0 + i}, v{v0_ + i}, v{v0_ + i}')
        for i in range(8):
            q(.5, f'v_fma_f32 v{t0 + i}, v{t0 + i}, v{H_C2}, {sGC1}')
        for i in range(8):
            q(.5, f'v_mul_f32 v{t0 + i}, v{t0 + i}, v{v0_ + i}')
        for i in range(8):
            q(1, f'v_exp_f32 v{t0 + i}, v{t0 + i}')
        for i in range(8):
            q(.5, f'v_add_f32 v{t0 + i}, 1.0, v{t0 + i}')
        for i in range(8):
            q(1, f'v_rcp_f32 v{t0 + i}, v{t0 + i}')
        for i in range(8):
            q(.5, f'v_mul_f32 v{v0_ + i}, v{v0_ + i}, v{t0 + i}')

    def pack8(dst, v0_):
        for i in range(4):
            q(.5, f'v_cvt_pk_bf16_f32 v{dst + i}, v{v0_ + 2 * i}, v{v0_ + 2 * i + 1}')

    def epi1_read(b, us):
        for u_ in us:
            for hh in range(2):
                s.lds(f'ds_read_b128 {vr(H_D + 8 * u_ + 4 * hh)}, v{H_S1 + hh} offset:{L_ST + (3 - u_) * 8192}', ('e', u_), ('r', L_ST + (3 - u_) * 8192, 8192))
        if 0 in us:
            e(f's_add_u32 s68, {sNQ}, {4 * b}', 's_lshl_b32 s68, s68, 20')
            mk_srd(s, SB, S_WS, 1 << 20, add='s68')

    held = []

    def epi1_unit(u_, defer):
        qf(lambda: s.wait(lg=[('e', u_)]))
        gelu8(H_D + 8 * u_, H_T)
        pack8(H_B + 4 * u_, H_D + 8 * u_)
        st_ = lambda: vm(f'buffer_store_dwordx4 {vr(H_B + 4 * u_)}, v{H_HS}, {srd(SB)}, 0 offen offset:{u_ * 256}{o.hs}', 'st')
        qf((lambda: held.append(st_)) if defer else st_)

    def epi2_read(b, gg):
        for kh in range(2):
            for nh in range(2):
                s.lds(f'ds_read_b128 {vr(H_D + 16 * gg + 8 * kh + 4 * nh)}, v{H_S2 + nh} offset:{L_ST + kh * 16640 + gg * 8320}', ('e', gg), ('r', L_ST + kh * 16640 + gg * 8320, 8288))
        if gg == 0:
            e(f's_add_u32 s68, {sN8}, {8 * b}', 's_lshl_b32 s68, s68, 8', f's_lshl_b32 s69, {sM2}, 3', 's_add_u32 s68, s68, s69',
              f's_add_u32 s68, s68, {sW4}', 's_lshl_b32 s68, s68, 10', f's_add_u32 {sFOFF}, s68, {WS_F}')
        else:
            e(f's_add_u32 {sFOFF}, {sFOFF}, 4096')

    def epi2_unit(gg):
        qf(lambda: s.wait(lg=[('e', gg)]))
        v_ = H_D + 16 * gg
        for i in range(8):
            q(.5, f'v_add_f32 v{v_ + i}, v{v_ + i}, v{v_ + 8 + i}')
        gelu8(v_, H_EAB[1])
        pack8(v_ + 8, v_)
        for i in range(4):
            q(.5, f'v_min_u32 v{v_ + 8 + i}, -2, v{v_ + 8 + i}')
        qf(lambda: vm(f'buffer_store_dwordx4 {vr(v_ + 8)}, v{H_L16}, {srd(SWS)}, {sFOFF} offen sc1', 'st'))

    def flag_set(k):
        stamp(f'x_preflag{k}')
        s.wait(vm=lambda t_: t_[1] == 'st')
        stamp(f'x_flag{k}')
        e(f's_mov_b64 exec, {1 << k}')
        vm(f'buffer_store_dword v{H_ONE}, v{H_FLAG}, {srd(SWS)}, 0 offen sc1', 'flag')
        e('s_mov_b64 exec, -1')
        done.add(f'flag{k}')

    def ld_wf(i, st_=None):
        if st_:
            st_.e(f's_lshl_b32 s68, {sW4}, 15', f's_add_u32 s68, s68, {WS_WFF + i * 1024}', f'buffer_load_dwordx4 {vr(H_WF + 4 * i)}, v{H_L16}, {srd(SWS)}, s68 offen sc1')
            return
        e(f's_lshl_b32 s68, {sW4}, 15', f's_add_u32 s68, s68, {WS_WFF + i * 1024}')
        vm(f'buffer_load_dwordx4 {vr(H_WF + 4 * i)}, v{H_L16}, {srd(SWS)}, s68 offen sc1', 'wf')

    def dma_eb():
        def one(i):
            e(f's_lshl_b32 s68, {sW4}, 12', f's_add_u32 m0, s68, {L_EB + i * 1024}', f's_add_u32 s68, s68, {WS_EB + i * 1024}')
            vm(f'buffer_load_dwordx4 v{H_L16}, {srd(SWS)}, s68 offen sc1 lds', 'eb', ('w', L_EB, 16384))

        def fl():
            e(f's_lshl_b32 s68, {sW4}, 2', f's_add_u32 s68, s68, {WS_EBF}')
            vm(f'buffer_load_dword v{H_TMP}, v{H_ZERO}, {srd(SWS)}, s68 offen sc1', 'ebf')
        return [lambda i=i: one(i) for i in range(4)] + [fl]

    def get_ebf():
        s.wait(vm=lambda t_: t_[1] == 'ebf')
        e(f'v_readfirstlane_b32 {sGEF}, v{H_TMP}')

    def ld_f(b, st_=None):
        (st_ or s).e(f's_lshl_b32 s69, {sG}, 10')
        for ka in range(8):
            (st_ or s).e(f's_add_u32 s68, s69, {WS_F + (b * 8 + ka) * 256 * 1024}')
            line = f'buffer_load_dwordx4 {vr(H_D + 4 * ka)}, v{H_L16}, {srd(SWS)}, s68 offen' + (' sc1' if st_ or not o.fplain else '')
            if st_:
                st_.e(line)
            else:
                vm(line, 'f')

    PR = [80, 81, 82, 83, 74, 75, 76, 77]

    def probe_issue(st_, b):
        st_.e(f's_lshl_b32 s68, {sG}, 10', f's_add_u32 s68, s68, {WS_F + (b * 8 + 4) * 256 * K}', f's_add_u32 s70, s{S_WS}, s68', f's_addc_u32 s71, s{S_WS + 1}, 0')
        for ka in range(8):
            st_.e(f's_load_dword s{PR[ka]}, s[70:71], {(ka - 4) * 256 * K + 1020} glc')

    def probe_test(st_):
        st_.e('s_waitcnt lgkmcnt(0)')
        for ka in range(1, 8):
            st_.e(f's_max_u32 s{PR[0]}, s{PR[0]}, s{PR[ka]}')
        st_.e(f's_cmp_eq_u32 s{PR[0]}, -1')

    def f_try(b):
        probe_test(s)
        s.lg = []
        e(f's_cselect_b32 {sFL}, 0, 1', f's_cbranch_scc1 L_ftry{b}')
        ld_f(b, s)
        e(f'L_ftry{b}:')

    def f_force(b):
        e(f's_cmp_eq_u32 {sFL}, 0', f's_cbranch_scc1 L_fwait{b}', f'L_fgot{b}:')
        x(f'L_fwait{b}:', f's_mov_b32 {sSPIN}, 0', f'L_fw{b}:')
        probe_issue(ool, b)
        probe_test(ool)
        x(f's_cbranch_scc0 L_fwd{b}', f's_add_u32 {sSPIN}, {sSPIN}, 1', f's_cmp_gt_u32 {sSPIN}, {SPIN_LIMIT}', f's_cbranch_scc1 L_fwd{b}', 's_sleep 2', f's_branch L_fw{b}', f'L_fwd{b}:')
        ld_f(b, ool)
        x(f's_branch L_fgot{b}')

    def chk_f(b):
        if o.probe:
            s.drain(lg=False)
        s.wait(vm=lambda t_: t_[1] in ('f', 'wf'))
        e(f's_mov_b32 {sSPIN}, 0', f'L_fchk{b}:')
        e(f'v_max3_u32 v{H_MX}, v{H_D}, v{H_D + 1}, v{H_D + 2}')
        for i in range(3, 31, 2):
            e(f'v_max3_u32 v{H_MX}, v{H_D + i}, v{H_D + i + 1}, v{H_MX}')
        e(f'v_max_u32 v{H_MX}, v{H_D + 31}, v{H_MX}', f'v_cmp_eq_u32 vcc, -1, v{H_MX}', 's_nop 1', 's_cmp_lg_u64 vcc, 0', f's_cbranch_scc1 L_fspin{b}', f'L_fok{b}:')
        stamp(f'x_fok{b}')
        if o.diag:
            o.names.append(f's_spin_f{b}')
            e(f'v_writelane_b32 v{H_STAMP + nstamp[0] // 64}, {sSPIN}, {nstamp[0] % 64}')
            nstamp[0] += 1
        x(f'L_fspin{b}:', f's_add_u32 {sSPIN}, {sSPIN}, 1', f's_cmp_gt_u32 {sSPIN}, {SPIN_LIMIT}', f's_cbranch_scc1 L_fok{b}', f's_sleep {o.slp}')
        ld_f(b, ool)
        x('s_waitcnt vmcnt(0)', f's_branch L_fchk{b}')

    def fe(b):
        EA = H_EAB[b]
        qf(lambda: chk_f(b), 9)
        for tau in range(4):
            for ka in range(8):
                acc = vr(EA + 4 * tau)
                q(1, f'v_mfma_f32_16x16x32_bf16 {acc}, {vr(H_WF + 32 * tau + 4 * ka)}, {vr(H_D + 4 * ka)}, {"0" if ka == 0 else acc}')
        q(0, 's_nop 7', f's_mov_b32 s55, {fbits(TC)}')
        for i in range(16):
            q(.5, f'v_mul_f32 v{EA + i}, s55, v{EA + i}')
        q(.5, f'v_max3_f32 v{H_MX}, |v{EA}|, |v{EA + 1}|, 0')
        for i in range(2, 16, 2):
            q(.5, f'v_max3_f32 v{H_MX}, |v{EA + i}|, |v{EA + i + 1}|, v{H_MX}')
        q(16, f'v_cmp_lt_f32 vcc, {fbits(126.0)}, v{H_MX}', 's_nop 1', 's_cmp_lg_u64 vcc, 0', f's_cselect_b32 {sSLOW[b]}, 1, {sGEF}',
          f's_cmp_lg_u32 {sSLOW[b]}, 0', f's_cbranch_scc1 L_noexp{b}', *[f'v_exp_f32 v{EA + i}, v{EA + i}' for i in range(16)], f'L_noexp{b}:')

    def eb_read(k):
        for i in range(4):
            s.lds(f'ds_read_b128 {vr(H_B + 4 * i)}, v{H_EB} offset:{k * 1024 + i * 16}', ('eb', k), ('r', L_EB + k * 1024, 1024))

    def jstep(k, nxt):
        def head():
            s.wait(lg=[('eb', k)])
            e(f's_cmp_lg_u32 {sSLOW[k // 8]}, 0', f's_cbranch_scc1 L_js{k}')
            for i in range(16):
                e(f'v_fma_f32 v{H_T + i}, v{H_EAB[k // 8] + i}, v{H_B + i}, 1.0')
            e(f'L_jb{k}:')
            if nxt:
                eb_read(k + 1)
        qf(head, 8)
        x(f'L_js{k}:', f's_mov_b32 {sBU}, {WS_GB - L_EB + k * 1024}', f's_call_b64 {sRET}, L_slow{k // 8}', f's_branch L_jb{k}')
        sl = L_J[k % NJ]
        a, off = (H_JHI, sl) if sl < 60 * K else (H_JH2, sl - 77 * K)
        for hf in range(2):
            for i in range(8 * hf, 8 * hf + 8):
                q(1, f'v_rcp_f32 v{H_T + i}, v{H_T + i}')
            for i in range(8 * hf, 8 * hf + 8):
                q(.5, f'v_fma_f32 v{H_T + i}, v{H_T + i}, -2.0, 1.0')
            pack8(H_T + 8 * hf, H_T + 8 * hf)
            qf(lambda hf=hf: s.lds(f'ds_write_b128 v{a}, {vr(H_T + 8 * hf)} offset:{off + hf * 1024}', ('jw', k), ('w', sl, 8192)))
        mark(('j', k))

    for b in range(2):
        x(f'L_slow{b}:', 's_waitcnt lgkmcnt(0)')
        for i in range(4):
            x(f'buffer_load_dwordx4 {vr(H_B + 4 * i)}, v{H_EB}, {srd(SWS)}, {sBU} offen offset:{i * 16} sc1')
        x('s_waitcnt vmcnt(0)')
        for i in range(16):
            x(f'v_add_f32 v{H_T + i}, v{H_EAB[b] + i}, v{H_B + i}')
        for i in range(16):
            x(f'v_exp_f32 v{H_T + i}, v{H_T + i}')
        for i in range(16):
            x(f'v_add_f32 v{H_T + i}, 1.0, v{H_T + i}')
        x(f's_setpc_b64 {sRET}')

    def t_base(kind, arg):
        if kind == 'w2':
            e(f's_and_b32 s68, {sM2}, 3', 's_lshl_b32 s68, s68, 2', f's_add_u32 s68, s68, {sW4}', 's_lshl_b32 s68, s68, 10', f's_lshl_b32 s69, {sN8}, 18',
              's_add_u32 s68, s68, s69', f's_add_u32 s68, s68, {WS_W2F}')
        elif kind == 'wfo':
            e(f's_and_b32 s68, {sG}, 31', 's_lshl_b32 s68, s68, 2', f's_add_u32 s68, s68, {sW4}', 's_lshl_b32 s68, s68, 10', f's_add_u32 s68, s68, {arg}')
        else:
            d = sub(32 + arg)
            e(f's_lshl_b32 s68, {sN8}, 2', f's_add_u32 s68, s68, {sW4}', 's_mul_i32 s68, s68, 17', 's_lshr_b32 s68, s68, 2', 's_lshl_b32 s68, s68, 1',
              f's_lshl_b32 s69, {sM2}, 8', 's_add_u32 s68, s68, s69', f's_sub_u32 s68, s68, {7 - d["p"]}', 's_max_i32 s68, s68, 0', 's_lshl_b32 s68, s68, 7',
              f's_add_u32 s68, s68, {WS_H + (d["b"] * 4 + d["c64"]) * (1 << 20)}')
        e(f's_add_u32 s70, s{S_WS}, s68', f's_addc_u32 s71, s{S_WS + 1}, 0')

    def t_item(kind, arg, offs):
        def f():
            t_base(kind, arg)
            for x_ in offs:
                e(f's_load_dword s78, s[70:71], {x_}')
        return f
    TQ = {}

    def t_plan():
        k = o.cntp + 1
        def put(k_, it):
            TQ.setdefault(k_, []).append(it)
        if o.tf:
            put(k, t_item('wfo', WS_WFF, [i * 64 for i in range(16)]))
            k += 1
        if o.tw:
            for c32 in range(o.tw):
                for tau in range(2):
                    while k in o.tskip:
                        k += 1
                    put(k, t_item('w2', 0, [tau * 131072 + c32 * 16384 + i * 64 for i in range(16)]))
                    k += 1
        if o.to:
            put(o.to, t_item('wfo', WS_WOF, [i * 64 for i in range(16)]))
        if o.th:
            for g, k_ in ((2, 29), (3, 30), (4, 31), (5, 33), (6, 34), (7, 35), (11, 39), (12, 41), (13, 42), (14, 43)):
                if g < 8 or k_ > o.h1p:
                    put(k_, t_item('h', g, [r_ * 256 + hh * 64 for r_ in range(5) for hh in range(2)]))
    t_plan()

    e('s_branch L_hmain', ';SPLIT', 'L_hmain:', ';HOP')
    bar('P0', lambda t_: t_[0] == 'P0', lambda t_: False)
    wf_next = [0]
    early = resets(s, lambda l_: vm(l_, 'rst'))[:1] + [lambda tau=tau: prep_b(tau) for tau in range(4)]
    frst = resets(s, lambda l_: vm(l_, 'st'))[1:]
    last_early = [0]
    PF = [(PL.ifirst[k_] + i // 5, f's_load_dword s78, s[{74 + 2 * b_}:{75 + 2 * b_}], {i * 1024 + (st & 1) * 512 + (st >> 1) * 128 + hh * 64}')
          for k_, (b_, st) in enumerate(PL.IL) if k_ >= o.pf0 + (1 if PL.M else 0) for i in range(9) for hh in range(2)]
    pend_flag = []

    def late_flag(dm, at):
        if pend_flag and pend_flag[0][1] != cur[0]:
            assert not frst
            k_ = pend_flag.pop(0)[0]
            dm.insert(len(dm) if k_ == 0 else 0, lambda: flag_set(k_))
    polls = {o.cntp: ('cnt', 0), o.h0p: ('h', 0), o.h1p: ('h', 1), o.gep: ('ge', 0)}
    assert len(polls) == 4 and o.gep < 36

    for sig in range(48):
        cur[0] = f'B{sig}'
        s.c(f'--- interval {sig}')
        now(held)
        held.clear()
        P = poll_issue(*polls[sig]) if sig in polls else None
        if sig == o.f0p + 1 and not o.f0x:
            assert not Q
            if o.probe:
                e(f's_mov_b32 {sFL}, 0')
                f_force(0)
                q(o.f0w, 's_nop 0')
            fe(0)
            qf(lambda: eb_read(0))
            for k in range(8):
                jstep(k, True)
        if sig >= o.st0:
            for _ in range(o.stn):
                if early:
                    early.pop(0)()
        if sig >= o.fr0 and frst:
            frst.pop(0)()
        if sig == o.arr - 1:
            assert not early and last_early[0] < sig
        if early:
            last_early[0] = sig + 1
        if sig in (PL.eA + 1, 32):
            epi1_read(sig // 32, [0])
            epi1_unit(0, sig < 32 and o.defer)
        if PL.M and sig == PL.eA + 2:
            epi1_read(0, [1, 2])
            epi1_unit(1, o.defer)
            epi1_unit(2, o.defer)
        if sig in (PL.eA + 3 if PL.M else 18 if o.redir else 17, 33):
            us = [3] if (PL.M and sig < 32) else [1, 2, 3]
            epi1_read(sig // 32, us)
            for u_ in us:
                epi1_unit(u_, sig < 32 and o.defer)
            if sig < 32 and o.defer:
                qf(lambda: held.append(lambda: pend_flag.append((0, cur[0]))))
            else:
                qf(lambda k_=sig // 32: pend_flag.append((k_, cur[0])))
        if sig == 40:
            if o.eprio:
                e('s_setprio 3')
            epi2_read(0, 0)
            epi2_unit(0)
        if sig == 41:
            qf(lambda: epi2_read(0, 1))
            epi2_unit(1)
            qf(lambda: stamp('x_fst0'))
            if o.eprio:
                q(0, 's_setprio 0')
        dm = []
        if not cwin(o, sig):
            for kind, i in PL.win.get(sig, []):
                dm += dma_x(i) if kind == 'x' else dma_w(i)
        for _ in range(o.wf14 if sig == 14 else o.wfn if sig < 28 else 6):
            if sig > o.cntp + 2 * o.tf and (sig % 2 == 1 or sig in (14, 30) or (PL.M and sig == 28)) and sig not in polls and not (PL.M and PL.eA < sig < PL.eA + 5) and wf_next[0] < 32:
                dm.append(lambda i=wf_next[0]: ld_wf(i))
                wf_next[0] += 1
        if 36 <= sig <= 38:
            dm += dma_eb()[2 * (sig - 36):2 * (sig - 36) + 2]
        if sig == 40:
            get_ebf()
        T_ = 4 * sub(sig)['T'] + (4 * sub(sig - 1)['T'] if sig else 0)
        nd = len(dm)
        late_flag(dm, 0)
        used = run_q(T_ - o.qm - nd * o.qd, dm)
        if pend_flag and T_ - nd * o.qd - used >= o.fnow:
            flag_set(pend_flag.pop(0)[0])
        if sig == o.pa:
            prep_a()
        if sig == o.f0p and not o.probe:
            assert not Q
            if o.xb >= 0:
                s.barrier('X')
            ld_f(0)
            if o.f0x:
                fe(0)
                qf(lambda: eb_read(0))
                for k in range(8):
                    jstep(k, True)
                run_q(o.f0x)
        if o.arr <= sig < o.arr + o.arrn and o.arrm == 0:
            assert o.arr + o.arrn - 1 <= JOIN and o.fr0 + 3 <= JOIN and o.arrm == 0
            e(f's_cmp_eq_u32 {sARS}, {sig - o.arr}', 's_cselect_b32 s68, 0, 0x40000000')
            vm(f'buffer_atomic_add v{H_ONE}, v{H_ARR}, {srd(SD)}, s68 offen sc1', 'arr')
        e(';HOP')
        if sig == 0:
            for i in range(o.tc, 5):
                e(f's_load_dword s82, s[80:81], {i * 16384}', f's_load_dword s82, s[80:81], {i * 16384 - 256}')
        tch = {0: 3} if o.pf == 1 else dict(zip(o.tw1, range(4))) if o.pf == 2 else {}
        if sig in tch:
            for i in range(4):
                e(f's_load_dword s82, s[60:61], {tch[sig] * 32768 + i * 64}', f's_load_dword s82, s[60:61], {tch[sig] * 32768 - 1024 + i * 64}')
        if o.pfx and sig >= o.pfs and sig not in tch and sig not in ((PL.eA, PL.eA + 1, PL.eA + 2) if PL.M else (15, 17) if o.redir else (15, 16)):
            n_ = 0
            while PF and n_ < o.pfn and PF[0][0] <= sig + o.pfd:
                if n_ == 0:
                    s.wait(lg=lambda t_: True)
                e(PF.pop(0)[1])
                n_ += 1
        if sig in TQ:
            s.wait(lg=lambda t_: True)
            now(TQ[sig])
        if P:
            if P[0] == 'h':
                assert f'flag{polls[sig][1]}' in done
            poll_check(*P)
        lgp = lambda t_: t_[0] == 'e' or (t_[0] == 'jw' and t_[1] <= 0 and sig == 47)
        if sig == 47:
            assert ('j', 0) in done
        vmp = lambda t_: (t_[1][0] == 'dl' and t_[1][1] <= sig) or (sig == o.arr - 1 and t_[1] in ('pst', 'rst')) or (sig == 40 and t_[1] == 'eb')
        bar(f'B{sig}', vmp, lgp)
        if o.diag == 2 and sig % 4 == 3:
            stamp(f'c_{sig}')
            stamp(f'r_{sig}', True)
        if sig == JOIN:
            e('L_h_join:')
            tail = Stream('tail')
            if o.cntp <= JOIN:
                tail.e(f's_mov_b32 {sSPIN}, 0', 'L_gec:', f'buffer_load_dword v{H_PV}, v{H_ZERO}, {srd(SD)}, 0 offen sc1', 's_waitcnt vmcnt(0)',
                       f'v_cmp_le_u32 vcc, 0x100, v{H_PV}', 's_nop 1', 's_cmp_lg_u64 vcc, 0', 's_cbranch_scc1 L_ged', f's_add_u32 {sSPIN}, {sSPIN}, 1',
                       f's_cmp_gt_u32 {sSPIN}, {SPIN_LIMIT}', 's_cbranch_scc1 L_ged', 's_sleep 16', 's_branch L_gec', 'L_ged:')
                for i in range(wf_next[0]):
                    ld_wf(i, tail)
            tail.e('s_branch L_h_join')
            i_ = ool.l.index('L_ge_tail:')
            ool.l[i_:i_ + 1] = tail.l
    assert wf_next[0] == 32
    for n_, k in enumerate(o.jb):
        cur[0] = f'J{k}'
        nxt = o.jb[n_ + 1] if n_ + 1 < len(o.jb) else 15
        s.c(f'--- joint interval {k}')
        if k == 0 and o.jprio:
            e('s_setprio 3')
        if n_ <= 1:
            print(f'j steps done before window {n_}:', sorted(d_[1] for d_ in done if d_[0] == 'j'), file=sys.stderr)
            cut = 0 if n_ == 0 else next((i + 1 for i, it in enumerate(Q) if it[1].__name__ == 'u0end'), 0)
            rest = Q[cut:]
            del Q[cut:]
            qf(lambda n_=n_: epi2_read(1, n_))
            epi2_unit(n_)
            if n_ == 0:
                def u0end():
                    pass
                qf(u0end)
            else:
                qf(lambda: (stamp('x_fst1'), done.add('fst1')))
                if o.jprio in (1, 3):
                    q(0, 's_setprio 0')
            Q.extend(rest)
            if n_ == 1:
                def after(jn):
                    return next(i + 1 for i, it in enumerate(Q) if getattr(it[1], 'jmark', None) == jn)
                if o.probe:
                    i_ = after(o.f1a)
                    Q.insert(i_ + o.f1c, (0, lambda: f_try(1)))
                    Q.insert(i_, (0, lambda: probe_issue(s, 1)))
                else:
                    Q.insert(after(o.f1a), (0, lambda: ld_f(1)))
                cut = after(o.f1b)
                rest = Q[cut:]
                del Q[cut:]
                if o.probe:
                    qf(lambda: f_force(1))
                if o.jprio == 3:
                    q(0, 's_setprio 3')
                fe(1)
                Q.extend(rest)
                for k_ in range(8, 16):
                    jstep(k_, k_ < 15)
                    if k_ == 8 and o.jprio == 3:
                        q(0, 's_setprio 0')
        if n_ == 0:
            run_q(o.qj0)
        while ('j', nxt) not in done:
            run_q(1)
        if n_:
            run_q(o.joff if k >= 7 else o.joff0)
        bar(f'J{k}', lambda t_: False, lambda t_: t_[0] == 'e' or (t_[0] == 'jw' and t_[1] <= nxt))
        if o.diag == 2 and k in (0, 7, 11):
            stamp(f'c_J{k}')
            stamp(f'r_J{k}', True)
    assert not Q
    if o.diag:
        flush_stamps()
        stamp('end')
        stamp('rt1', True)
        flush_stamps()
        e(f's_lshl_b32 s68, s2, 2', f's_add_u32 s68, s68, {sW4}', 's_lshl_b32 s68, s68, 11', f's_add_u32 s68, s68, {WS_DIAG}', f'v_lshlrev_b32 v{H_TMP}, 2, v0')
        for i in range(3):
            e(f'buffer_store_dword v{H_STAMP + i}, v{H_TMP}, {srd(SWS)}, s68 offen offset:{i * 256}')
    e('s_endpgm')
    return s, ool


def sizes_of(lines):
    import subprocess, re, os
    body = [l for l in lines]
    labels = set(re.findall(r'\bL[\w]+', '\n'.join(l.split(';')[0] for l in body)))
    defined = set(l.strip()[:-1] for l in body if l.strip().endswith(':'))
    txt = '.amdgcn_target "amdgcn-amd-amdhsa--gfx950"\n.text\n' + '\n'.join(body) + '\n' + ''.join(f'{l}:\n' for l in labels - defined) + 's_endpgm\n'
    open('_sz.s', 'w').write(txt)
    subprocess.run(['clang', '-x', 'assembler', '-target', 'amdgcn-amd-amdhsa', '-mcpu=gfx950', '-c', '_sz.s', '-o', '_sz.o'], check=True)
    d = subprocess.run(['llvm-objdump', '-d', '--mcpu=gfx950', '_sz.o'], capture_output=True, text=True).stdout
    ad = [int(m, 16) for m in re.findall(r'// ([0-9A-F]{12}):', d)]
    out, k = [], 0
    for l in body:
        t = l.split(';')[0].strip()
        if not t or t.endswith(':'):
            out.append(0)
        else:
            out.append(ad[k + 1] - ad[k])
            k += 1
    assert k == len(ad) - 1
    return out


def warm_pages(o, cl, cool, hl):
    isbar = lambda l: l.strip().startswith('s_barrier') and not l.strip().endswith('; X')
    base = cl + cool + hl
    sz = sizes_of(base)
    nc, h0 = len(cl), len(cl) + len(cool)
    hops = {}
    for it in range(30):
        out, pc, page, nb, sites, masked = [], 0, 1, 0, [], False
        for i, l in enumerate(base):
            if i == h0:
                nb = 0
            if i >= h0 and l.strip() == ';HOP':
                for pg in hops.get(nb, []):
                    out += ['    s_mov_b64 exec, 0', f'    s_branch L_pg{pg}', f'L_pb{pg}:', '    s_mov_b64 exec, -1']
                    pc += 12
            if sz[i] and pc >= page * 4096 and not masked:
                if i < nc or (i >= h0 and nb in o.busy):
                    out += [f'L_pg{page}:', f'    s_cbranch_execz L_pb{page}']
                    sites.append((page, nb, i >= h0))
                    pc += 4
                page += 1
            out.append(l)
            if l.strip().startswith('s_mov_b64 exec'):
                masked = not l.strip().endswith('-1')
            pc += sz[i]
            if isbar(l):
                nb += 1
        new = {}
        busy = o.busy
        cap = {sg + 1: c_ for sg, c_ in o.hopcap.items()} if PL.M else None
        for pg, b, own in sites:
            k = max(b - (3 if own else 2), 0)
            if cap:
                while k > 0 and len(new.get(k, [])) >= cap.get(k, 0):
                    k -= 1
            else:
                while k > 0 and (k in busy or (k < 31 and k % 2) or len(new.get(k, [])) >= (1 if k < 31 else 2)):
                    k -= 1
            new.setdefault(k, []).append(pg)
        if new == hops:
            print('pages', sites, 'hops', hops, file=sys.stderr)
            return out
        if it >= 5 and sorted(p_ for v_ in new.values() for p_ in v_) == sorted(p_ for v_ in hops.values() for p_ in v_):
            return out
        hops = new
    raise RuntimeError('no fixpoint')


def gen(o):
    global PL, JOIN
    JOIN = o.join
    PL = Plan(o.M, o.rev)
    PL.rev2 = o.rev2
    assert sub(47)['bank'] == 2
    if o.M:
        o.redir = 0
        o.busy = set([1] + list(range(PL.eA + 2, PL.eA + 7)) + [33, 34, 35, 36, 41, 42] + list(range(45, 70)))
    p = gen_entry(o)
    c, cool = gen_compute(o, p)
    h, ool = gen_helper(o, p)
    assert c.nbar == h.nbar, (c.nbar, h.nbar)
    errs = lint(p.l + c.l, 'C') + lint(p.l + h.l, 'H') + lint(ool.l, 'ool') + lint(cool.l, 'cool')
    for ec, eh in zip(c.ev, o.hentry):
        ec['done'] = max(ec['done'], eh['done'])
    races = lds_races([c, h])
    errs += races[:20] + lint_async(p.l + c.l, 'C')[:20] + lint_async(p.l + h.l, 'H')[:20]
    for x in errs:
        print('LINT', x, file=sys.stderr)
    hdr = open('standalone__seq2seq_rnn_t_joint__speech.s.ref').read().split('\n')
    hdr = [l for l in hdr if l.startswith(';') and '@launch' not in l]
    out = '\n'.join(hdr[:11]) + '\n'
    out += '; @launch grid=(256,1,1) block=(512,1,1) lds=163840\n'
    out += DOC
    out += f'''.amdgcn_target "amdgcn-amd-amdhsa--gfx950"
.text
.globl {KN}
.p2align 8
.type {KN},@function
{KN}:
'''
    cut = next(i for i, l in enumerate(h.l) if l.strip() == ';SPLIT')
    h1, h2 = h.l[:cut], h.l[cut + 1:]
    body = warm_pages(o, c.l, cool.l, h2) if o.warm else c.l + cool.l + h2
    out += p.text() + '\n'.join(h1) + '\n.p2align 12\nL_compute:\n' + '\n'.join(body) + '\n' + ool.text() + 'L_exit:\n    s_endpgm\n.p2align 8\n' + '    s_endpgm\n' * 2816
    out += f'''.section .rodata,"a"
.p2align 6
.amdhsa_kernel {KN}
  .amdhsa_next_free_vgpr 256
  .amdhsa_next_free_sgpr {102 if o.diag else 96}
  .amdhsa_accum_offset 256
  .amdhsa_group_segment_fixed_size 0
  .amdhsa_kernarg_size 80
  .amdhsa_user_sgpr_count 2
  .amdhsa_user_sgpr_kernarg_segment_ptr 1
  .amdhsa_system_sgpr_workgroup_id_x 1
.end_amdhsa_kernel
'''
    print(f'mfma={c.nmfma} barriers={c.nbar} lines C={len(c.l)} H={len(h.l)} ool={len(ool.l)} lint={len(errs)}', file=sys.stderr)
    return out


if __name__ == '__main__':
    o = Opt()
    outp = sys.argv[1]
    for a in sys.argv[2:]:
        k, v = a.split('=')
        assert hasattr(o, k), k
        if k in ('xf', 'wf', 'of', 'of2', 'hf', 'hs', 'w2f', 'w2g'):
            setattr(o, k, v.replace('_', ' '))
            continue
        setattr(o, k, tuple(int(y) for y in v.split(',') if y) if k in ('cw', 'jb', 'idle_at', 'tw1') else float(v) if '.' in v else int(v))
    txt = gen(o)
    if o.diag:
        txt += '; STAMPS ' + ' '.join(o.names) + '\n; CSTAMPS ' + ' '.join(o.cnames) + '\n'
    open(outp, 'w').write(txt)
    import subprocess, re
    subprocess.run(['clang', '-x', 'assembler', '-target', 'amdgcn-amd-amdhsa', '-mcpu=gfx950', '-c', outp, '-o', '_fin.o'], check=True)
    d = subprocess.run(['llvm-objdump', '-d', '-h', '_fin.o'], capture_output=True, text=True).stdout
    pc = int(re.search(r'([0-9a-f]+) <L_pc>', d).group(1), 16)
    size = int(re.search(r'\.text\s+([0-9a-f]+)', d).group(1), 16)
    end = int(re.search(r'([0-9a-f]+) <L_exit>', d).group(1), 16)
    assert pc + 5 * 16384 + 2048 <= size and end <= pc + 5 * 16384, (pc, end, size)
    r = subprocess.run([sys.executable, 'cdna_unwritten_srd_check.py', outp], capture_output=True, text=True)
    assert r.returncode == 0, r.stdout + r.stderr
```
